```python
import torch

def _softmax(x, axis=-1):
    return torch.softmax(x, dim=axis)
def _gelu(x):
    return torch.nn.functional.gelu(x, approximate="tanh")
def _silu(x):
    return torch.nn.functional.silu(x)
def _sigmoid(x):
    return torch.sigmoid(x)
def _layernorm(x, axis=-1, eps=1e-5):
    m = x.mean(dim=axis, keepdim=True)
    v = x.var(dim=axis, keepdim=True, unbiased=False)
    return (x - m) / torch.sqrt(v + eps)
def _scatter_add(tgt, idx, src, axis=0):
    return tgt.clone().index_add_(axis, idx, src)
def _segment_sum(src, seg, n):
    out = torch.zeros((n,) + src.shape[1:], dtype=src.dtype)
    return out.index_add_(0, seg, src)
def _pad(x, pw):
    flat = tuple(v for pair in reversed(pw) for v in pair)
    return torch.nn.functional.pad(x, flat)

kernel_name = 'concat_heads__linear_attn_block__linear_attn_block__prompt'

def setup_inputs():

    _w = (lambda a: (lambda t: t.to(torch.bfloat16) if t.is_floating_point() else t)(torch.as_tensor(a)))
    def _A_setup():
        B, S, D = 1, 2048, 512
        return {
            "x": _w((lambda *s: torch.randn(*s, dtype=torch.bfloat16) * 0.05)(B, S, D)),
            "wqkv": _w((lambda *s: torch.randn(*s, dtype=torch.bfloat16) * 0.4)(D, 3 * D)),
            "wo": _w((lambda *s: torch.randn(*s, dtype=torch.bfloat16) * 0.05)(D, D)),
        }
    _A_in = _A_setup()

    def _B_setup():
        B, S, D = 1, 2048, 512
        return {
            "x": _w((lambda *s: torch.randn(*s, dtype=torch.bfloat16) * 0.05)(B, S, D)),
            "wqkv": _w((lambda *s: torch.randn(*s, dtype=torch.bfloat16) * 0.4)(D, 3 * D)),
            "wo": _w((lambda *s: torch.randn(*s, dtype=torch.bfloat16) * 0.05)(D, D)),
        }
    _B_in = _B_setup()

    return {
        "A_x": _A_in["x"],
        "A_wqkv": _A_in["wqkv"],
        "A_wo": _A_in["wo"],
        "B_x": _B_in["x"],
        "B_wqkv": _B_in["wqkv"],
        "B_wo": _B_in["wo"],
    }

def reference(A_x, A_wqkv, A_wo, B_x, B_wqkv, B_wo):
    def _A_ref(x, wqkv, wo):
        B, S, D = x.shape
        H = 32; Dh = D // H
        qkv = (lambda x, *d: x.permute(*d))((x @ wqkv).reshape(B, S, 3, H, Dh), 2, 0, 3, 1, 4)
        q, k, v = qkv[0], qkv[1], qkv[2]
        phi = lambda t: torch.where(t > 0, t + 1, torch.exp(t)) + 1e-6
        pq, pk = phi(q), phi(k)
        kv = torch.einsum("bhsd,bhse->bhde", pk, v)
        z = torch.einsum("bhsd->bhd", pk)
        num = torch.einsum("bhqd,bhde->bhqe", pq, kv)
        den = torch.einsum("bhqd,bhd->bhq", pq, z)[..., None] + 1e-6
        o = num / den
        return (lambda x, *d: x.permute(*d))(o, 0, 2, 1, 3).reshape(B, S, D) @ wo

    def _B_ref(x, wqkv, wo):
        B, S, D = x.shape
        H = 32; Dh = D // H
        qkv = (lambda x, *d: x.permute(*d))((x @ wqkv).reshape(B, S, 3, H, Dh), 2, 0, 3, 1, 4)
        q, k, v = qkv[0], qkv[1], qkv[2]
        phi = lambda t: torch.where(t > 0, t + 1, torch.exp(t)) + 1e-6
        pq, pk = phi(q), phi(k)
        kv = torch.einsum("bhsd,bhse->bhde", pk, v)
        z = torch.einsum("bhsd->bhd", pk)
        num = torch.einsum("bhqd,bhde->bhqe", pq, kv)
        den = torch.einsum("bhqd,bhd->bhq", pq, z)[..., None] + 1e-6
        o = num / den
        return (lambda x, *d: x.permute(*d))(o, 0, 2, 1, 3).reshape(B, S, D) @ wo

    a = _A_ref(A_x, A_wqkv, A_wo)
    b = _B_ref(B_x, B_wqkv, B_wo)
    return torch.concatenate([a, b], axis=-1)
```

```python
import sys, argparse
NAME = "concat_heads__linear_attn_block__linear_attn_block__prompt_kernel"

WS_O    = 0
WS_PK   = 4 << 20
WS_PZ   = 5 << 20
WS_FL   = (5 << 20) + (64 << 10)
WS_EP   = WS_FL + (16 << 10)
WS_TS   = 6 << 20
WS_SIZE = 8 << 20

LOG2E = 0x3fb8aa3b
EPS   = 0x358637bd
ONE_EPS = 0x3f800008

class G:
    def __init__(self, opt):
        self.L = []
        self.opt = opt
        self.vm = []
        self.lg = []
        self.nstamp = 0
    def __call__(self, s):
        self.L.append(s)
    def c(self, s):
        self.L.append("; " + s)
    def vmem(self, s, tag=None):
        self.L.append(s); self.vm.append(tag)
    def lds(self, s, tag=None):
        self.L.append(s); self.lg.append(tag)
    def _n_after(self, lst, tags):
        idx = max(i for i, t in enumerate(lst) if t in tags)
        return len(lst) - 1 - idx
    def wait_vm(self, *tags):
        n = self._n_after(self.vm, tags)
        self.L.append(f"s_waitcnt vmcnt({min(n,63)})")
    def wait_lg(self, *tags):
        n = self._n_after(self.lg, tags)
        self.L.append(f"s_waitcnt lgkmcnt({min(n,15)})")
    def stamp(self):
        if not self.opt.ts: return
        i = self.nstamp; self.nstamp += 1
        assert i < 16
        self.L.append(f"s_memrealtime s[{64+2*i}:{65+2*i}]")
        self.L.append("s_waitcnt lgkmcnt(0)")
    def text(self):
        return "\n".join(self.L) + "\n"

def vr(b, n=1): return f"v{b}" if n == 1 else f"v[{b}:{b+n-1}]"
def ar(b, n=1): return f"a{b}" if n == 1 else f"a[{b}:{b+n-1}]"
def sr(b, n=1): return f"s{b}" if n == 1 else f"s[{b}:{b+n-1}]"

S_X, S_W, S_WO, S_OUT, S_WS = 24, 28, 32, 36, 40
S_BR, S_RB, S_CG, S_WV = 44, 45, 46, 47
S_T0, S_T1, S_T2, S_T3 = 48, 49, 50, 51
S_16K = 52
S_TAG = 53
S_RB64, S_CB = 54, 55
S_LOG2E, S_C1 = 56, 58
S_EPS = 60
S_CNT = 62
S_SOFF = 63
S_EX = 96

V_LANE, V_G, V_I = 1, 2, 3
V_X = 4
V_WKV0, V_WKV1 = 5, 6
V_WQ = 7
V_WO0 = 8
V_BKV = 10
V_BQ = 18
V_BO = 22
V_T = 30
V_ACCKV = 64
V_ACCQ = 128
V_RING = 160
NRING = 16
V_E = 224

def acckv(rt, ct): return V_ACCKV + (rt * 8 + ct) * 4
def accq(rt, h): return V_ACCQ + (rt * 4 + h) * 4
def xa(j, rt): return (j * 2 + rt) * 4

L_KV = 0
L_Q0 = 128 << 10
def lds_q(j):
    return (L_Q0 + j * 4096) if j < 8 else ((j - 8) * 4096)
L_RED = 32 << 10
L_REDZ = L_RED + (16 << 10)
L_SHR = L_RED + (20 << 10)
def lds_wo(u):
    if u < 8: return (64 << 10) + u * 8192
    if u < 12: return L_Q0 + (u - 8) * 8192
    return (u - 12) * 8192
LDS_BYTES = 160 << 10

def prologue(g):
    o = g.opt
    g("s_cmp_ge_u32 s2, 256")
    g("s_cbranch_scc1 L_end")
    g.stamp()
    g("s_load_dwordx16 s[4:19], s[0:1], 0")
    g("s_load_dwordx2 s[20:21], s[0:1], 64")
    g(f"s_and_b32 s{S_BR}, s2, 1")
    g(f"s_lshr_b32 s{S_T0}, s2, 3")
    g(f"s_and_b32 s{S_T1}, s{S_T0}, 7")
    g(f"s_lshr_b32 s{S_CB}, s{S_T0}, 3")
    g(f"s_bfe_u32 s{S_T2}, s2, 0x10001")
    g(f"s_bfe_u32 s{S_T3}, s2, 0x10002")
    g(f"s_lshl_b32 s{S_RB}, s{S_T2}, 3")
    g(f"s_add_u32 s{S_RB}, s{S_RB}, s{S_T1}")
    g(f"s_lshl_b32 s{S_CG}, s{S_T3}, 2")
    g(f"s_add_u32 s{S_CG}, s{S_CG}, s{S_CB}")
    g(f"s_lshl_b32 s{S_RB64}, s{S_T2}, 4")
    g(f"s_lshl_b32 s{S_T3}, s{S_T3}, 3")
    g(f"s_add_u32 s{S_RB64}, s{S_RB64}, s{S_T3}")
    g(f"s_add_u32 s{S_RB64}, s{S_RB64}, s{S_T1}")
    g(f"v_lshrrev_b32 v{V_T}, 6, v0")
    g(f"v_and_b32 v{V_LANE}, 63, v0")
    g(f"v_readfirstlane_b32 s{S_WV}, v{V_T}")
    g(f"v_lshrrev_b32 v{V_G}, 4, v{V_LANE}")
    g(f"v_and_b32 v{V_I}, 15, v0")
    g(f"s_mov_b32 s{S_16K}, 16384")
    g(f"s_lshl_b32 s{S_T0}, s{S_RB}, 17")
    g(f"s_lshl_b32 s{S_T1}, s{S_WV}, 15")
    g(f"s_add_u32 s{S_T0}, s{S_T0}, s{S_T1}")
    g(f"v_lshlrev_b32 v{V_X}, 10, v{V_I}")
    g(f"v_lshl_add_u32 v{V_X}, v{V_G}, 4, v{V_X}")
    g(f"v_add_u32 v{V_X}, s{S_T0}, v{V_X}")
    T = V_T
    g(f"s_and_b32 s{S_T1}, s{S_WV}, 1")
    g(f"s_lshl_b32 s{S_T1}, s{S_T1}, 2")
    g(f"v_add_u32 v{T}, s{S_T1}, v{V_G}")
    g(f"v_lshrrev_b32 v{T+1}, 1, v{V_I}")
    g(f"v_xor_b32 v{T+1}, v{T}, v{T+1}")
    g(f"v_lshrrev_b32 v{T+2}, 2, v{T+1}")
    g(f"v_lshlrev_b32 v{T+2}, 10, v{T+2}")
    g(f"v_and_b32 v{T+3}, 3, v{T+1}")
    g(f"v_lshl_add_u32 v{T+2}, v{T+3}, 5, v{T+2}")
    g(f"v_and_b32 v{T+3}, 1, v{V_I}")
    g(f"v_lshl_add_u32 v{T+2}, v{T+3}, 4, v{T+2}")
    g(f"s_lshl_b32 s{S_T2}, s{S_WV}, 3")
    g(f"v_add_u32 v{T+4}, s{S_T2}, v{V_G}")
    g(f"v_mul_u32_u24 v{T+4}, 3072, v{T+4}")
    g(f"s_lshl_b32 s{S_T2}, s{S_CG}, 7")
    g(f"s_add_u32 s{S_T3}, s{S_T2}, 1024")
    g(f"v_add3_u32 v{V_WKV0}, v{T+4}, v{T+2}, s{S_T3}")
    g(f"v_add_u32 v{V_WKV1}, {12288-1024}, v{V_WKV0}")
    g(f"v_lshrrev_b32 v{T}, 3, v{V_I}")
    g(f"v_lshl_add_u32 v{T}, v{V_G}, 1, v{T}")
    g(f"s_lshl_b32 s{S_T3}, s{S_WV}, 3")
    g(f"v_add_u32 v{T}, s{S_T3}, v{T}")
    g(f"v_mul_u32_u24 v{T}, 3072, v{T}")
    g(f"v_bfe_u32 v{T+1}, v{V_I}, 1, 2")
    g(f"v_and_b32 v{T+2}, 1, v{V_G}")
    g(f"s_lshr_b32 s{S_T1}, s{S_T1}, 1")
    g(f"v_add_u32 v{T+2}, s{S_T1}, v{T+2}")
    g(f"v_xor_b32 v{T+1}, v{T+1}, v{T+2}")
    g(f"v_lshl_add_u32 v{T}, v{T+1}, 5, v{T}")
    g(f"v_lshl_add_u32 v{T}, v{T+3}, 4, v{T}")
    g(f"v_add_u32 v{V_WQ}, s{S_T2}, v{T}")
    g("s_waitcnt lgkmcnt(0)")
    g.stamp()
    g(f"s_cmp_eq_u32 s{S_BR}, 0")
    g(f"s_cselect_b32 s{S_X}, s4, s10")
    g(f"s_cselect_b32 s{S_X+1}, s5, s11")
    g(f"s_cselect_b32 s{S_W}, s6, s12")
    g(f"s_cselect_b32 s{S_W+1}, s7, s13")
    g(f"s_mov_b32 s{S_X+2}, {2048*512*2}")
    g(f"s_mov_b32 s{S_X+3}, 0x20000")
    g(f"s_mov_b32 s{S_W+2}, {512*1536*2}")
    g(f"s_mov_b32 s{S_W+3}, 0x20000")

def prologue2(g):
    T = V_T
    g(f"s_cmp_eq_u32 s{S_BR}, 0")
    g(f"s_cselect_b32 s{S_WO}, s8, s14")
    g(f"s_cselect_b32 s{S_WO+1}, s9, s15")
    g(f"s_mov_b32 s{S_WO+2}, {512*512*2}")
    g(f"s_mov_b32 s{S_WO+3}, 0x20000")
    g(f"s_mov_b32 s{S_OUT}, s16")
    g(f"s_mov_b32 s{S_OUT+1}, s17")
    g(f"s_mov_b32 s{S_OUT+2}, {2048*1024*2}")
    g(f"s_mov_b32 s{S_OUT+3}, 0x20000")
    g(f"s_mov_b32 s{S_WS}, s20")
    g(f"s_mov_b32 s{S_WS+1}, s21")
    g(f"s_mov_b32 s{S_WS+2}, {WS_SIZE}")
    g(f"s_mov_b32 s{S_WS+3}, 0x20000")
    for r, val in ((S_LOG2E, LOG2E), (S_C1, ONE_EPS), (S_EPS, EPS)):
        g(f"s_mov_b32 s{r}, {val:#x}")
        g(f"s_mov_b32 s{r+1}, {val:#x}")
    g(f"v_lshrrev_b32 v{T}, 2, v{V_I}")
    g(f"v_and_b32 v{T+1}, 3, v{V_I}")
    g(f"v_and_b32 v{T+2}, 1, v{V_G}")
    g(f"v_lshl_add_u32 v{T+2}, v{T+2}, 2, v{T}")
    g(f"v_lshl_add_u32 v{T+3}, v{V_G}, 3, v{T}")
    g(f"v_lshlrev_b32 v{T+4}, 8, v{T+3}")
    g(f"v_lshl_add_u32 v{T+4}, v{T+1}, 3, v{T+4}")
    for ct in range(8):
        g(f"v_xor_b32 v{T+5}, {ct}, v{T+2}")
        g(f"v_lshl_add_u32 v{V_BKV+ct}, v{T+5}, 5, v{T+4}")
    g(f"v_lshlrev_b32 v{T+4}, 7, v{T+3}")
    g(f"v_lshl_add_u32 v{T+4}, v{T+1}, 3, v{T+4}")
    g(f"v_lshrrev_b32 v{T+5}, 1, v{T}")
    g(f"v_and_b32 v{T+6}, 1, v{V_G}")
    g(f"v_lshl_add_u32 v{T+5}, v{T+6}, 1, v{T+5}")
    for ct in range(4):
        g(f"v_xor_b32 v{T+6}, {ct}, v{T+5}")
        g(f"v_lshl_add_u32 v{V_BQ+ct}, v{T+6}, 5, v{T+4}")
    g(f"v_lshl_add_u32 v{T+3}, v{V_G}, 2, v{T}")
    g(f"v_lshlrev_b32 v{T+4}, 8, v{T+3}")
    g(f"v_lshl_add_u32 v{T+4}, v{T+1}, 3, v{T+4}")
    for ct in range(8):
        g(f"v_xor_b32 v{T+5}, {ct}, v{T+2}")
        g(f"v_lshl_add_u32 v{V_BO+ct}, v{T+5}, 5, v{T+4}")
    g(f"s_lshl_b32 s{S_T0}, s{S_WV}, 2")
    g(f"v_add_u32 v{T}, s{S_T0}, v{V_G}")
    g(f"v_and_b32 v{T+1}, 7, v{T}")
    g(f"v_lshrrev_b32 v{T+2}, 1, v{V_I}")
    g(f"v_xor_b32 v{T+1}, v{T+1}, v{T+2}")
    g(f"v_lshlrev_b32 v{T}, 10, v{T}")
    g(f"v_lshl_add_u32 v{T}, v{T+1}, 5, v{T}")
    g(f"v_and_b32 v{T+2}, 1, v{V_I}")
    g(f"v_lshl_add_u32 v{T}, v{T+2}, 4, v{T}")
    g(f"s_lshl_b32 s{S_T0}, s{S_CB}, 8")
    g(f"v_add_u32 v{V_WO0}, s{S_T0}, v{T}")

def ld_x(g, j, rt):
    so = "0" if rt == 0 else f"s{S_16K}"
    g.vmem(f"buffer_load_dwordx4 {ar(xa(j,rt),4)}, v{V_X}, {sr(S_X,4)}, {so} offen offset:{j*64}", ("x", j, rt))

def set_m0_wave(g, base, wstride):
    g(f"s_mul_i32 s{S_T0}, s{S_WV}, {wstride}")
    g(f"s_add_u32 m0, s{S_T0}, {base}")

def ld_wkv(g, j):
    g(f"s_add_u32 m0, s{S_M0KV}, {L_KV + j*8192}")
    g(f"s_mov_b32 s{S_SOFF}, {j*98304}")
    g.vmem(f"buffer_load_dwordx4 v{V_WKV0}, {sr(S_W,4)}, s{S_SOFF} offen lds", ("wkv", j, 0))
    g.vmem(f"buffer_load_dwordx4 v{V_WKV1}, {sr(S_W,4)}, s{S_SOFF} offen offset:1024 lds", ("wkv", j, 1))

def ld_wq(g, j):
    g(f"s_add_u32 m0, s{S_M0Q}, {lds_q(j)}")
    g(f"s_mov_b32 s{S_SOFF}, {j*98304}")
    g.vmem(f"buffer_load_dwordx4 v{V_WQ}, {sr(S_W,4)}, s{S_SOFF} offen lds", ("wq", j))

def ld_wo(g, u, m):
    g(f"s_add_u32 m0, s{S_M0Q}, {lds_wo(u) + m*4096}")
    g(f"s_mov_b32 s{S_SOFF}, {(u*32+m*16)*1024}")
    g.vmem(f"buffer_load_dwordx4 v{V_WO0}, {sr(S_WO,4)}, s{S_SOFF} offen lds", ("wo", u, m))

S_M0KV, S_M0Q = 22, 23

def phi2(g, src, tmp, dst):
    u, a = tmp, tmp + 2
    g(f"v_pk_mul_f32 {vr(u,2)}, {vr(src,2)}, {sr(S_LOG2E,2)}")
    g(f"v_pk_add_f32 {vr(a,2)}, {vr(src,2)}, {sr(S_C1,2)}")
    g(f"v_exp_f32 v{u}, v{u} clamp")
    g(f"v_exp_f32 v{u+1}, v{u+1} clamp")
    return [f"v_pk_add_f32 {vr(u,2)}, {vr(u,2)}, {sr(S_EPS,2)}",
            f"v_max_f32 v{a}, v{a}, v{u}",
            f"v_max_f32 v{a+1}, v{a+1}, v{u+1}",
            f"v_cvt_pk_bf16_f32 v{dst}, v{a}, v{a+1}"]

def phi_block(g, pairs, tmpbase, ntmp=4):
    pend = None
    for n, (src, dst) in enumerate(pairs):
        tail = phi2(g, src, tmpbase + (n % ntmp) * 4, dst)
        if pend:
            for s in pend: g(s)
        pend = tail
    g("s_nop 0")
    for s in pend: g(s)

def gen(opt):
    g = G(opt)
    g(f"; @launch grid=(256,1,1) block=(256,1,1) lds={LDS_BYTES}")
    g('.amdgcn_target "amdgcn-amd-amdhsa--gfx950"')
    g(".text")
    g(f".globl {NAME}\n.p2align 8\n.type {NAME},@function\n{NAME}:")
    prologue(g)
    g(f"s_lshl_b32 s{S_M0KV}, s{S_WV}, 11")
    g(f"s_lshl_b32 s{S_M0Q}, s{S_WV}, 10")
    D = opt.depth
    for j in range(min(D, 16)):
        ld_x(g, j, 0); ld_x(g, j, 1); ld_wkv(g, j)
        if j == 1:
            prologue2(g)
            g(f"s_lshl_b32 s{S_T0}, s{S_BR}, 7")
            g(f"s_add_u32 s{S_T0}, s{S_T0}, {WS_EP}")
            g(f"v_mov_b32 v9, 0")
            g.vmem(f"buffer_load_dword v63, v9, {sr(S_WS,4)}, s{S_T0} offen sc1", "ep")
    g.stamp()
    P = opt.pf
    SY = opt.syncevery
    frags = [(j, ct) for j in range(16) for ct in range(8)]
    wq_sched = {}
    def rd_kv(n):
        j, ct = frags[n]
        r = V_RING + (n % NRING) * 4
        off = (j % 8) * 8192
        g.lds(f"ds_read_b64_tr_b16 {vr(r,2)}, v{V_BKV+ct} offset:{off}", ("bkv", n))
        g.lds(f"ds_read_b64_tr_b16 {vr(r+2,2)}, v{V_BKV+ct} offset:{off+1024}", ("bkv", n))
    def sync_kv(j):
        jl = min(j + SY - 1, 15)
        g.wait_vm(("wkv", jl, 1))
        g("s_barrier")
    extra = []
    nxt = D
    sync_kv(0)
    g.stamp()
    for n in range(P):
        rd_kv(n)
    wq_next = 0
    for n, (j, ct) in enumerate(frags):
        if ct == 0:
            if nxt < 16:
                jj = nxt; nxt += 1
                extra += [lambda jj=jj: ld_x(g, jj, 0), lambda jj=jj: ld_x(g, jj, 1), lambda jj=jj: ld_wkv(g, jj)]
            else:
                for _ in range(opt.wq_per_step):
                    if wq_next < 8 or (wq_next < 16 and j >= 4 + SY + 1):
                        extra.append(lambda q=wq_next: ld_wq(g, q)); wq_next += 1
        m = n + P
        if m < len(frags):
            jm, cm = frags[m]
            if cm == 0 and jm % SY == 0:
                sync_kv(jm)
            if cm == 0 and jm == 8:
                pass
            if jm == 8:
                g(f"v_add_u32 v{V_BKV+cm}, 0x10000, v{V_BKV+cm}")
            rd_kv(m)
        g.wait_lg(("bkv", n))
        if ct == 0 and j % SY != 0:
            pass
        r = V_RING + (n % NRING) * 4
        for rt in range(2):
            c = "0" if j == 0 else vr(acckv(rt, ct), 4)
            g(f"v_mfma_f32_16x16x32_bf16 {vr(acckv(rt,ct),4)}, {ar(xa(j,rt),4)}, {vr(r,4)}, {c}")
            if rt == 0 and extra and (ct % 2 == 1):
                extra.pop(0)()
    for f in extra: f()
    extra = []
    while wq_next < 16:
        ld_wq(g, wq_next); wq_next += 1
    g.stamp()
    PK = V_E; VV = V_RING; TM = 32
    g("s_nop 7")
    pairs = []
    for h in range(4):
        for rt in range(2):
            for p in range(2):
                pairs.append((acckv(rt, h) + 2 * p, PK + h * 4 + rt * 2 + p))
    for h in range(4):
        for rt in range(2):
            for p in range(2):
                s = acckv(rt, 4 + h) + 2 * p
                g(f"v_cvt_pk_bf16_f32 v{VV + h*4 + rt*2 + p}, v{s}, v{s+1}")
    ONES = V_RING + 16
    for k in range(4):
        g(f"v_mov_b32 v{ONES+k}, 0x3f803f80")
    phi_block(g, pairs, TM)
    g("s_nop 1")
    KVP = V_RING + 20
    ZP = V_RING + 36
    for h in range(4):
        g(f"v_mfma_f32_16x16x32_bf16 {vr(KVP+h*4,4)}, {vr(PK+h*4,4)}, {vr(VV+h*4,4)}, 0")
        g(f"v_mfma_f32_16x16x32_bf16 {vr(ZP+h*4,4)}, {vr(PK+h*4,4)}, {vr(ONES,4)}, 0")
    A0, A1 = V_T + 16, V_T + 17
    g(f"s_lshl_b32 s{S_T0}, s{S_WV}, 12")
    g(f"s_add_u32 s{S_T0}, s{S_T0}, {L_RED}")
    g(f"v_lshl_add_u32 v{A0}, v{V_LANE}, 4, s{S_T0}")
    g(f"s_lshl_b32 s{S_T0}, s{S_WV}, 8")
    g(f"s_add_u32 s{S_T0}, s{S_T0}, {L_REDZ}")
    g(f"v_lshl_add_u32 v{A1}, v{V_G}, 4, s{S_T0}")
    g(f"v_cmp_eq_u32 vcc, 0, v{V_I}")
    g("s_nop 3")
    for h in range(4):
        g.lds(f"ds_write_b128 v{A0}, {vr(KVP+h*4,4)} offset:{h*1024}", "rw")
    g(f"s_and_saveexec_b64 {sr(S_EX,2)}, vcc")
    for h in range(4):
        g.lds(f"ds_write_b128 v{A1}, {vr(ZP+h*4,4)} offset:{h*64}", "rw")
    g(f"s_mov_b64 exec, {sr(S_EX,2)}")
    g(f"s_add_u32 s{S_T0}, s{S_M0Q}, {L_RED}")
    g(f"v_lshl_add_u32 v{A0}, v{V_LANE}, 4, s{S_T0}")
    g(f"s_lshl_b32 s{S_T0}, s{S_WV}, 6")
    g(f"s_add_u32 s{S_T0}, s{S_T0}, {L_REDZ}")
    g(f"v_lshl_add_u32 v{A1}, v{V_G}, 4, s{S_T0}")
    g("s_waitcnt lgkmcnt(0)")
    g("s_barrier")
    R0 = V_RING
    for w2 in range(4):
        g.lds(f"ds_read_b128 {vr(R0+w2*4,4)}, v{A0} offset:{w2*4096}", ("rr", w2))
    for w2 in range(4):
        g.lds(f"ds_read_b128 {vr(R0+16+w2*4,4)}, v{A1} offset:{w2*256}", ("rz", w2))
    g.wait_vm("ep")
    g(f"v_readfirstlane_b32 s{S_TAG}, v63")
    g(f"s_lshl_b32 s{S_T0}, s{S_BR}, 3")
    g(f"s_add_u32 s{S_T0}, s{S_T0}, s{S_CG}")
    g(f"s_lshl_b32 s{S_T0}, s{S_T0}, 2")
    g(f"s_add_u32 s{S_T0}, s{S_T0}, s{S_WV}")
    g(f"s_add_u32 s{S_TAG}, s{S_TAG}, 0x9e3779b1")
    g(f"s_lshl_b32 s{S_T1}, s{S_T0}, 14")
    g(f"s_add_u32 s{S_T1}, s{S_T1}, {WS_PK}")
    g(f"s_lshl_b32 s{S_T2}, s{S_T0}, 10")
    g(f"s_add_u32 s{S_T2}, s{S_T2}, {WS_PZ}")
    VPK, VPZ, VTAG, VMSK = V_T + 18, V_T + 19, V_T + 20, V_T + 21
    g(f"v_lshl_add_u32 v{VPK}, v{V_LANE}, 4, s{S_T1}")
    g(f"v_lshlrev_b32 v{VPZ}, 6, v{V_I}")
    g(f"v_lshl_add_u32 v{VPZ}, v{V_G}, 4, v{VPZ}")
    g(f"v_add_u32 v{VPZ}, s{S_T2}, v{VPZ}")
    g(f"v_mov_b32 v{VTAG}, s{S_TAG}")
    g(f"v_mov_b32 v{VMSK}, 0xff")
    g(f"s_lshl_b32 s{S_T1}, s{S_RB}, 10")
    g(f"s_lshl_b32 s{S_T3}, s{S_RB}, 6")
    g(f"s_add_u32 s{S_T2}, s{S_T2}, s{S_T3}")
    g(f"v_lshl_add_u32 v{A1}, v{V_G}, 4, s{S_T2}")
    g.wait_lg(("rr", 1))
    g(f"v_pk_add_f32 {vr(R0,2)}, {vr(R0,2)}, {vr(R0+4,2)}")
    g(f"v_pk_add_f32 {vr(R0+2,2)}, {vr(R0+2,2)}, {vr(R0+6,2)}")
    g.wait_lg(("rr", 3))
    g(f"v_pk_add_f32 {vr(R0+8,2)}, {vr(R0+8,2)}, {vr(R0+12,2)}")
    g(f"v_pk_add_f32 {vr(R0+10,2)}, {vr(R0+10,2)}, {vr(R0+14,2)}")
    g(f"v_pk_add_f32 {vr(R0,2)}, {vr(R0,2)}, {vr(R0+8,2)}")
    g(f"v_pk_add_f32 {vr(R0+2,2)}, {vr(R0+2,2)}, {vr(R0+10,2)}")
    for k in range(4):
        g(f"v_bfi_b32 v{R0+k}, v{VMSK}, v{VTAG}, v{R0+k}")
    g.vmem(f"buffer_store_dwordx4 {vr(R0,4)}, v{VPK}, {sr(S_WS,4)}, s{S_T1} offen sc1", "pk_st")
    Z0 = R0 + 16
    g.wait_lg(("rz", 3))
    g(f"v_pk_add_f32 {vr(Z0,2)}, {vr(Z0,2)}, {vr(Z0+4,2)}")
    g(f"v_pk_add_f32 {vr(Z0+2,2)}, {vr(Z0+2,2)}, {vr(Z0+6,2)}")
    g(f"v_pk_add_f32 {vr(Z0+8,2)}, {vr(Z0+8,2)}, {vr(Z0+12,2)}")
    g(f"v_pk_add_f32 {vr(Z0+10,2)}, {vr(Z0+10,2)}, {vr(Z0+14,2)}")
    g(f"v_pk_add_f32 {vr(Z0,2)}, {vr(Z0,2)}, {vr(Z0+8,2)}")
    g(f"v_pk_add_f32 {vr(Z0+2,2)}, {vr(Z0+2,2)}, {vr(Z0+10,2)}")
    for k in range(4):
        g(f"v_bfi_b32 v{Z0+k}, v{VMSK}, v{VTAG}, v{Z0+k}")
    g(f"s_and_saveexec_b64 {sr(S_EX,2)}, vcc")
    g.vmem(f"buffer_store_dwordx4 {vr(Z0,4)}, v{A1}, {sr(S_WS,4)}, 0 offen sc1", "pz_st")
    g(f"s_mov_b64 exec, {sr(S_EX,2)}")
    g.stamp()
    QR, NQR = V_RING + 32, 8
    PQ = min(opt.pf, 6)
    qfr = [(j, h) for j in range(16) for h in range(4)]
    def rd_q(n):
        j, h = qfr[n]
        r = QR + (n % NQR) * 4
        off = lds_q(j) - (L_Q0 if j < 8 else 0)
        g.lds(f"ds_read_b64_tr_b16 {vr(r,2)}, v{V_BQ+h} offset:{off}", ("bq", n))
        g.lds(f"ds_read_b64_tr_b16 {vr(r+2,2)}, v{V_BQ+h} offset:{off+512}", ("bq", n))
    for h in range(4):
        g(f"v_add_u32 v{V_BQ+h}, {L_Q0}, v{V_BQ+h}")
    SQ = opt.qsync
    def sync_q(j):
        g.wait_vm(("wq", min(j + SQ - 1, 15)))
        g("s_barrier")
    extra = [(lambda u=u, m=m: ld_wo(g, u, m)) for u in range(8) for m in range(2)]
    sync_q(0)
    for n in range(PQ):
        rd_q(n)
    for n, (j, h) in enumerate(qfr):
        m = n + PQ
        if m < len(qfr):
            jm, hm = qfr[m]
            if hm == 0 and jm % SQ == 0:
                sync_q(jm)
            if jm == 8:
                g(f"v_subrev_u32 v{V_BQ+hm}, {L_Q0}, v{V_BQ+hm}")
            rd_q(m)
        g.wait_lg(("bq", n))
        r = QR + (n % NQR) * 4
        for rt in range(2):
            c = "0" if j == 0 else vr(accq(rt, h), 4)
            g(f"v_mfma_f32_16x16x32_bf16 {vr(accq(rt,h),4)}, {vr(r,4)}, {ar(xa(j,rt),4)}, {c}")
        if extra and h % 2 == 1 and j < opt.pl_step:
            extra.pop(0)()
        if j == opt.pl_step and h == 0:
            issue_partials(g, VPK, VPZ)
    g.stamp()
    for f in extra: f()
    extra = []
    g("s_nop 7")
    PQB = V_E
    pairs = []
    for rt in range(2):
        for h in range(4):
            for p in range(2):
                pairs.append((accq(rt, h) + 2 * p, PQB + (rt * 4 + h) * 2 + p))
    phi_block(g, pairs, TM)
    g.stamp()
    ZL = 52
    ACC = V_T + 26
    g(f"s_mov_b32 s{S_CNT}, 0")
    g("L_chkA:")
    g("s_waitcnt vmcnt(0)")
    g.vm = []
    B = V_ACCKV
    g(f"v_xor_b32 v{ACC}, v{VTAG}, v{ZL}")
    regs = [ZL + 1, ZL + 2, ZL + 3] + [B + k for k in range(64)]
    for rg in regs:
        g(f"v_bitop3_b32 v{ACC}, v{ACC}, v{rg}, v{VTAG} bitop3:0xf6")
    g(f"v_and_b32 v{ACC}, 0xff, v{ACC}")
    g(f"v_cmp_ne_u32 vcc, 0, v{ACC}")
    g(f"s_add_u32 s{S_CNT}, s{S_CNT}, 1")
    g("s_cbranch_vccz L_okA")
    g(f"s_cmp_gt_u32 s{S_CNT}, {opt.spin}")
    g("s_cbranch_scc1 L_okA")
    issue_partials(g, VPK, VPZ)
    g("s_branch L_chkA")
    g("L_okA:")
    g(f"s_mov_b32 s98, s{S_CNT}")
    g.vm = []
    g.stamp()
    for st in (32, 16, 8, 4):
        for k in range(0, st, 2):
            g(f"v_pk_add_f32 {vr(B+k,2)}, {vr(B+k,2)}, {vr(B+k+st,2)}")
    for sh in (8, 4, 2, 1):
        for k in range(4):
            g(f"v_add_f32_dpp v{ZL+k}, v{ZL+k}, v{ZL+k} row_ror:{sh} row_mask:0xf bank_mask:0xf")
        if sh != 1: pass
    g(f"v_cvt_pk_bf16_f32 v{B+4}, v{B}, v{B+1}")
    g(f"v_cvt_pk_bf16_f32 v{B+5}, v{B+2}, v{B+3}")
    g(f"v_cvt_pk_bf16_f32 v{B+6}, v{ZL}, v{ZL+1}")
    g(f"v_cvt_pk_bf16_f32 v{B+7}, v{ZL+2}, v{ZL+3}")
    g(f"s_add_u32 s{S_T0}, s{S_M0Q}, {L_SHR}")
    g(f"v_lshl_add_u32 v{A0}, v{V_LANE}, 4, s{S_T0}")
    g(f"v_lshlrev_b32 v{A1}, 4, v{V_LANE}")
    g.lds(f"ds_write_b128 v{A0}, {vr(B+4,4)}", "sw")
    EPSQ = B + 8
    for k in range(4):
        g(f"v_mov_b32 v{EPSQ+k}, {EPS:#x}")
    g("s_waitcnt lgkmcnt(0)")
    g("s_barrier")
    KZ = B + 16
    for h in range(4):
        g.lds(f"ds_read_b128 {vr(KZ+h*4,4)}, v{A1} offset:{L_SHR + h*1024}", ("sr", h))
    for u in range(8, 16):
        for m in range(2):
            ld_wo(g, u, m)
    NUM = V_ACCQ
    DEN = V_RING
    for h in range(4):
        g.wait_lg(("sr", h))
        for rt in range(2):
            pq = PQB + (rt * 4 + h) * 2
            g(f"v_mfma_f32_16x16x16_bf16 {vr(DEN+(rt*4+h)*4,4)}, {vr(KZ+h*4+2,2)}, {vr(pq,2)}, {vr(EPSQ,4)}")
            g(f"v_mfma_f32_16x16x16_bf16 {vr(NUM+(rt*4+h)*4,4)}, {vr(KZ+h*4,2)}, {vr(pq,2)}, 0")
    g(f"s_lshl_b32 s{S_T0}, s{S_BR}, 21")
    g(f"s_lshl_b32 s{S_T1}, s{S_RB}, 17")
    g(f"s_add_u32 s{S_T0}, s{S_T0}, s{S_T1}")
    g(f"s_lshl_b32 s{S_T1}, s{S_WV}, 15")
    g(f"s_add_u32 s{S_T0}, s{S_T0}, s{S_T1}")
    g(f"s_lshl_b32 s{S_T1}, s{S_CG}, 11")
    g(f"s_add_u32 s{S_T0}, s{S_T0}, s{S_T1}")
    g(f"v_add_u32 v{A0}, s{S_T0}, v{A1}")
    OB = V_RING + 32
    order = [(rt, h) for h in range(4) for rt in range(2)]
    g("s_nop 1")
    for (rt, h) in order:
        d = DEN + (rt * 4 + h) * 4
        g(f"v_rcp_f32 v{d}, v{d}")
    for (rt, h) in order:
        d = DEN + (rt * 4 + h) * 4; nn = NUM + (rt * 4 + h) * 4; ob = OB + (rt * 4 + h) * 2
        g(f"v_pk_mul_f32 {vr(nn,2)}, {vr(nn,2)}, {vr(d,2)} op_sel_hi:[1,0]")
        g(f"v_pk_mul_f32 {vr(nn+2,2)}, {vr(nn+2,2)}, {vr(d,2)} op_sel_hi:[1,0]")
        g(f"v_cvt_pk_bf16_f32 v{ob}, v{nn}, v{nn+1}")
        g(f"v_cvt_pk_bf16_f32 v{ob+1}, v{nn+2}, v{nn+3}")
        if h % 2 == 1:
            so = "0" if rt == 0 else f"s{S_16K}"
            g.vmem(f"buffer_store_dwordx4 {vr(OB+(rt*4+h-1)*2,4)}, v{A0}, {sr(S_WS,4)}, {so} offen offset:{(h//2)*1024} sc1", ("o_st", rt, h))
    g.stamp()
    g(f"s_lshl_b32 s{S_T0}, s{S_BR}, 4")
    g(f"s_add_u32 s{S_T0}, s{S_T0}, s{S_RB}")
    g(f"s_lshl_b32 s{S_T0}, s{S_T0}, 2")
    g(f"s_add_u32 s{S_T0}, s{S_T0}, s{S_WV}")
    g(f"s_lshl_b32 s{S_T0}, s{S_T0}, 7")
    g(f"s_lshl_b32 s{S_T1}, s{S_CG}, 2")
    g(f"s_add_u32 s{S_T0}, s{S_T0}, s{S_T1}")
    g(f"s_add_u32 s{S_T0}, s{S_T0}, {WS_FL}")
    g(f"v_mov_b32 v{A1}, 0")
    g(f"v_cmp_eq_u32 vcc, 0, v{V_LANE}")
    g("s_waitcnt vmcnt(0)")
    g.vm = []
    g(f"s_and_saveexec_b64 {sr(S_EX,2)}, vcc")
    g.vmem(f"buffer_store_dword v{VTAG}, v{A1}, {sr(S_WS,4)}, s{S_T0} offen sc1", "fl_st")
    g(f"s_mov_b64 exec, {sr(S_EX,2)}")
    g.stamp()
    g("s_barrier")
    g(f"s_lshl_b32 s{S_T0}, s{S_BR}, 6")
    g(f"s_lshl_b32 s{S_T1}, s{S_RB64}, 1")
    g(f"s_add_u32 s{S_T0}, s{S_T0}, s{S_T1}")
    g(f"s_lshr_b32 s{S_T1}, s{S_WV}, 1")
    g(f"s_add_u32 s{S_T0}, s{S_T0}, s{S_T1}")
    g(f"s_lshl_b32 s{S_T0}, s{S_T0}, 7")
    g(f"s_add_u32 s{S_T2}, s{S_T0}, {WS_FL}")
    VF, VFA = V_T + 27, V_T + 28
    g(f"v_and_b32 v{VFA}, 7, v{V_LANE}")
    g(f"v_lshlrev_b32 v{VFA}, 2, v{VFA}")
    g(f"s_lshl_b32 s{S_T0}, s{S_BR}, 21")
    g(f"s_lshl_b32 s{S_T1}, s{S_RB64}, 16")
    g(f"s_add_u32 s{S_T0}, s{S_T0}, s{S_T1}")
    g(f"s_lshl_b32 s{S_T1}, s{S_WV}, 14")
    g(f"s_add_u32 s{S_T3}, s{S_T0}, s{S_T1}")
    g(f"v_lshlrev_b32 v{A0}, 4, v{V_LANE}")
    VOA = [A0, V_T + 29, V_T + 30, V_T + 31]
    for k in range(1, 4):
        g(f"v_add_u32 v{VOA[k]}, {k*4096}, v{A0}")
    g.vmem(f"buffer_load_dword v{VF}, v{VFA}, {sr(S_WS,4)}, s{S_T2} offen sc1", "poll")
    NPRE = opt.npre
    def wofrag(u, ct):
        if u < 8: return ("a", (u * 8 + ct) * 4)
        return ("v", WOV + ((u - 8) * 8 + ct) * 4)
    OF = 64
    ACO = 224
    WOV = 128
    curbase = [0] * 8
    def rd_wo(u, ct, dst):
        base = lds_wo(u)
        hi = base & ~0xFFFF
        if curbase[ct] != hi:
            g(f"v_add_u32 v{V_BO+ct}, {(hi - curbase[ct]) & 0xffffffff:#x}, v{V_BO+ct}")
            curbase[ct] = hi
        off = base - hi
        k, r = dst
        f = ar if k == "a" else vr
        g.lds(f"ds_read_b64_tr_b16 {f(r,2)}, v{V_BO+ct} offset:{off}", ("wo", u, ct))
        g.lds(f"ds_read_b64_tr_b16 {f(r+2,2)}, v{V_BO+ct} offset:{off+4096}", ("wo", u, ct))
    assert NPRE <= 10
    for u in range(NPRE):
        for ct in range(8):
            rd_wo(u, ct, wofrag(u, ct))
    g.stamp()
    g(f"s_mov_b32 s{S_CNT}, 0")
    g("L_chkB:")
    g("s_waitcnt vmcnt(0)")
    g(f"v_cmp_ne_u32 vcc, v{VF}, v{VTAG}")
    g(f"s_add_u32 s{S_CNT}, s{S_CNT}, 1")
    g("s_cbranch_vccz L_okB")
    g(f"s_cmp_gt_u32 s{S_CNT}, {opt.spin}")
    g("s_cbranch_scc1 L_okB")
    g(f"buffer_load_dword v{VF}, v{VFA}, {sr(S_WS,4)}, s{S_T2} offen sc1")
    g("s_branch L_chkB")
    g("L_okB:")
    g.vm = []
    g.stamp()
    for u in range(16):
        g.vmem(f"buffer_load_dwordx4 {vr(OF+u*4,4)}, v{VOA[u//4]}, {sr(S_WS,4)}, s{S_T3} offen offset:{(u%4)*1024} sc1", ("of", u))
    g("s_cmp_ge_u32 s2, 2")
    g("s_cbranch_scc1 L_noep")
    g(f"s_cmp_lg_u32 s{S_WV}, 0")
    g("s_cbranch_scc1 L_noep")
    g(f"s_lshl_b32 s{S_T0}, s{S_BR}, 7")
    g(f"s_add_u32 s{S_T0}, s{S_T0}, {WS_EP}")
    g(f"v_mov_b32 v{VF}, 0")
    g(f"v_cmp_eq_u32 vcc, 0, v{V_LANE}")
    g(f"s_and_saveexec_b64 {sr(S_EX,2)}, vcc")
    g(f"buffer_store_dword v{VTAG}, v{VF}, {sr(S_WS,4)}, s{S_T0} offen sc1")
    g(f"s_mov_b64 exec, {sr(S_EX,2)}")
    g("s_waitcnt vmcnt(0)")
    g("L_noep:")
    g(f"s_lshl_b32 s{S_T0}, s{S_RB64}, 17")
    g(f"s_lshl_b32 s{S_T1}, s{S_WV}, 15")
    g(f"s_add_u32 s{S_T0}, s{S_T0}, s{S_T1}")
    g(f"s_lshl_b32 s{S_T1}, s{S_BR}, 10")
    g(f"s_add_u32 s{S_T0}, s{S_T0}, s{S_T1}")
    g(f"s_lshl_b32 s{S_T1}, s{S_CB}, 8")
    g(f"s_add_u32 s{S_T0}, s{S_T0}, s{S_T1}")
    VO = V_T + 32
    g(f"v_lshlrev_b32 v{VO}, 11, v{V_I}")
    g(f"v_and_b32 v{VF}, 1, v{V_G}")
    g(f"v_lshl_add_u32 v{VO}, v{VF}, 5, v{VO}")
    g(f"v_lshrrev_b32 v{VF}, 1, v{V_G}")
    g(f"v_lshl_add_u32 v{VO}, v{VF}, 4, v{VO}")
    g(f"v_add_u32 v{VO}, s{S_T0}, v{VO}")
    SR0 = WOV + max(NPRE - 8, 0) * 32
    NSR = (224 - SR0) // 4
    sfr = [(u, ct) for u in range(NPRE, 16) for ct in range(8)]
    PS = min(NSR - 1, 6)
    spos = {}
    def rd_s(n):
        u, ct = sfr[n]
        spos[(u, ct)] = ("v", SR0 + (n % NSR) * 4)
        rd_wo(u, ct, spos[(u, ct)])
    nis = 0
    allf = [(u, ct) for u in range(16) for ct in range(8)]
    first_stream = NPRE * 8
    for n, (u, ct) in enumerate(allf):
        m = n + PS - first_stream
        if 0 <= m < len(sfr):
            rd_s(m)
        if ct == 0:
            g.wait_vm(("of", u))
        if n == 0:
            g.wait_lg(("wo", NPRE - 1, 7))
        if u >= NPRE:
            g.wait_lg(("wo", u, ct))
            k, r = spos[(u, ct)]
        else:
            k, r = wofrag(u, ct)
        f = ar if k == "a" else vr
        c = "0" if u == 0 else vr(ACO + ct * 4, 4)
        g(f"v_mfma_f32_16x16x32_bf16 {vr(ACO+ct*4,4)}, {f(r,4)}, {vr(OF+u*4,4)}, {c}")
    g.stamp()
    g("s_nop 7")
    OP = 64
    for p in range(4):
        a0 = ACO + (2 * p) * 4; a1 = ACO + (2 * p + 1) * 4; o = OP + p * 4
        g(f"v_cvt_pk_bf16_f32 v{o}, v{a0}, v{a0+1}")
        g(f"v_cvt_pk_bf16_f32 v{o+1}, v{a0+2}, v{a0+3}")
        g(f"v_cvt_pk_bf16_f32 v{o+2}, v{a1}, v{a1+1}")
        g(f"v_cvt_pk_bf16_f32 v{o+3}, v{a1+2}, v{a1+3}")
        g("s_nop 1")
        g(f"v_permlane16_swap_b32 v{o}, v{o+2}")
        g(f"v_permlane16_swap_b32 v{o+1}, v{o+3}")
        g.vmem(f"buffer_store_dwordx4 {vr(o,4)}, v{VO}, {sr(S_OUT,4)}, 0 offen offset:{p*64}", "out")
    if opt.ts:
        g("s_waitcnt vmcnt(0)")
        g.stamp()
        g(f"s_lshl_b32 s{S_T0}, s2, 2")
        g(f"s_add_u32 s{S_T0}, s{S_T0}, s{S_WV}")
        g(f"s_lshl_b32 s{S_T0}, s{S_T0}, 7")
        g(f"s_add_u32 s{S_T0}, s{S_T0}, {WS_TS}")
        g(f"v_mov_b32 v{A1}, 0")
        g(f"v_cmp_eq_u32 vcc, 0, v{V_LANE}")
        g(f"s_and_saveexec_b64 {sr(S_EX,2)}, vcc")
        for i in range(16):
            if i < g.nstamp:
                g(f"v_mov_b32 v64, s{64+2*i}")
                g(f"v_mov_b32 v65, s{65+2*i}")
            elif i == 15:
                g(f"v_mov_b32 v64, s98")
                g(f"v_mov_b32 v65, s{S_CNT}")
            else:
                g(f"v_mov_b32 v64, s{64}")
                g(f"v_mov_b32 v65, s{65}")
            g(f"buffer_store_dwordx2 v[64:65], v{A1}, {sr(S_WS,4)}, s{S_T0} offen offset:{i*8}")
            g("s_nop 1")
    g("L_end:")
    g("s_endpgm")
    g(f""".section .rodata,"a"
.p2align 6
.amdhsa_kernel {NAME}
  .amdhsa_next_free_vgpr 512
  .amdhsa_next_free_sgpr 102
  .amdhsa_accum_offset 256
  .amdhsa_group_segment_fixed_size 0
  .amdhsa_kernarg_size 72
  .amdhsa_user_sgpr_count 2
  .amdhsa_user_sgpr_kernarg_segment_ptr 1
  .amdhsa_system_sgpr_workgroup_id_x 1
.end_amdhsa_kernel""")
    return g.text()

def issue_partials(g, VPK, VPZ):
    g.vmem(f"buffer_load_dwordx4 v[52:55], v{VPZ}, {sr(S_WS,4)}, 0 offen sc1", "pz_ld")
    for p in range(16):
        if p % 4 == 0:
            g(f"s_mov_b32 s{S_SOFF}, {p*1024}")
        g.vmem(f"buffer_load_dwordx4 {vr(V_ACCKV+p*4,4)}, v{VPK}, {sr(S_WS,4)}, s{S_SOFF} offen offset:{(p%4)*1024} sc1", ("pk_ld", p))

if __name__ == "__main__":
    ap = argparse.ArgumentParser()
    ap.add_argument("-o", default="k.s")
    ap.add_argument("--ts", action="store_true")
    ap.add_argument("--depth", type=int, default=8)
    ap.add_argument("--pf", type=int, default=5)
    ap.add_argument("--syncevery", type=int, default=2)
    ap.add_argument("--qsync", type=int, default=4)
    ap.add_argument("--wq_per_step", type=int, default=2)
    ap.add_argument("--pl_step", type=int, default=12)
    ap.add_argument("--npre", type=int, default=10)
    ap.add_argument("--spin", type=int, default=20000)
    opt = ap.parse_args()
    open(opt.o, "w").write(gen(opt))
```

```python
import argparse
from gen import *
def gen_ld(opt):
    g = G(opt)
    g(f"; @launch grid=(256,1,1) block=(256,1,1) lds={LDS_BYTES}")
    g('.amdgcn_target "amdgcn-amd-amdhsa--gfx950"')
    g(".text")
    g(f".globl {NAME}\n.p2align 8\n.type {NAME},@function\n{NAME}:")
    prologue(g)
    g(f"s_lshl_b32 s{S_M0KV}, s{S_WV}, 11")
    g(f"s_lshl_b32 s{S_M0Q}, s{S_WV}, 10")
    prologue2(g)
    S_ROT = 99
    g(f"s_and_b32 s{S_T0}, s{S_RB}, 7")
    g(f"s_mul_i32 s{S_T0}, s{S_T0}, {opt.rota}")
    g(f"s_and_b32 s{S_T1}, s{S_CG}, 3")
    g(f"s_mul_i32 s{S_T1}, s{S_T1}, {opt.rotb}")
    g(f"s_add_u32 s{S_ROT}, s{S_T0}, s{S_T1}")
    g(f"v_add_u32 v9, 16384, v{V_X}")
    import math
    lpr = opt.xseg // 16
    g(f"v_lshrrev_b32 v40, {int(math.log2(lpr))}, v{V_LANE}")
    g(f"v_lshlrev_b32 v40, 10, v40")
    g(f"v_and_b32 v41, {lpr-1}, v{V_LANE}")
    g(f"v_lshl_add_u32 v40, v41, 4, v40")
    g(f"s_lshl_b32 s{S_T0}, s{S_RB}, 17")
    g(f"s_lshl_b32 s{S_T1}, s{S_WV}, 15")
    g(f"s_add_u32 s{S_T0}, s{S_T0}, s{S_T1}")
    g(f"v_add_u32 v40, s{S_T0}, v40")
    for rep in range(opt.reps):
        for j in range(16):
            g(f"s_add_u32 s{S_T0}, s{S_ROT}, {j}")
            g(f"s_and_b32 s{S_T0}, s{S_T0}, 15")
            g(f"s_lshl_b32 s{S_T1}, s{S_T0}, 6")
            g(f"s_mul_i32 s{S_SOFF}, s{S_T0}, 98304")
            if opt.x:
                if opt.xmode == 0:
                    g.vmem(f"buffer_load_dwordx4 {ar(xa(j,0),4)}, v{V_X}, {sr(S_X,4)}, s{S_T1} offen {opt.xflag}", ("x", j, 0))
                    g.vmem(f"buffer_load_dwordx4 {ar(xa(j,1),4)}, v9, {sr(S_X,4)}, s{S_T1} offen {opt.xflag}", ("x", j, 1))
                else:
                    rows = 1024 // opt.xseg
                    nchunk = 1024 // opt.xseg
                    for i2 in range(2):
                        n = j * 2 + i2
                        kc = n // (32 // rows); rg = n % (32 // rows)
                        g(f"s_mov_b32 s{S_T1}, {rg*rows*1024 + kc*opt.xseg}")
                        if opt.xmode == 1:
                            g(f"s_add_u32 m0, s{S_M0KV}, {(128<<10) + (n%2)*1024}")
                            g("s_nop 0")
                            g.vmem(f"buffer_load_dwordx4 v40, {sr(S_X,4)}, s{S_T1} offen {opt.xflag} lds", ("x", j, i2))
                        else:
                            g.vmem(f"buffer_load_dwordx4 {ar(xa(j,i2),4)}, v40, {sr(S_X,4)}, s{S_T1} offen {opt.xflag}", ("x", j, i2))
            if opt.w:
                g(f"s_add_u32 m0, s{S_M0KV}, {L_KV + j*8192}")
                g("s_nop 0")
                if opt.wreg:
                    g.vmem(f"buffer_load_dwordx4 {vr(64+(j%8)*8,4)}, v{V_WKV0}, {sr(S_W,4)}, s{S_SOFF} offen", ("wkv", j, 0))
                    g.vmem(f"buffer_load_dwordx4 {vr(68+(j%8)*8,4)}, v{V_WKV1}, {sr(S_W,4)}, s{S_SOFF} offen offset:1024", ("wkv", j, 1))
                else:
                    g.vmem(f"buffer_load_dwordx4 v{V_WKV0}, {sr(S_W,4)}, s{S_SOFF} offen lds", ("wkv", j, 0))
                    g.vmem(f"buffer_load_dwordx4 v{V_WKV1}, {sr(S_W,4)}, s{S_SOFF} offen offset:1024 lds", ("wkv", j, 1))
            if j == 3 and rep == 0:
                pass
        if rep < 5:
            g.stamp()
        g("s_waitcnt vmcnt(0)")
        g.vm = []
        if rep < 5:
            g.stamp()
        g("s_barrier")
    A1 = 47
    g("s_getreg_b32 s98, hwreg(HW_REG_XCC_ID)")
    g(f"s_getreg_b32 s{S_CNT}, hwreg(HW_REG_HW_ID)")
    g(f"s_lshl_b32 s{S_T0}, s2, 2")
    g(f"s_add_u32 s{S_T0}, s{S_T0}, s{S_WV}")
    g(f"s_lshl_b32 s{S_T0}, s{S_T0}, 7")
    g(f"s_add_u32 s{S_T0}, s{S_T0}, {WS_TS}")
    g(f"v_mov_b32 v{A1}, 0")
    g(f"v_cmp_eq_u32 vcc, 0, v{V_LANE}")
    g(f"s_and_saveexec_b64 {sr(S_EX,2)}, vcc")
    for i in range(16):
        if i < g.nstamp:
            g(f"v_mov_b32 v64, s{64+2*i}"); g(f"v_mov_b32 v65, s{65+2*i}")
        elif i == 15:
            g(f"v_mov_b32 v64, s98"); g(f"v_mov_b32 v65, s{S_CNT}")
        else:
            g(f"v_mov_b32 v64, s{64}"); g(f"v_mov_b32 v65, s{65}")
        g(f"buffer_store_dwordx2 v[64:65], v{A1}, {sr(S_WS,4)}, s{S_T0} offen offset:{i*8}")
        g("s_nop 1")
    g("L_end:")
    g("s_endpgm")
    g(f""".section .rodata,"a"
.p2align 6
.amdhsa_kernel {NAME}
  .amdhsa_next_free_vgpr 512
  .amdhsa_next_free_sgpr 102
  .amdhsa_accum_offset 256
  .amdhsa_group_segment_fixed_size 0
  .amdhsa_kernarg_size 72
  .amdhsa_user_sgpr_count 2
  .amdhsa_user_sgpr_kernarg_segment_ptr 1
  .amdhsa_system_sgpr_workgroup_id_x 1
.end_amdhsa_kernel""")
    return g.text()
if __name__ == "__main__":
    ap = argparse.ArgumentParser()
    ap.add_argument("-o", default="ld.s")
    ap.add_argument("--rota", type=int, default=0)
    ap.add_argument("--rotb", type=int, default=0)
    ap.add_argument("--reps", type=int, default=3)
    ap.add_argument("--x", type=int, default=1)
    ap.add_argument("--w", type=int, default=1)
    ap.add_argument("--wreg", type=int, default=0)
    ap.add_argument("--xmode", type=int, default=0)
    ap.add_argument("--xseg", type=int, default=128)
    ap.add_argument("--xflag", default="")
    opt = ap.parse_args(); opt.ts = True
    open(opt.o, "w").write(gen_ld(opt))
```

```python
import sys, argparse
NAME = "concat_heads__linear_attn_block__linear_attn_block__prompt_kernel"

WS_O    = 0
WS_PK   = 4 << 20
WS_PZ   = 5 << 20
WS_FL   = (5 << 20) + (64 << 10)
WS_EP   = WS_FL + (16 << 10)
WS_TS   = 6 << 20
WS_CK   = 7 << 20
WS_XT   = (7 << 20) + (512 << 10)
WS_SIZE = 8 << 20
LOG2E = 0x3fb8aa3b
EPS   = 0x358637bd
ONE_EPS = 0x3f800008

class G:
    def __init__(self, opt):
        self.L = []; self.opt = opt; self.vm = []; self.lg = []; self.nstamp = 0; self.names = []
        self.hi = {}
    def __call__(self, s): self.L.append(s)
    def vmem(self, s, tag=None): self.L.append(s); self.vm.append(tag)
    def lds(self, s, tag=None): self.L.append(s); self.lg.append(tag)
    def _n_after(self, lst, tags):
        idx = max(i for i, t in enumerate(lst) if t in tags)
        return len(lst) - 1 - idx
    def wait_vm(self, *tags):
        n = self._n_after(self.vm, tags); self.L.append(f"s_waitcnt vmcnt({min(n,63)})")
    def wait_lg(self, *tags):
        n = self._n_after(self.lg, tags); self.L.append(f"s_waitcnt lgkmcnt({min(n,15)})")
    def stamp(self, name):
        if not self.opt.ts: return
        if self.opt.tsk and not (name.startswith("B") or name in ("start", "sync0", "kv_end", "published", "q_end", "out_done")): return
        if not self.opt.tsk and name.startswith("B"): return
        if self.opt.tsp and name in ("kernarg", "sync0", "kv_end", "published", "q_end", "phiq_end"): return
        if not self.opt.tsp and name.startswith("P"): return
        i = self.nstamp; self.nstamp += 1; self.names.append(name)
        assert i < 15
        self.L.append(f"s_memrealtime s[{64+2*i}:{65+2*i}]")
        self.L.append("s_waitcnt lgkmcnt(0)")
    def ldsaddr(self, vreg, byte, span=4096):
        cur = self.hi.get(vreg, 0)
        if not (cur <= byte and byte + span < cur + 0x10000):
            new = byte & ~0x7fff
            self.L.append(f"v_add_u32 v{vreg}, {(new - cur) & 0xffffffff:#x}, v{vreg}")
            self.hi[vreg] = cur = new
        return byte - cur
    def stream(self, mfmas, fixed, fillers, cap=2, vsp=1):
        lastv = -100
        for k, m in enumerate(mfmas):
            n0 = len(self.L)
            for fn in fixed.get(k, []): fn()
            while fillers and fillers[0][0] <= k and len(self.L) - n0 < cap:
                _, fn, last = fillers[0]
                isv = getattr(fn, "isv", False)
                if isv and k - lastv < vsp: break
                fillers.pop(0)
                fn()
                if isv: lastv = k
                if last: break
            self.L.append(m)
    def need(self, fillers, tag, count):
        while self.vm.count(tag) < count:
            _, fn, last = fillers.pop(0)
            fn()
            if last: self.L.append("s_nop 0")
            self.late = getattr(self, "late", 0) + 1
        self.wait_vm(tag)
    def flush(self, fillers):
        for _, fn, last in fillers:
            fn()
            if last: self.L.append("s_nop 0")
        del fillers[:]
    def text(self): return "\n".join(self.L) + "\n"

def vr(b, n=1): return f"v{b}" if n == 1 else f"v[{b}:{b+n-1}]"
def ar(b, n=1): return f"a{b}" if n == 1 else f"a[{b}:{b+n-1}]"
def sr(b, n=1): return f"s{b}" if n == 1 else f"s[{b}:{b+n-1}]"

S_SX, S_SW = 4, 12
S_W2K, S_W1K = 22, 23
S_X, S_W, S_WO, S_OUT, S_WS = 24, 28, 32, 36, 40
S_BR, S_RB, S_CG, S_WV = 44, 45, 46, 47
S_T0, S_T1, S_T2, S_T3 = 48, 49, 50, 51
S_16K = 52; S_TAG = 53; S_RB64, S_CB = 54, 55
S_LOG2E, S_C1, S_EPS = 56, 58, 60
S_CNT = 62; S_SOFF = 63
S_EX = 96; S_CNTA = 98; S_ROT = 99; S_W4K = 100; S_SO2 = 101
S_4K, S_8K, S_12K = 3, 20, 21
V_LANE, V_G, V_I = 1, 2, 3
V_BKV = 4
V_BQ = 12
V_BO = 16
V_XR = 24
V_WQ = 26
V_WO = 28
VEP = 30
VO = 31
TM = 32
A0, A1 = 44, 45
VPK, VPZ, VTAG, VMSK = 46, 47, 48, 49
ACC, VF, VFA = 50, 51, 56
ZL = 52
VPFQ, VPFO, VPFD, VPFO2 = 42, 43, 41, 57
VOPA, VRA, VRD, VXA, VXV = 240, 241, 242, 243, 244
S_XW, S_LOC = 94, 95
V_XD = 56
V_WD = 60
V_ACCKV = 64; V_ACCQ = 128; V_RING = 160; NRING = 16; V_E = 224
T = 32
def acckv(rt, ct): return V_ACCKV + (rt * 8 + ct) * 4
def accq(rt, h): return V_ACCQ + (rt * 4 + h) * 4
def xa(j, rt): return (j * 2 + rt) * 4

SLOT = 32768
def slot_of(t): return (t % 5) * SLOT
def lds_q(tq): return 3 * SLOT + tq * 8192
L_RED = 0; L_REDZ = 16 << 10; L_SHR = 20 << 10
def lds_wo(u):
    if u < 8: return SLOT + u * 8192
    if u < 11: return 3 * SLOT + (u - 8) * 8192
    if u < 13: return (u - 11) * 8192
    if u == 13: return 24576
    return 3 * SLOT + (u - 11) * 8192
LDS_BYTES = 160 << 10

def prologue(g):
    o = g.opt
    g("s_cmp_ge_u32 s2, 256")
    g("s_cbranch_scc1 L_end")
    g.stamp("start")
    g("s_load_dwordx16 s[4:19], s[0:1], 0")
    g("s_load_dwordx2 s[20:21], s[0:1], 64")
    if o.ipf:
        g("s_getpc_b64 s[22:23]")
        g("L_pc:")
        g(f"s_lshr_b32 s{S_T0}, s2, 3")
        g(f"s_lshl_b32 s{S_T0}, s{S_T0}, 2")
        g(f"v_lshrrev_b32 v{T+1}, 6, v0")
        g(f"v_add_u32 v{T+1}, s{S_T0}, v{T+1}")
        g(f"v_mul_u32_u24 v{T+1}, {o.ipf*128}, v{T+1}")
        g(f"v_and_b32 v{T+2}, 63, v0")
        g(f"v_lshl_add_u32 v{T+1}, v{T+2}, 7, v{T+1}")
        g(f"v_min_u32 v{T+1}, L_code_end-L_pc-4, v{T+1}")
        g(f"s_mov_b64 exec, {(1 << o.ipf) - 1}")
        g.vmem(f"global_load_dword v{VO}, v{T+1}, s[22:23]", "ipf")
        g("s_mov_b64 exec, -1")
    g(f"v_lshrrev_b32 v{T}, 6, v0")
    g(f"v_and_b32 v{V_LANE}, 63, v0")
    g(f"v_readfirstlane_b32 s{S_WV}, v{T}")
    g(f"s_and_b32 s{S_BR}, s2, 1")
    g(f"s_lshr_b32 s{S_T0}, s2, 3")
    g(f"s_and_b32 s{S_T1}, s{S_T0}, 7")
    g(f"s_lshr_b32 s{S_CB}, s{S_T0}, 3")
    if o.map == "A":
        g(f"s_bfe_u32 s{S_T2}, s2, 0x10001")
        g(f"s_bfe_u32 s{S_T3}, s2, 0x10002")
        g(f"s_lshl_b32 s{S_RB}, s{S_T2}, 3")
        g(f"s_add_u32 s{S_RB}, s{S_RB}, s{S_T1}")
        g(f"s_lshl_b32 s{S_CG}, s{S_T3}, 2")
        g(f"s_add_u32 s{S_CG}, s{S_CG}, s{S_CB}")
        g(f"s_lshl_b32 s{S_RB64}, s{S_T2}, 4")
        g(f"s_lshl_b32 s{S_T3}, s{S_T3}, 3")
        g(f"s_add_u32 s{S_RB64}, s{S_RB64}, s{S_T3}")
        g(f"s_add_u32 s{S_RB64}, s{S_RB64}, s{S_T1}")
    else:
        g(f"s_bfe_u32 s{S_T2}, s2, 0x20001")
        g(f"s_lshl_b32 s{S_RB}, s{S_T2}, 2")
        g(f"s_add_u32 s{S_RB}, s{S_RB}, s{S_CB}")
        g(f"s_mov_b32 s{S_CG}, s{S_T1}")
        g(f"s_lshl_b32 s{S_RB64}, s{S_T2}, 3")
        g(f"s_add_u32 s{S_RB64}, s{S_RB64}, s{S_T1}")
    g(f"s_mul_i32 s{S_T1}, s{S_T1}, {o.rota}")
    g(f"s_mul_i32 s{S_T2}, s{S_CB}, {o.rotb}")
    g(f"s_add_u32 s{S_ROT}, s{S_T1}, s{S_T2}")
    g(f"s_and_b32 s{S_ROT}, s{S_ROT}, 7")
    g(f"v_lshrrev_b32 v{V_G}, 4, v{V_LANE}")
    g(f"v_and_b32 v{V_I}, 15, v0")
    g(f"s_lshl_b32 s{S_W4K}, s{S_WV}, 12")
    g(f"v_lshrrev_b32 v{T}, 3, v{V_LANE}")
    g(f"v_lshlrev_b32 v{T}, 10, v{T}")
    g(f"v_and_b32 v{T+1}, 7, v{V_LANE}")
    g(f"v_xor_b32 v{T+1}, v{T+1}, v{V_G}")
    g(f"s_lshl_b32 s{S_T0}, s{S_RB}, 17")
    g(f"s_lshl_b32 s{S_T1}, s{S_WV}, 15")
    g(f"s_add_u32 s{S_T0}, s{S_T0}, s{S_T1}")
    g(f"v_lshl_add_u32 v{V_XD}, v{T+1}, 4, v{T}")
    g(f"v_add_u32 v{V_XD}, s{S_T0}, v{V_XD}")
    g(f"v_xor_b32 v{V_XD+1}, 64, v{V_XD}")
    g(f"v_add_u32 v{V_XD+1}, {7168}, v{V_XD+1}")
    g(f"v_add_u32 v{V_XD+2}, {2*7168}, v{V_XD}")
    g(f"v_add_u32 v{V_XD+3}, {2*7168}, v{V_XD+1}")
    g(f"v_lshrrev_b32 v{T+1}, 1, v{V_I}")
    g(f"v_xor_b32 v{T+1}, v{V_G}, v{T+1}")
    g(f"v_lshrrev_b32 v{T+2}, 2, v{T+1}")
    g(f"v_lshlrev_b32 v{T+2}, 10, v{T+2}")
    g(f"v_and_b32 v{T+3}, 3, v{T+1}")
    g(f"v_lshl_add_u32 v{T+2}, v{T+3}, 5, v{T+2}")
    g(f"v_and_b32 v{T+3}, 1, v{V_I}")
    g(f"v_lshl_add_u32 v{T+2}, v{T+3}, 4, v{T+2}")
    g(f"v_xor_b32 v{T+5}, 1024, v{T+2}")
    g(f"s_lshl_b32 s{S_T2}, s{S_WV}, 4")
    g(f"v_add_u32 v{T+4}, s{S_T2}, v{V_G}")
    g(f"v_mul_u32_u24 v{T+4}, 3072, v{T+4}")
    g(f"s_lshl_b32 s{S_T2}, s{S_CG}, 7")
    g(f"s_add_u32 s{S_T3}, s{S_T2}, 1024")
    g(f"v_add3_u32 v{V_WD}, v{T+4}, v{T+2}, s{S_T3}")
    g(f"v_add_u32 v{V_WD+1}, {12288-1024}, v{V_WD}")
    g(f"s_add_u32 s{S_T3}, s{S_T3}, {2*(12288-1024)}")
    g(f"v_add3_u32 v{V_WD+2}, v{T+4}, v{T+5}, s{S_T3}")
    g(f"v_add_u32 v{V_WD+3}, {12288-1024}, v{V_WD+2}")
    g(f"s_lshl_b32 s{S_T0}, s{S_ROT}, 7")
    g(f"s_mul_i32 s{S_T1}, s{S_ROT}, 196608")
    g(f"s_mov_b32 m0, s{S_W4K}")
    g("s_waitcnt lgkmcnt(0)")
    g.stamp("kernarg")
    g(f"s_cmp_eq_u32 s{S_BR}, 0")
    g(f"s_cselect_b32 s{S_X}, s4, s10")
    g(f"s_cselect_b32 s{S_X+1}, s5, s11")
    g(f"s_mov_b32 s{S_X+2}, {2048*512*2}")
    g(f"s_mov_b32 s{S_X+3}, 0x20000")
    g(f"s_cselect_b32 s{S_W}, s6, s12")
    g(f"s_cselect_b32 s{S_W+1}, s7, s13")
    g(f"s_mov_b32 s{S_W+2}, {512*1536*2}")
    g(f"s_mov_b32 s{S_W+3}, 0x20000")
    for m in range(4):
        g.vmem(f"buffer_load_dwordx4 v{V_XD+m}, {sr(S_X,4)}, s{S_T0} offen offset:{m*1024} {o.xflag} lds", ("st", 0))
    g(f"s_add_u32 m0, s{S_W4K}, 16384")
    g(f"s_cselect_b32 s{S_WO}, s8, s14") if False else None
    g("s_nop 0")
    for i in range(4):
        g.vmem(f"buffer_load_dwordx4 v{V_WD+i}, {sr(S_W,4)}, s{S_T1} offen offset:{i*1024} {o.wflag} lds", ("st", 0))
    g(f"s_cmp_eq_u32 s{S_BR}, 0")
    g(f"s_cselect_b32 s{S_WO}, s8, s14")
    g(f"s_cselect_b32 s{S_WO+1}, s9, s15")
    g(f"s_mov_b32 s{S_WO+2}, {512*512*2}")
    g(f"s_mov_b32 s{S_WO+3}, 0x20000")
    g(f"s_mov_b32 s{S_OUT}, s16")
    g(f"s_mov_b32 s{S_OUT+1}, s17")
    g(f"s_mov_b32 s{S_OUT+2}, {2048*1024*2}")
    g(f"s_mov_b32 s{S_OUT+3}, 0x20000")
    g(f"s_mov_b32 s{S_WS}, s20")
    g(f"s_mov_b32 s{S_WS+1}, s21")
    g(f"s_mov_b32 s{S_WS+2}, {WS_SIZE}")
    g(f"s_mov_b32 s{S_WS+3}, 0x20000")
    for t in range(8):
        g(f"s_add_u32 s{S_T0}, s{S_ROT}, {t}")
        g(f"s_and_b32 s{S_T0}, s{S_T0}, 7")
        g(f"s_lshl_b32 s{S_SX+t}, s{S_T0}, 7")
        g(f"s_mul_i32 s{S_SW+t}, s{S_T0}, 196608")

def prologue2(g):
    g(f"s_mov_b32 s{S_16K}, 16384")
    g(f"s_mov_b32 s{S_4K}, 4096")
    g(f"s_mov_b32 s{S_8K}, 8192")
    g(f"s_mov_b32 s{S_12K}, 12288")
    g(f"s_lshl_b32 s{S_W2K}, s{S_WV}, 11")
    g(f"s_lshl_b32 s{S_W1K}, s{S_WV}, 10")
    for r, val in ((S_LOG2E, LOG2E), (S_C1, ONE_EPS), (S_EPS, EPS)):
        g(f"s_mov_b32 s{r}, {val:#x}")
        g(f"s_mov_b32 s{r+1}, {val:#x}")
    g(f"v_lshrrev_b32 v{T}, 1, v{V_I}")
    g(f"v_xor_b32 v{T}, v{T}, v{V_G}")
    g(f"v_lshlrev_b32 v{T+1}, 7, v{V_I}")
    g(f"v_lshl_add_u32 v{T}, v{T}, 4, v{T+1}")
    g(f"v_add_u32 v{V_XR}, s{S_W4K}, v{T}")
    g(f"v_xor_b32 v{V_XR+1}, 64, v{V_XR}")
    g(f"v_lshrrev_b32 v{T}, 2, v{V_I}")
    g(f"v_and_b32 v{T+1}, 3, v{V_I}")
    g(f"v_and_b32 v{T+2}, 1, v{V_G}")
    g(f"v_lshl_add_u32 v{T+2}, v{T+2}, 2, v{T}")
    g(f"v_lshl_add_u32 v{T+3}, v{V_G}, 3, v{T}")
    g(f"v_lshlrev_b32 v{T+4}, 8, v{T+3}")
    g(f"v_lshl_add_u32 v{T+4}, v{T+1}, 3, v{T+4}")
    for ct in range(8):
        g(f"v_xor_b32 v{T+5}, {ct}, v{T+2}")
        g(f"v_lshl_add_u32 v{V_BKV+ct}, v{T+5}, 5, v{T+4}")
    g(f"v_lshlrev_b32 v{T+4}, 7, v{T+3}")
    g(f"v_lshl_add_u32 v{T+4}, v{T+1}, 3, v{T+4}")
    g(f"v_lshrrev_b32 v{T+5}, 1, v{T}")
    g(f"v_and_b32 v{T+6}, 1, v{V_G}")
    g(f"v_lshl_add_u32 v{T+5}, v{T+6}, 1, v{T+5}")
    g(f"v_add_u32 v{T+4}, {3*SLOT}, v{T+4}")
    for ct in range(4):
        g(f"v_xor_b32 v{T+6}, {ct}, v{T+5}")
        g(f"v_lshl_add_u32 v{V_BQ+ct}, v{T+6}, 5, v{T+4}")
        g.hi[V_BQ + ct] = 3 * SLOT
    g(f"v_lshl_add_u32 v{T+3}, v{V_G}, 2, v{T}")
    g(f"v_lshlrev_b32 v{T+4}, 8, v{T+3}")
    g(f"v_lshl_add_u32 v{T+4}, v{T+1}, 3, v{T+4}")
    g(f"v_add_u32 v{T+4}, {SLOT}, v{T+4}")
    for ct in range(8):
        g(f"v_xor_b32 v{T+5}, {ct}, v{T+2}")
        g(f"v_lshl_add_u32 v{V_BO+ct}, v{T+5}, 5, v{T+4}")
        g.hi[V_BO + ct] = SLOT
    g(f"v_lshrrev_b32 v{T}, 3, v{V_I}")
    g(f"v_lshl_add_u32 v{T}, v{V_G}, 1, v{T}")
    g(f"s_lshl_b32 s{S_T3}, s{S_WV}, 4")
    g(f"v_add_u32 v{T}, s{S_T3}, v{T}")
    g(f"v_mul_u32_u24 v{T}, 3072, v{T}")
    g(f"v_bfe_u32 v{T+1}, v{V_I}, 1, 2")
    g(f"v_and_b32 v{T+2}, 1, v{V_G}")
    g(f"v_xor_b32 v{T+1}, v{T+1}, v{T+2}")
    g(f"v_lshlrev_b32 v{T+1}, 5, v{T+1}")
    g(f"v_and_b32 v{T+3}, 1, v{V_I}")
    g(f"v_lshl_add_u32 v{T+1}, v{T+3}, 4, v{T+1}")
    g(f"v_xor_b32 v{T+2}, 64, v{T+1}")
    g(f"s_lshl_b32 s{S_T2}, s{S_CG}, 7")
    g(f"v_add3_u32 v{V_WQ}, v{T}, v{T+1}, s{S_T2}")
    g(f"s_add_u32 s{S_T2}, s{S_T2}, {8*3072-1024}")
    g(f"v_add3_u32 v{V_WQ+1}, v{T}, v{T+2}, s{S_T2}")
    g(f"s_lshl_b32 s{S_T0}, s{S_WV}, 3")
    g(f"v_add_u32 v{T}, s{S_T0}, v{V_G}")
    g(f"v_lshlrev_b32 v{T}, 10, v{T}")
    g(f"v_lshrrev_b32 v{T+1}, 1, v{V_I}")
    g(f"v_xor_b32 v{T+1}, v{T+1}, v{V_G}")
    g(f"v_lshlrev_b32 v{T+1}, 5, v{T+1}")
    g(f"v_lshl_add_u32 v{T+1}, v{T+3}, 4, v{T+1}")
    g(f"v_xor_b32 v{T+2}, 128, v{T+1}")
    g(f"s_lshl_b32 s{S_T0}, s{S_CB}, 8")
    g(f"v_add3_u32 v{V_WO}, v{T}, v{T+1}, s{S_T0}")
    g(f"s_add_u32 s{S_T0}, s{S_T0}, {4096-1024}")
    g(f"v_add3_u32 v{V_WO+1}, v{T}, v{T+2}, s{S_T0}")
    g(f"s_lshr_b32 s{S_T0}, s2, 3")
    g(f"s_lshl_b32 s{S_T0}, s{S_T0}, 2")
    g(f"s_add_u32 s{S_T0}, s{S_T0}, s{S_WV}")
    g(f"s_lshl_b32 s{S_T0}, s{S_T0}, 2")
    g(f"v_add_u32 v{T}, s{S_T0}, v{V_G}")
    g(f"v_lshlrev_b32 v{T+1}, 6, v{V_I}")
    g(f"v_lshl_add_u32 v{VPFO}, v{T}, 10, v{T+1}")
    g(f"v_mul_u32_u24 v{T}, 3072, v{T}")
    g(f"v_add_u32 v{VPFQ}, v{T}, v{T+1}")
    g(f"s_lshl_b32 s{S_T0}, s{S_BR}, 21")
    g(f"s_lshl_b32 s{S_T1}, s{S_RB}, 17")
    g(f"s_add_u32 s{S_T0}, s{S_T0}, s{S_T1}")
    g(f"s_lshl_b32 s{S_T1}, s{S_WV}, 15")
    g(f"s_add_u32 s{S_T0}, s{S_T0}, s{S_T1}")
    g(f"s_lshl_b32 s{S_T1}, s{S_CG}, 11")
    g(f"s_add_u32 s{S_T0}, s{S_T0}, s{S_T1}")
    g(f"v_lshl_add_u32 v{VOPA}, v{V_LANE}, 4, s{S_T0}")
    g(f"s_lshl_b32 s{S_T0}, s{S_BR}, 7")
    g(f"s_lshl_b32 s{S_T1}, s{S_RB}, 3")
    g(f"s_add_u32 s{S_T0}, s{S_T0}, s{S_T1}")
    g(f"s_lshl_b32 s{S_T1}, s{S_WV}, 1")
    g(f"s_add_u32 s{S_T0}, s{S_T0}, s{S_T1}")
    g(f"s_lshl_b32 s{S_T0}, s{S_T0}, 3")
    g(f"s_add_u32 s{S_T0}, s{S_T0}, s{S_CG}")
    g(f"s_lshl_b32 s{S_T0}, s{S_T0}, 8")
    g(f"s_add_u32 s{S_T0}, s{S_T0}, {WS_CK}")
    g(f"v_lshl_add_u32 v{VRA}, v{V_LANE}, 2, s{S_T0}")
    g(f"s_lshl_b32 s{S_T0}, s{S_BR}, 5")
    g(f"s_add_u32 s{S_T1}, s{S_T0}, s{S_RB64}")
    g(f"s_lshl_b32 s{S_T1}, s{S_T1}, 2")
    g(f"s_add_u32 s{S_T1}, s{S_T1}, s{S_CB}")
    g(f"s_lshl_b32 s{S_T1}, s{S_T1}, 5")
    g(f"s_add_u32 s{S_T1}, s{S_T1}, s{S_WV}")
    g(f"s_lshl_b32 s{S_T1}, s{S_T1}, 2")
    g(f"s_add_u32 s{S_XW}, s{S_T1}, {WS_XT}")
    g(f"s_lshl_b32 s{S_T1}, s{S_RB}, 1")
    g(f"s_add_u32 s{S_T0}, s{S_T0}, s{S_T1}")
    g(f"s_lshr_b32 s{S_T1}, s{S_WV}, 1")
    g(f"s_add_u32 s{S_T0}, s{S_T0}, s{S_T1}")
    g(f"s_lshl_b32 s{S_T0}, s{S_T0}, 9")
    g(f"s_add_u32 s{S_T0}, s{S_T0}, {WS_XT}")
    g(f"v_lshl_add_u32 v{VXA}, v{V_G}, 7, s{S_T0}")
    g(f"s_getreg_b32 s{S_LOC}, hwreg(HW_REG_XCC_ID)")
    g(f"s_and_b32 s{S_LOC}, s{S_LOC}, 15")
    g(f"s_lshl_b32 s{S_T0}, s{S_BR}, 7")
    g(f"s_add_u32 s{S_T0}, s{S_T0}, {WS_EP}")
    g(f"v_mov_b32 v{VF}, 0")
    g.vmem(f"buffer_load_dword v{VEP}, v{VF}, {sr(S_WS,4)}, s{S_T0} offen sc1", "ep")

def V(fn):
    fn.isv = True
    return fn

def stage_fill(g, t, e):
    o = g.opt; sl = slot_of(t); F = []
    F.append((e, lambda: g(f"s_add_u32 m0, s{S_W4K}, {sl}"), True))
    for m in range(4):
        F.append((e, V(lambda m=m: g.vmem(f"buffer_load_dwordx4 v{V_XD+m}, {sr(S_X,4)}, s{S_SX+t} offen offset:{m*1024} {o.xflag} lds", ("st", t))), False))
    F.append((e, lambda: g(f"s_add_u32 m0, s{S_W4K}, {sl+16384}"), True))
    for i in range(4):
        F.append((e, V(lambda i=i: g.vmem(f"buffer_load_dwordx4 v{V_WD+i}, {sr(S_W,4)}, s{S_SW+t} offen offset:{i*1024} {o.wflag} lds", ("st", t))), False))
    return F

def sent_fill(g, e):
    F = []
    for rt in range(2):
        for uu in range(2):
            so = "0" if rt == 0 else f"s{S_16K}"
            F.append((e, V(lambda so=so, uu=uu: g.vmem(f"buffer_store_dwordx4 {vr(VSEN,4)}, v{VOPA}, {sr(S_WS,4)}, {so} offen offset:{uu*1024} sc1", "sent")), False))
    return F

def wq_fill(g, tq, e):
    F = [(e, lambda: g(f"s_add_u32 m0, s{S_W2K}, {lds_q(tq)}"), True)]
    for i in range(2):
        F.append((e, V(lambda i=i: g.vmem(f"buffer_load_dwordx4 v{V_WQ+i}, {sr(S_W,4)}, s{S_SW+tq} offen offset:{i*1024} {g.opt.qflag} lds", ("wq", tq))), False))
    return F

def wo_fill(g, u, e):
    F = [(e, lambda: g(f"s_mov_b32 s{S_SOFF}, {u*32768}"), False),
         (e, lambda: g(f"s_add_u32 m0, s{S_W2K}, {lds_wo(u)}"), True)]
    for i in range(2):
        F.append((e, V(lambda i=i: g.vmem(f"buffer_load_dwordx4 v{V_WO+i}, {sr(S_WO,4)}, s{S_SOFF} offen offset:{i*1024} {g.opt.oflag} lds", ("wo", u))), False))
    return F

def phi2(g, src, tmp, dst):
    u, a = tmp, tmp + 2
    g(f"v_pk_mul_f32 {vr(u,2)}, {vr(src,2)}, {sr(S_LOG2E,2)}")
    g(f"v_pk_add_f32 {vr(a,2)}, {vr(src,2)}, {sr(S_C1,2)}")
    g(f"v_exp_f32 v{u}, v{u} clamp")
    g(f"v_exp_f32 v{u+1}, v{u+1} clamp")
    return [f"v_pk_add_f32 {vr(u,2)}, {vr(u,2)}, {sr(S_EPS,2)}",
            f"v_max_f32 v{a}, v{a}, v{u}",
            f"v_max_f32 v{a+1}, v{a+1}, v{u+1}",
            f"v_cvt_pk_bf16_f32 v{dst}, v{a}, v{a+1}"]

def phi_block(g, pairs, tmpbase, ntmp=3, hook=None):
    pend = None
    for n, (src, dst) in enumerate(pairs):
        tail = phi2(g, src, tmpbase + (n % ntmp) * 4, dst)
        if pend:
            for s in pend: g(s)
        pend = tail
        if hook: hook(n)
    g("s_nop 0")
    for s in pend: g(s)

SOK = ["0", f"s{S_4K}", f"s{S_8K}", f"s{S_12K}"]
def partial_fill(g, e):
    F = [(e, V(lambda: g.vmem(f"buffer_load_dwordx4 {vr(ZL,4)}, v{VPZ}, {sr(S_WS,4)}, 0 offen sc1", "pl")), False)]
    F.append((e, V(lambda: g.vmem(f"buffer_load_dword v{VRD}, v{VXA}, {sr(S_WS,4)}, 0 offen sc1", "pl")), False))
    for p in range(16):
        F.append((e, V(lambda p=p: g.vmem(f"buffer_load_dwordx4 {vr(V_ACCKV+p*4,4)}, v{VPK}, {sr(S_WS,4)}, {SOK[p//4]} offen offset:{(p%4)*1024} sc1", "pl")), g.opt.plsolo))
    return F

def gen(opt):
    g = G(opt)
    g(f"; @launch grid=(256,1,1) block=(256,1,1) lds={LDS_BYTES}")
    g('.amdgcn_target "amdgcn-amd-amdhsa--gfx950"')
    g(".text")
    g(f".globl {NAME}\n.p2align 8\n.type {NAME},@function\n{NAME}:")
    prologue(g)
    D = opt.depth
    for t in range(1, D):
        g.flush(stage_fill(g, t, 0))
        if t == 1: prologue2(g)
    if D == 1: prologue2(g)
    P = opt.pf
    NF = 128
    def xr_fn(t, jj, rt):
        def f():
            off = g.ldsaddr(V_XR + jj, slot_of(t) + rt * 2048, 0)
            g.lds(f"ds_read_b128 {ar(xa(2*t+jj, rt),4)}, v{V_XR+jj} offset:{off}", ("xf", t, jj, rt))
        return f
    def kv_fn(n, half):
        j, ct = divmod(n, 8)
        r = V_RING + (n % NRING) * 4 + half * 2
        def f():
            off = g.ldsaddr(V_BKV + ct, slot_of(j // 2) + 16384 + (j % 2) * 8192, 1024)
            g.lds(f"ds_read_b64_tr_b16 {vr(r,2)}, v{V_BKV+ct} offset:{off+half*1024}", ("bkv", n))
        return f
    mf = []
    for n in range(NF):
        j, ct = divmod(n, 8)
        r = V_RING + (n % NRING) * 4
        for rt in range(2):
            c = "0" if j == 0 else vr(acckv(rt, ct), 4)
            mf.append(f"v_mfma_f32_16x16x32_bf16 {vr(acckv(rt,ct),4)}, {ar(xa(j,rt),4)}, {vr(r,4)}, {c}")
    fixed = {}; fill = []
    def fx(k, fn): fixed.setdefault(k, []).append(fn)
    nxt = D; wqn = 0
    for _ in range(opt.init):
        fill += stage_fill(g, nxt, 0); nxt += 1
    for n in range(NF):
        m = n + P
        if m < NF:
            if m % 16 == 0:
                t = m // 16
                fx(2 * n, lambda t=t: g.need(fill, ("st", t), 8))
                fx(2 * n, lambda: g("s_barrier"))
                fx(2 * n, lambda t=t: g.stamp(f"B{t}"))
                for q, (jj, rt) in enumerate([(0, 0), (0, 1), (1, 0), (1, 1)]):
                    fx(2 * n + 1 + 2 * q + (0 if q < 2 else 6), xr_fn(t, jj, rt))
                while nxt < 8 and (nxt < 5 or nxt - 5 <= t - 2) and nxt <= t + (D if t < opt.d2from else opt.d2) - 1:
                    fill += stage_fill(g, nxt, 2 * n + 1); nxt += 1
                if t == opt.pfq:
                    fill.append((2 * n + 1, V(lambda: g.vmem(f"buffer_load_dword v{VO}, v{VPFQ}, {sr(S_W,4)}, 0 offen", "pf")), False))
                if t == opt.pfo:
                    fill.append((2 * n + 1, V(lambda: g.vmem(f"buffer_load_dword v{VO}, v{VPFO}, {sr(S_WO,4)}, 0 offen", "pf")), False))
                if nxt == 8:
                    while wqn < 8 and (3 + wqn // 4) <= t - 2:
                        fill += wq_fill(g, wqn, max(2 * n + 1, opt.wq0 + wqn * opt.wqs)); wqn += 1
            fx(2 * n, kv_fn(m, 0)); fx(2 * n + 1, kv_fn(m, 1))
        if n % 2 == 1 and n + 1 < NF:
            def wfn(n=n):
                tags = [("bkv", min(n + 2, NF - 1))]
                j2 = (n + 2) // 8
                for jn in {(n + 1) // 8, min(n + 2, NF - 1) // 8}:
                    tags += [("xf", jn // 2, jn % 2, 0), ("xf", jn // 2, jn % 2, 1)]
                g.wait_lg(*tags)
            fx(2 * n + 1, wfn)
    g.wait_vm(("st", 0))
    g("s_barrier")
    g.stamp("sync0")
    for jj, rt in [(0, 0), (0, 1)]: xr_fn(0, jj, rt)()
    for n in range(2): kv_fn(n, 0)(); kv_fn(n, 1)()
    for jj, rt in [(1, 0), (1, 1)]: xr_fn(0, jj, rt)()
    for n in range(2, P): kv_fn(n, 0)(); kv_fn(n, 1)()
    g.wait_lg(("bkv", 1))
    g.stream(mf, fixed, fill, cap=opt.cap, vsp=opt.vsp)
    g.stamp("kv_end")
    PK = V_E; VV = V_RING
    assert wqn == 8 and nxt == 8
    if not opt.wqepi: g.flush(fill)
    if opt.pfo == 9: g(f"v_mov_b32 v{VPFO2}, v{VPFO}")
    if opt.pfo == 8:
        fill.append((0, V(lambda: g.vmem(f"buffer_load_dword v{VO}, v{VPFO2}, {sr(S_WO,4)}, 0 offen", "pf")), False))
        g(f"v_mov_b32 v{VPFO2}, v{VPFO}")
    g(f"s_add_u32 s{S_T0}, s{S_W4K}, {L_RED}")
    g(f"v_lshl_add_u32 v{A0}, v{V_LANE}, 4, s{S_T0}")
    g(f"s_lshl_b32 s{S_T0}, s{S_WV}, 8")
    g(f"s_add_u32 s{S_T0}, s{S_T0}, {L_REDZ}")
    g(f"v_lshl_add_u32 v{A1}, v{V_G}, 4, s{S_T0}")
    g(f"v_cmp_eq_u32 vcc, 0, v{V_I}")
    ONES = V_RING + 16
    for k in range(4): g(f"v_mov_b32 v{ONES+k}, 0x3f803f80")
    KVP = V_RING + 20; ZP = V_RING + 36
    pairs = [(acckv(rt, h) + 2 * p, PK + h * 4 + rt * 2 + p) for h in range(4) for rt in range(2) for p in range(2)]
    def cv(h):
        for rt in range(2):
            for p in range(2):
                s = acckv(rt, 4 + h) + 2 * p
                g(f"v_cvt_pk_bf16_f32 v{VV + h*4 + rt*2 + p}, v{s}, v{s+1}")
    def mfk(h):
        g(f"v_mfma_f32_16x16x32_bf16 {vr(KVP+h*4,4)}, {vr(PK+h*4,4)}, {vr(VV+h*4,4)}, 0")
        g(f"v_mfma_f32_16x16x32_bf16 {vr(ZP+h*4,4)}, {vr(PK+h*4,4)}, {vr(ONES,4)}, 0")
    def wr(h):
        g.lds(f"ds_write_b128 v{A0}, {vr(KVP+h*4,4)} offset:{h*1024}", "rw")
        g(f"s_and_saveexec_b64 {sr(S_EX,2)}, vcc")
        g.lds(f"ds_write_b128 v{A1}, {vr(ZP+h*4,4)} offset:{h*64}", "rw")
        g(f"s_mov_b64 exec, {sr(S_EX,2)}")
    def hook(n):
        for _ in range(opt.wqepi):
            if fill:
                _e, fn, last = fill.pop(0); fn()
                if last: break
        if n % 4 == 2: cv(n // 4)
        if n >= 5 and n % 4 == 1: mfk(n // 4 - 1)
        if n >= 7 and n % 4 == 3: wr(n // 4 - 1)
    phi_block(g, pairs, TM, hook=hook)
    g.flush(fill)
    g("s_nop 1")
    mfk(3)
    g(f"s_add_u32 s{S_T0}, s{S_W1K}, {L_RED}")
    g(f"v_lshl_add_u32 v{TM}, v{V_LANE}, 4, s{S_T0}")
    g(f"s_lshl_b32 s{S_T0}, s{S_WV}, 6")
    g(f"s_add_u32 s{S_T0}, s{S_T0}, {L_REDZ}")
    g(f"v_lshl_add_u32 v{TM+1}, v{V_G}, 4, s{S_T0}")
    g.wait_vm("ep")
    g(f"v_readfirstlane_b32 s{S_TAG}, v{VEP}")
    g(f"s_lshl_b32 s{S_T0}, s{S_BR}, 3")
    g(f"s_add_u32 s{S_T0}, s{S_T0}, s{S_CG}")
    wr(3)
    g(f"s_lshl_b32 s{S_T0}, s{S_T0}, 2")
    g(f"s_add_u32 s{S_T0}, s{S_T0}, s{S_WV}")
    g(f"s_add_u32 s{S_TAG}, s{S_TAG}, 0x9e3779b1")
    g(f"s_lshl_b32 s{S_T1}, s{S_T0}, 14")
    g(f"s_add_u32 s{S_T1}, s{S_T1}, {WS_PK}")
    g(f"s_lshl_b32 s{S_T2}, s{S_T0}, 10")
    g(f"s_add_u32 s{S_T2}, s{S_T2}, {WS_PZ}")
    g(f"v_lshl_add_u32 v{VPK}, v{V_LANE}, 4, s{S_T1}")
    g(f"v_lshlrev_b32 v{VPZ}, 6, v{V_I}")
    g(f"v_lshl_add_u32 v{VPZ}, v{V_G}, 4, v{VPZ}")
    g(f"v_add_u32 v{VPZ}, s{S_T2}, v{VPZ}")
    g(f"v_mov_b32 v{VTAG}, s{S_TAG}")
    g(f"v_mov_b32 v{VMSK}, 0xff")
    g(f"s_andn2_b32 s{S_T3}, s{S_TAG}, 15")
    g(f"s_or_b32 s{S_T3}, s{S_T3}, s{S_LOC}")
    g(f"v_mov_b32 v{VXV}, s{S_T3}")
    g(f"v_mov_b32 v{VF}, 0")
    g(f"s_lshl_b32 s{S_T1}, s{S_RB}, 10")
    g(f"s_lshl_b32 s{S_T3}, s{S_RB}, 6")
    g(f"s_add_u32 s{S_T2}, s{S_T2}, s{S_T3}")
    g(f"v_lshl_add_u32 v{A1}, v{V_G}, 4, s{S_T2}")
    SQ = opt.qsync
    g.need(fill, ("wq", SQ - 1), 2)
    g("s_waitcnt lgkmcnt(0)")
    g("s_barrier")
    R0 = V_RING
    for w2 in range(4):
        g.lds(f"ds_read_b128 {vr(R0+w2*4,4)}, v{TM} offset:{w2*4096}", ("rr", w2))
    for w2 in range(4):
        g.lds(f"ds_read_b128 {vr(R0+16+w2*4,4)}, v{TM+1} offset:{w2*256}", ("rz", w2))
    QR, NQR = V_RING + 32, 8
    PQ = 6
    NQ = 64
    def q_fn(n, half):
        j, h = divmod(n, 4)
        r = QR + (n % NQR) * 4 + half * 2
        def f():
            off = g.ldsaddr(V_BQ + h, lds_q(j // 2) + (j % 2) * 4096, 512)
            g.lds(f"ds_read_b64_tr_b16 {vr(r,2)}, v{V_BQ+h} offset:{off+half*512}", ("bq", n))
        return f
    for n in range(3): q_fn(n, 0)(); q_fn(n, 1)()
    g.wait_lg(("rr", 1))
    g(f"v_pk_add_f32 {vr(R0,2)}, {vr(R0,2)}, {vr(R0+4,2)}")
    g(f"v_pk_add_f32 {vr(R0+2,2)}, {vr(R0+2,2)}, {vr(R0+6,2)}")
    g.wait_lg(("rr", 3))
    g(f"v_pk_add_f32 {vr(R0+8,2)}, {vr(R0+8,2)}, {vr(R0+12,2)}")
    g(f"v_pk_add_f32 {vr(R0+10,2)}, {vr(R0+10,2)}, {vr(R0+14,2)}")
    g(f"v_pk_add_f32 {vr(R0,2)}, {vr(R0,2)}, {vr(R0+8,2)}")
    g(f"v_pk_add_f32 {vr(R0+2,2)}, {vr(R0+2,2)}, {vr(R0+10,2)}")
    for k in range(4): g(f"v_bfi_b32 v{R0+k}, v{VMSK}, v{VTAG}, v{R0+k}")
    g.vmem(f"buffer_store_dwordx4 {vr(R0,4)}, v{VPK}, {sr(S_WS,4)}, s{S_T1} offen sc1", "pk_st")
    Z0 = R0 + 16
    g.wait_lg(("rz", 3))
    g(f"v_pk_add_f32 {vr(Z0,2)}, {vr(Z0,2)}, {vr(Z0+4,2)}")
    g(f"v_pk_add_f32 {vr(Z0+2,2)}, {vr(Z0+2,2)}, {vr(Z0+6,2)}")
    g(f"v_pk_add_f32 {vr(Z0+8,2)}, {vr(Z0+8,2)}, {vr(Z0+12,2)}")
    g(f"v_pk_add_f32 {vr(Z0+10,2)}, {vr(Z0+10,2)}, {vr(Z0+14,2)}")
    g(f"v_pk_add_f32 {vr(Z0,2)}, {vr(Z0,2)}, {vr(Z0+8,2)}")
    g(f"v_pk_add_f32 {vr(Z0+2,2)}, {vr(Z0+2,2)}, {vr(Z0+10,2)}")
    for k in range(4): g(f"v_bfi_b32 v{Z0+k}, v{VMSK}, v{VTAG}, v{Z0+k}")
    g(f"s_and_saveexec_b64 {sr(S_EX,2)}, vcc")
    g.vmem(f"buffer_store_dwordx4 {vr(Z0,4)}, v{A1}, {sr(S_WS,4)}, 0 offen sc1", "pz_st")
    g(f"s_mov_b64 exec, 1")
    g.vmem(f"buffer_store_dword v{VXV}, v{VF}, {sr(S_WS,4)}, s{S_XW} offen sc1", "xt_st")
    g(f"s_mov_b64 exec, {sr(S_EX,2)}")
    if opt.pfo == 9:
        g.vmem(f"buffer_load_dword v{VO}, v{VPFO2}, {sr(S_WO,4)}, 0 offen", "pf")
    g.stamp("published")
    for n in range(3, PQ): q_fn(n, 0)(); q_fn(n, 1)()
    mf = []; fixed = {}; fill = []
    for n in range(NQ):
        j, h = divmod(n, 4)
        r = QR + (n % NQR) * 4
        for rt in range(2):
            c = "0" if j == 0 else vr(accq(rt, h), 4)
            mf.append(f"v_mfma_f32_16x16x32_bf16 {vr(accq(rt,h),4)}, {vr(r,4)}, {ar(xa(j,rt),4)}, {c}")
        m = n + PQ
        if m < NQ:
            if m % (8 * SQ) == 0:
                fx(2 * n, lambda m=m: g.need(fill, ("wq", min(m // 8 + SQ - 1, 7)), 2))
                fx(2 * n, lambda: g("s_barrier"))
            fx(2 * n, q_fn(m, 0)); fx(2 * n + 1, q_fn(m, 1))
        if n % 2 == 1 and n + 1 < NQ:
            fx(2 * n + 1, lambda n=n: g.wait_lg(("bq", min(n + 2, NQ - 1))))
    for u in range(8): fill += wo_fill(g, u, opt.wo0)
    fill += partial_fill(g, opt.plstart)
    g.wait_lg(("bq", 1))
    g.stream(mf, fixed, fill, cap=opt.cap, vsp=opt.vspq)
    g.stamp("q_end")
    g.flush(fill)
    g("s_nop 7")
    PQB = V_E
    pairs = [(accq(rt, h) + 2 * p, PQB + (rt * 4 + h) * 2 + p) for rt in range(2) for h in range(4) for p in range(2)]
    phi_block(g, pairs, TM)
    g.stamp("phiq_end")
    B = V_ACCKV
    g(f"s_mov_b32 s{S_CNT}, 0")
    g("L_chkA:")
    g("s_waitcnt vmcnt(0)")
    g.vm = []
    if opt.chk == 4:
        regs = [ZL + 2, ZL + 3] + [B + k for k in range(64)]
    else:
        regs = [B + 4 * k + 3 for k in range(16)]
    g(f"v_xor_b32 v{ACC}, v{VTAG}, v{ZL}")
    g(f"v_xor_b32 v{VF}, v{VTAG}, v{ZL+(1 if opt.chk == 4 else 3)}")
    for n, rg in enumerate(regs):
        a = ACC if n % 2 == 0 else VF
        g(f"v_bitop3_b32 v{a}, v{a}, v{rg}, v{VTAG} bitop3:0xf6")
    g(f"v_or_b32 v{ACC}, v{ACC}, v{VF}")
    g(f"v_and_b32 v{ACC}, 0xff, v{ACC}")
    g(f"v_cmp_ne_u32 vcc, 0, v{ACC}")
    g(f"s_add_u32 s{S_CNT}, s{S_CNT}, 1")
    g("s_cbranch_vccz L_okA")
    g(f"s_cmp_gt_u32 s{S_CNT}, {opt.spin}")
    g("s_cbranch_scc1 L_okA")
    for _, f, _l in partial_fill(g, 0): f()
    g("s_branch L_chkA")
    g("L_okA:")
    g(f"s_mov_b32 s{S_CNTA}, s{S_CNT}")
    g.vm = []
    g.stamp("okA")
    mid = []
    for u in range(8, 14): mid += wo_fill(g, u, 0)
    va = []
    for sh in (8, 4, 2, 1):
        for k in range(4):
            va.append(f"v_add_f32_dpp v{ZL+k}, v{ZL+k}, v{ZL+k} row_ror:{sh} row_mask:0xf bank_mask:0xf")
    for st in (32, 16, 8, 4):
        for k in range(0, st, 2):
            va.append(f"v_pk_add_f32 {vr(B+k,2)}, {vr(B+k,2)}, {vr(B+k+st,2)}")
    for n_, l in enumerate(va):
        g(l)
        if mid and n_ % opt.midgap == 0: mid.pop(0)[1]()
    g(f"v_cvt_pk_bf16_f32 v{B+6}, v{ZL}, v{ZL+1}")
    g(f"v_cvt_pk_bf16_f32 v{B+7}, v{ZL+2}, v{ZL+3}")
    g(f"v_cvt_pk_bf16_f32 v{B+4}, v{B}, v{B+1}")
    g(f"v_cvt_pk_bf16_f32 v{B+5}, v{B+2}, v{B+3}")
    g(f"s_add_u32 s{S_T0}, s{S_W1K}, {L_SHR}")
    g(f"v_lshl_add_u32 v{A0}, v{V_LANE}, 4, s{S_T0}")
    g(f"v_lshlrev_b32 v{A1}, 4, v{V_LANE}")
    g.lds(f"ds_write_b128 v{A0}, {vr(B+4,4)}", "sw")
    EPSQ = B + 8
    for k in range(4): g(f"v_mov_b32 v{EPSQ+k}, {EPS:#x}")
    g(f"v_cmp_ne_u32 vcc, v{VRD}, v{VXV}")
    g("s_nop 1")
    g(f"s_cmp_eq_u64 vcc, 0")
    g(f"s_cselect_b32 s{S_LOC}, {opt.local}, 0")
    g("s_waitcnt lgkmcnt(0)")
    g("s_barrier")
    KZ = B + 16
    for h in range(4):
        g.lds(f"ds_read_b128 {vr(KZ+h*4,4)}, v{A1} offset:{L_SHR + h*1024}", ("sr", h))
    g.stamp("Pshr")
    for u in range(14, 16): mid += wo_fill(g, u, 0)
    if opt.midpre: g.flush(mid)
    NUM = V_ACCQ; DEN = V_RING
    for h in range(4):
        g.wait_lg(("sr", h))
        for rt in range(2):
            pq = PQB + (rt * 4 + h) * 2
            g(f"v_mfma_f32_16x16x16_bf16 {vr(DEN+(rt*4+h)*4,4)}, {vr(KZ+h*4+2,2)}, {vr(pq,2)}, {vr(EPSQ,4)}")
            g(f"v_mfma_f32_16x16x16_bf16 {vr(NUM+(rt*4+h)*4,4)}, {vr(KZ+h*4,2)}, {vr(pq,2)}, 0")
    OB = V_RING + 32
    order = [(rt, h) for h in range(4) for rt in range(2)]
    for (rt, h) in order[:4]:
        d = DEN + (rt * 4 + h) * 4
        g(f"v_rcp_f32 v{d}, v{d}")
    g("s_nop 3")
    for (rt, h) in order[4:]:
        d = DEN + (rt * 4 + h) * 4
        g(f"v_rcp_f32 v{d}, v{d}")
    sts = []
    for (rt, h) in order:
        d = DEN + (rt * 4 + h) * 4; nn = NUM + (rt * 4 + h) * 4; ob = OB + (rt * 4 + h) * 2
        g(f"v_pk_mul_f32 {vr(nn,2)}, {vr(nn,2)}, {vr(d,2)} op_sel_hi:[1,0]")
        g(f"v_pk_mul_f32 {vr(nn+2,2)}, {vr(nn+2,2)}, {vr(d,2)} op_sel_hi:[1,0]")
        g(f"v_cvt_pk_bf16_f32 v{ob}, v{nn}, v{nn+1}")
        g(f"v_cvt_pk_bf16_f32 v{ob+1}, v{nn+2}, v{nn+3}")
        if h % 2 == 1:
            so = "0" if rt == 0 else f"s{S_16K}"
            sts.append(f"buffer_store_dwordx4 {vr(OB+(rt*4+h-1)*2,4)}, v{VOPA}, {sr(S_WS,4)}, {so} offen offset:{(h//2)*1024}")
    for rt in range(2):
        b_ = OB + rt * 8; c_ = TM + rt
        g(f"v_add3_u32 v{c_}, v{b_}, v{b_+1}, v{VTAG}")
        g(f"v_add3_u32 v{c_}, v{b_+2}, v{b_+3}, v{c_}")
        g(f"v_add3_u32 v{c_}, v{b_+4}, v{b_+5}, v{c_}")
        g(f"v_add3_u32 v{c_}, v{b_+6}, v{b_+7}, v{c_}")
        sts.append(f"buffer_store_dword v{c_}, v{VRA}, {sr(S_WS,4)}, 0 offen offset:{rt*2048}")
    g(f"s_cmp_eq_u32 s{S_LOC}, 0")
    g("s_cbranch_scc1 L_st_remote")
    for l in sts: g.vmem(l + " " + opt.locflag, "o_st")
    g("L_st_done:")
    g.remote = sts
    g.stamp("o_stored")
    g.flush(mid)
    NPRE = opt.npre
    OF = 64; ACO = 224; WOV = 128
    def wofrag(u, ct):
        return ("a", (u * 8 + ct) * 4) if u < 8 else ("v", WOV + ((u - 8) * 8 + ct) * 4)
    def wo_fn(u, ct, dst, half):
        k, r = dst
        f_ = ar if k == "a" else vr
        def f():
            off = g.ldsaddr(V_BO + ct, lds_wo(u), 4096)
            g.lds(f"ds_read_b64_tr_b16 {f_(r+half*2,2)}, v{V_BO+ct} offset:{off+half*4096}", ("wo", u, ct))
        return f
    g(f"s_lshl_b32 s{S_T3}, s{S_BR}, 21")
    g(f"s_lshl_b32 s{S_T1}, s{S_RB64}, 16")
    g(f"s_add_u32 s{S_T3}, s{S_T3}, s{S_T1}")
    g(f"s_lshl_b32 s{S_T1}, s{S_WV}, 14")
    g(f"s_add_u32 s{S_T3}, s{S_T3}, s{S_T1}")
    g(f"v_add_u32 v{A0}, s{S_T3}, v{A1}")
    g(f"s_lshl_b32 s{S_T0}, s{S_RB64}, 17")
    g(f"s_lshl_b32 s{S_T1}, s{S_WV}, 15")
    g(f"s_add_u32 s{S_T0}, s{S_T0}, s{S_T1}")
    g(f"s_lshl_b32 s{S_T1}, s{S_BR}, 10")
    g(f"s_add_u32 s{S_T0}, s{S_T0}, s{S_T1}")
    g(f"s_lshl_b32 s{S_T1}, s{S_CB}, 8")
    g(f"s_add_u32 s{S_T0}, s{S_T0}, s{S_T1}")
    g(f"v_lshlrev_b32 v{VO}, 11, v{V_I}")
    g(f"v_and_b32 v{ACC}, 1, v{V_G}")
    g(f"v_lshl_add_u32 v{VO}, v{ACC}, 5, v{VO}")
    g(f"v_lshrrev_b32 v{ACC}, 1, v{V_G}")
    g(f"v_lshl_add_u32 v{VO}, v{ACC}, 4, v{VO}")
    g(f"v_add_u32 v{VO}, s{S_T0}, v{VO}")
    g(f"s_mov_b32 s{S_CNT}, 0")
    g(f"s_lshl_b32 s{S_T0}, s{S_BR}, 7")
    g(f"s_lshl_b32 s{S_T1}, s{S_RB64}, 2")
    g(f"s_add_u32 s{S_T0}, s{S_T0}, s{S_T1}")
    g(f"s_add_u32 s{S_T0}, s{S_T0}, s{S_WV}")
    g(f"s_lshl_b32 s{S_T0}, s{S_T0}, 11")
    g(f"s_add_u32 s{S_T0}, s{S_T0}, {WS_CK}")
    g(f"v_lshl_add_u32 v{A1}, v{V_LANE}, 2, s{S_T0}")
    CKR = TM + 2
    def of_txt(u, fl=None): return f"buffer_load_dwordx4 {vr(OF+u*4,4)}, v{A0}, {sr(S_WS,4)}, {SOK[u//4]} offen offset:{(u%4)*1024} {opt.ldflag if fl is None else fl}"
    def ck_txt(c, fl=None): return f"buffer_load_dword v{CKR+c}, v{A1}, {sr(S_WS,4)}, 0 offen offset:{c*256} {opt.ldflag if fl is None else fl}"
    lds_ = []
    for c in range(8):
        lds_.append(V(lambda c=c: g.vmem(of_txt(2*c), ("of", c))))
        lds_.append(V(lambda c=c: g.vmem(of_txt(2*c+1), ("of", c))))
        lds_.append(V(lambda c=c: g.vmem(ck_txt(c), ("of", c))))
    def chk_ops(c):
        b_ = OF + c * 8
        return [f"v_add3_u32 v{ACC}, v{b_}, v{b_+1}, v{VTAG}",
                f"v_add3_u32 v{ACC}, v{b_+2}, v{b_+3}, v{ACC}",
                f"v_add3_u32 v{ACC}, v{b_+4}, v{b_+5}, v{ACC}",
                f"v_add3_u32 v{ACC}, v{b_+6}, v{b_+7}, v{ACC}",
                f"v_cmp_ne_u32 vcc, v{ACC}, v{CKR+c}"]
    g.retry = (of_txt, ck_txt, chk_ops)
    NP = opt.npre * 8
    allf = [(u, ct) for u in range(16) for ct in range(8)]
    def pos(n): return ("a", n * 4) if n < 64 else (("v", WOV + (n - 64) * 4) if n < 88 else ("a", (n - 88) * 4))
    nof = 0
    for n in range(NP):
        u, ct = allf[n]
        wo_fn(u, ct, pos(n), 0)(); wo_fn(u, ct, pos(n), 1)()
        if n == 31: g.stamp(f"P{n+1}")
        if n + 1 >= opt.ofat and nof < opt.ofpre and (n + 1 - opt.ofat) % opt.ofgap == 0:
            if nof == 0: g.stamp("of_issue")
            lds_.pop(0)(); nof += 1
    if nof == 0: g.stamp("of_issue")
    while nof < opt.ofpre: lds_.pop(0)(); nof += 1
    g.wait_vm(("wo", 15))
    g("s_barrier")
    g.stamp("preread")
    mf = []; fixed = {}; fill = [(0, f, False) for f in lds_]
    for n, (u, ct) in enumerate(allf):
        k, r = pos(n)
        f_ = ar if k == "a" else vr
        c = "0" if u == 0 else vr(ACO + ct * 4, 4)
        mf.append(f"v_mfma_f32_16x16x32_bf16 {vr(ACO+ct*4,4)}, {f_(r,4)}, {vr(OF+u*4,4)}, {c}")
        if n in (1, 16, 32, 48, 64, 96): fx(n, lambda n=n: g.stamp(f"Pm{n}"))
        if n % 16 == 0:
            cc = n // 16
            ops = chk_ops(cc)
            g0 = max(n - 6, 0)
            fx(g0, lambda cc=cc: g.need(fill, ("of", cc), 3))
            for q, l in enumerate(ops):
                fx(max(n - 6 + q, 0), lambda l=l: g(l))
            fx(max(n - 1, 0), lambda cc=cc: (g(f"s_cbranch_vccnz L_rt{cc}"), g(f"L_back{cc}:")))
        if ct == 0 and n >= NP:
            fx(n, lambda u=u: g.wait_lg(("wo", u, 7)))
    reads = [(n, half) for n in range(NP, 128) for half in range(2)]
    gap = 0; cnt = 0
    def capg(gp):
        m16 = gp % 16
        if m16 == 10: return 0
        if m16 >= 10 or gp % 8 == 0: return 1
        return opt.rpg
    for idx, (n, half) in enumerate(reads):
        u, ct = allf[n]
        gmin = (n - 88 + 1) if n >= 88 else opt.rd0
        if gmin > gap: gap = gmin; cnt = 0
        while cnt >= capg(gap): gap += 1; cnt = 0
        assert gap < u * 8 - 4, (gap, n, u)
        fx(gap, wo_fn(u, ct, pos(n), half)); cnt += 1
    g.wait_lg(("wo",) + allf[NP - 1])
    g.stream(mf, fixed, fill, cap=opt.cap, vsp=opt.vsp2)
    assert not fill
    g.stamp("mfma2")
    g("s_nop 7")
    OP = 64
    for p in range(4):
        a0 = ACO + (2 * p) * 4; a1 = ACO + (2 * p + 1) * 4; o = OP + p * 4
        g(f"v_cvt_pk_bf16_f32 v{o}, v{a0}, v{a0+1}")
        g(f"v_cvt_pk_bf16_f32 v{o+1}, v{a0+2}, v{a0+3}")
        g(f"v_cvt_pk_bf16_f32 v{o+2}, v{a1}, v{a1+1}")
        g(f"v_cvt_pk_bf16_f32 v{o+3}, v{a1+2}, v{a1+3}")
        g("s_nop 1")
        g(f"v_permlane16_swap_b32 v{o}, v{o+2}")
        g(f"v_permlane16_swap_b32 v{o+1}, v{o+3}")
        g.vmem(f"buffer_store_dwordx4 {vr(o,4)}, v{VO}, {sr(S_OUT,4)}, 0 offen offset:{p*64} {opt.outflag}", "out")
    g("s_cmp_ge_u32 s2, 2")
    g("s_cbranch_scc1 L_noep")
    g(f"s_cmp_lg_u32 s{S_WV}, 0")
    g("s_cbranch_scc1 L_noep")
    g(f"s_lshl_b32 s{S_T0}, s{S_BR}, 7")
    g(f"s_add_u32 s{S_T0}, s{S_T0}, {WS_EP}")
    g(f"v_mov_b32 v{VF}, 0")
    g(f"v_cmp_eq_u32 vcc, 0, v{V_LANE}")
    g(f"s_and_saveexec_b64 {sr(S_EX,2)}, vcc")
    g(f"buffer_store_dword v{VTAG}, v{VF}, {sr(S_WS,4)}, s{S_T0} offen sc1")
    g(f"s_mov_b64 exec, {sr(S_EX,2)}")
    g("L_noep:")
    if opt.ts:
        g("s_waitcnt vmcnt(0)")
        g.stamp("out_done")
        g(f"s_lshl_b32 s{S_T0}, s2, 2")
        g(f"s_add_u32 s{S_T0}, s{S_T0}, s{S_WV}")
        g(f"s_lshl_b32 s{S_T0}, s{S_T0}, 7")
        g(f"s_add_u32 s{S_T0}, s{S_T0}, {WS_TS}")
        g(f"v_mov_b32 v{A1}, 0")
        g(f"v_cmp_eq_u32 vcc, 0, v{V_LANE}")
        g(f"s_and_saveexec_b64 {sr(S_EX,2)}, vcc")
        for i in range(16):
            if i < g.nstamp:
                g(f"v_mov_b32 v64, s{64+2*i}"); g(f"v_mov_b32 v65, s{65+2*i}")
            elif i == 15:
                g(f"s_lshl_b32 s{S_LOC}, s{S_LOC}, 8"); g(f"s_add_u32 s{S_CNTA}, s{S_CNTA}, s{S_LOC}"); g(f"v_mov_b32 v64, s{S_CNTA}"); g(f"v_mov_b32 v65, s{S_CNT}")
            else:
                g(f"v_mov_b32 v64, s64"); g(f"v_mov_b32 v65, s65")
            g(f"buffer_store_dwordx2 v[64:65], v{A1}, {sr(S_WS,4)}, s{S_T0} offen offset:{i*8}")
            g("s_nop 1")
    g("L_end:")
    g("s_endpgm")
    g("L_st_remote:")
    for l in g.remote: g(l + " sc1")
    g("s_branch L_st_done")
    of_txt, ck_txt, chk_ops = g.retry
    for c in range(8):
        g(f"L_rt{c}:")
        g(f"s_add_u32 s{S_CNT}, s{S_CNT}, 1")
        g(f"s_cmp_gt_u32 s{S_CNT}, {opt.spin}")
        g(f"s_cbranch_scc1 L_back{c}")
        g(of_txt(2 * c, 'sc1')); g(of_txt(2 * c + 1, 'sc1')); g(ck_txt(c, 'sc1'))
        g("s_waitcnt vmcnt(0)")
        for l in chk_ops(c): g(l)
        g("s_nop 1")
        g(f"s_cbranch_vccnz L_rt{c}")
        g(f"s_branch L_back{c}")
    g("L_code_end:")
    g(f""".section .rodata,"a"
.p2align 6
.amdhsa_kernel {NAME}
  .amdhsa_next_free_vgpr 512
  .amdhsa_next_free_sgpr 102
  .amdhsa_accum_offset 256
  .amdhsa_group_segment_fixed_size 0
  .amdhsa_kernarg_size 72
  .amdhsa_user_sgpr_count 2
  .amdhsa_user_sgpr_kernarg_segment_ptr 1
  .amdhsa_system_sgpr_workgroup_id_x 1
.end_amdhsa_kernel""")
    print("late-issued fillers:", getattr(g, "late", 0), file=sys.stderr)
    if opt.ts:
        g("; stamps: " + " ".join(g.names))
    return g.text()

def parser():
    ap = argparse.ArgumentParser()
    ap.add_argument("-o", default="k.s")
    ap.add_argument("--ts", action="store_true")
    ap.add_argument("--tsk", action="store_true")
    ap.add_argument("--tsp", action="store_true")
    ap.add_argument("--map", default="B")
    ap.add_argument("--rota", type=int, default=4)
    ap.add_argument("--rotb", type=int, default=4)
    ap.add_argument("--depth", type=int, default=3)
    ap.add_argument("--pf", type=int, default=6)
    ap.add_argument("--cap", type=int, default=2)
    ap.add_argument("--local", type=int, default=1)
    ap.add_argument("--locflag", default="")
    ap.add_argument("--ldflag", default="nt")
    ap.add_argument("--ipf", type=int, default=2)
    ap.add_argument("--ofpre", type=int, default=15)
    ap.add_argument("--vsp2", type=int, default=2)
    ap.add_argument("--rd0", type=int, default=24)
    ap.add_argument("--midgap", type=int, default=2)
    ap.add_argument("--midpre", type=int, default=1)
    ap.add_argument("--rpg", type=int, default=2)
    ap.add_argument("--sent", type=int, default=3)
    ap.add_argument("--ofat", type=int, default=32)
    ap.add_argument("--ofgap", type=int, default=2)
    ap.add_argument("--init", type=int, default=0)
    ap.add_argument("--nwoq", type=int, default=11)
    ap.add_argument("--plfirst", type=int, default=0)
    ap.add_argument("--pollat", type=int, default=52)
    ap.add_argument("--bgap", type=int, default=41)
    ap.add_argument("--d2", type=int, default=4)
    ap.add_argument("--d2from", type=int, default=2)
    ap.add_argument("--wq0", type=int, default=230)
    ap.add_argument("--wqs", type=int, default=4)
    ap.add_argument("--wqepi", type=int, default=2)
    ap.add_argument("--wo0", type=int, default=0)
    ap.add_argument("--pfq", type=int, default=2)
    ap.add_argument("--pfo", type=int, default=4)
    ap.add_argument("--opf", type=int, default=1)
    ap.add_argument("--vsp", type=int, default=2)
    ap.add_argument("--vspq", type=int, default=2)
    ap.add_argument("--qsync", type=int, default=4)
    ap.add_argument("--plstart", type=int, default=80)
    ap.add_argument("--plsolo", type=int, default=1)
    ap.add_argument("--npre", type=int, default=8)
    ap.add_argument("--s0", type=int, default=2)
    ap.add_argument("--flagat", type=int, default=40)
    ap.add_argument("--polla", type=int, default=0)
    ap.add_argument("--chk", type=int, default=1)
    ap.add_argument("--spin", type=int, default=20000)
    ap.add_argument("--xflag", default="nt")
    ap.add_argument("--wflag", default="")
    ap.add_argument("--qflag", default="")
    ap.add_argument("--oflag", default="")
    ap.add_argument("--outflag", default="")
    return ap
if __name__ == "__main__":
    opt = parser().parse_args()
    open(opt.o, "w").write(gen(opt))
```

```python
import sys, argparse
NAME = "concat_heads__linear_attn_block__linear_attn_block__prompt_kernel"

WS_O    = 0
WS_PK   = 4 << 20
WS_PZ   = 5 << 20
WS_FL   = (5 << 20) + (64 << 10)
WS_EP   = WS_FL + (16 << 10)
WS_TS   = 6 << 20
WS_CK   = 7 << 20
WS_XT   = (7 << 20) + (512 << 10)
WS_SIZE = 8 << 20
LOG2E = 0x3fb8aa3b
EPS   = 0x358637bd
ONE_EPS = 0x3f800008

class G:
    def __init__(self, opt):
        self.L = []; self.opt = opt; self.vm = []; self.lg = []; self.nstamp = 0; self.names = []
        self.hi = {}
    def __call__(self, s): self.L.append(s)
    def vmem(self, s, tag=None): self.L.append(s); self.vm.append(tag)
    def lds(self, s, tag=None): self.L.append(s); self.lg.append(tag)
    def _n_after(self, lst, tags):
        idx = max(i for i, t in enumerate(lst) if t in tags)
        return len(lst) - 1 - idx
    def wait_vm(self, *tags):
        n = self._n_after(self.vm, tags); self.L.append(f"s_waitcnt vmcnt({min(n,63)})")
    def wait_lg(self, *tags):
        n = self._n_after(self.lg, tags); self.L.append(f"s_waitcnt lgkmcnt({min(n,15)})")
    def stamp(self, name):
        if not self.opt.ts: return
        if self.opt.tsk and not (name.startswith("B") or name in ("start", "sync0", "kv_end", "published", "q_end", "out_done")): return
        if not self.opt.tsk and name.startswith("B"): return
        if self.opt.tsp and name in ("kernarg", "sync0", "kv_end", "published", "q_end", "phiq_end"): return
        if not self.opt.tsp and name.startswith("P"): return
        if not self.opt.tse and name.startswith("E"): return
        if self.opt.tse and name in ("kernarg", "sync0", "of_issue", "preread", "mfma2"): return
        i = self.nstamp; self.nstamp += 1; self.names.append(name)
        assert i < 13
        self.L.append(f"{'s_memtime' if self.opt.cyc else 's_memrealtime'} s[{64+2*i}:{65+2*i}]")
        self.L.append("s_waitcnt lgkmcnt(0)")
    def ldsaddr(self, vreg, byte, span=4096):
        cur = self.hi.get(vreg, 0)
        if not (cur <= byte and byte + span < cur + 0x10000):
            new = byte & ~0x7fff
            self.L.append(f"v_add_u32 v{vreg}, {(new - cur) & 0xffffffff:#x}, v{vreg}")
            self.hi[vreg] = cur = new
        return byte - cur
    def stream(self, mfmas, fixed, fillers, cap=2, vsp=1):
        lastv = -100
        for k, m in enumerate(mfmas):
            n0 = len(self.L)
            for fn in fixed.get(k, []): fn()
            while fillers and fillers[0][0] <= k and len(self.L) - n0 < cap:
                _, fn, last = fillers[0]
                isv = getattr(fn, "isv", False)
                if isv and k - lastv < vsp: break
                fillers.pop(0)
                fn()
                if isv: lastv = k
                if last: break
            self.L.append(m)
    def need(self, fillers, tag, count):
        while self.vm.count(tag) < count:
            _, fn, last = fillers.pop(0)
            fn()
            if last: self.L.append("s_nop 0")
            self.late = getattr(self, "late", 0) + 1
        self.wait_vm(tag)
    def flush(self, fillers):
        for _, fn, last in fillers:
            fn()
            if last: self.L.append("s_nop 0")
        del fillers[:]
    def text(self): return "\n".join(self.L) + "\n"

def vr(b, n=1): return f"v{b}" if n == 1 else f"v[{b}:{b+n-1}]"
def ar(b, n=1): return f"a{b}" if n == 1 else f"a[{b}:{b+n-1}]"
def sr(b, n=1): return f"s{b}" if n == 1 else f"s[{b}:{b+n-1}]"

S_SX, S_SW = 4, 12
S_W2K, S_W1K = 22, 23
S_X, S_W, S_WO, S_OUT, S_WS = 24, 28, 32, 36, 40
S_BR, S_RB, S_CG, S_WV = 44, 45, 46, 47
S_T0, S_T1, S_T2, S_T3 = 48, 49, 50, 51
S_16K = 52; S_TAG = 53; S_RB64, S_CB = 54, 55
S_LOG2E, S_C1, S_EPS = 56, 58, 60
S_CNT = 62; S_SOFF = 63
S_EX = 96; S_CNTA = 98; S_ROT = 99; S_W4K = 100; S_SO2 = 101
S_4K, S_8K, S_12K = 3, 20, 21
V_LANE, V_G, V_I = 1, 2, 3
V_BKV = 4
V_BQ = 12
V_BO = 16
V_XR = 24
V_WQ = 26
V_WO = 28
VEP = 30
VO = 31
TM = 32
A0, A1 = 44, 45
VPK, VPZ, VTAG, VMSK = 46, 47, 48, 49
ACC, VF, VFA = 50, 51, 56
ZL = 52
VPFQ, VPFO, VPFD, VPFO2 = 42, 43, 41, 57
VOPA, VRA, VRD, VXA, VXV = 240, 241, 242, 243, 244
V_LRW, V_LZW, V_LRR, V_LZR, V_PZW, V_PKW, V_SHW, V_L16, V_DUM, V_ZERO = 245, 246, 247, 248, 249, 250, 251, 252, 253, 254
S_XW, S_LOC = 94, 95
S_MI0 = 90
A_ONES, A_EPS = 128, 132
V_XD = 56
V_WD = 60
V_ACCKV = 64; V_ACCQ = 128; V_RING = 160; NRING = 16; V_E = 224
T = 32
def acckv(rt, ct): return V_ACCKV + (rt * 8 + ct) * 4
def accq(rt, h): return V_ACCQ + (rt * 4 + h) * 4
def xa(j, rt): return (j * 2 + rt) * 4

SLOT = 32768
def slot_of(t): return (t % 5) * SLOT
def lds_q(tq): return 3 * SLOT + tq * 8192
L_RED = 0; L_REDZ = 16 << 10; L_SHR = 20 << 10
def lds_wo(u):
    if u < 8: return SLOT + u * 8192
    if u < 11: return 3 * SLOT + (u - 8) * 8192
    if u < 13: return (u - 11) * 8192
    if u == 13: return 24576
    return 3 * SLOT + (u - 11) * 8192
LDS_BYTES = 160 << 10

def prologue(g):
    o = g.opt
    g("s_cmp_ge_u32 s2, 256")
    g("s_cbranch_scc1 L_end")
    g.stamp("start")
    g("s_load_dwordx16 s[4:19], s[0:1], 0")
    g("s_load_dwordx2 s[20:21], s[0:1], 64")
    if o.ipf:
        g("s_getpc_b64 s[22:23]")
        g("L_pc:")
        g(f"s_lshr_b32 s{S_T0}, s2, 3")
        g(f"s_lshl_b32 s{S_T0}, s{S_T0}, 2")
        g(f"v_lshrrev_b32 v{T+1}, 6, v0")
        g(f"v_add_u32 v{T+1}, s{S_T0}, v{T+1}")
        g(f"v_mul_u32_u24 v{T+1}, {o.ipf*128}, v{T+1}")
        g(f"v_and_b32 v{T+2}, 63, v0")
        g(f"v_lshl_add_u32 v{T+1}, v{T+2}, 7, v{T+1}")
        g(f"v_min_u32 v{T+1}, L_code_end-L_pc-4, v{T+1}")
        g(f"s_mov_b64 exec, {(1 << o.ipf) - 1}")
        g.vmem(f"global_load_dword v{V_DUM}, v{T+1}, s[22:23]", "ipf")
        g("s_mov_b64 exec, -1")
    g(f"v_lshrrev_b32 v{T}, 6, v0")
    g(f"v_and_b32 v{V_LANE}, 63, v0")
    g(f"v_readfirstlane_b32 s{S_WV}, v{T}")
    g(f"s_and_b32 s{S_BR}, s2, 1")
    g(f"s_lshr_b32 s{S_T0}, s2, 3")
    g(f"s_and_b32 s{S_T1}, s{S_T0}, 7")
    g(f"s_lshr_b32 s{S_CB}, s{S_T0}, 3")
    if o.map == "A":
        g(f"s_bfe_u32 s{S_T2}, s2, 0x10001")
        g(f"s_bfe_u32 s{S_T3}, s2, 0x10002")
        g(f"s_lshl_b32 s{S_RB}, s{S_T2}, 3")
        g(f"s_add_u32 s{S_RB}, s{S_RB}, s{S_T1}")
        g(f"s_lshl_b32 s{S_CG}, s{S_T3}, 2")
        g(f"s_add_u32 s{S_CG}, s{S_CG}, s{S_CB}")
        g(f"s_lshl_b32 s{S_RB64}, s{S_T2}, 4")
        g(f"s_lshl_b32 s{S_T3}, s{S_T3}, 3")
        g(f"s_add_u32 s{S_RB64}, s{S_RB64}, s{S_T3}")
        g(f"s_add_u32 s{S_RB64}, s{S_RB64}, s{S_T1}")
    else:
        g(f"s_bfe_u32 s{S_T2}, s2, 0x20001")
        g(f"s_lshl_b32 s{S_RB}, s{S_T2}, 2")
        g(f"s_add_u32 s{S_RB}, s{S_RB}, s{S_CB}")
        g(f"s_mov_b32 s{S_CG}, s{S_T1}")
        g(f"s_lshl_b32 s{S_RB64}, s{S_T2}, 3")
        g(f"s_add_u32 s{S_RB64}, s{S_RB64}, s{S_T1}")
    g(f"s_mul_i32 s{S_T1}, s{S_T1}, {o.rota}")
    g(f"s_mul_i32 s{S_T2}, s{S_CB}, {o.rotb}")
    g(f"s_add_u32 s{S_ROT}, s{S_T1}, s{S_T2}")
    if o.rotc:
        g(f"s_bfe_u32 s{S_T2}, s2, 0x20001")
        g(f"s_mul_i32 s{S_T2}, s{S_T2}, {o.rotc}")
        g(f"s_add_u32 s{S_ROT}, s{S_ROT}, s{S_T2}")
    g(f"s_and_b32 s{S_ROT}, s{S_ROT}, 7")
    g(f"v_lshrrev_b32 v{V_G}, 4, v{V_LANE}")
    g(f"v_and_b32 v{V_I}, 15, v0")
    g(f"s_lshl_b32 s{S_W4K}, s{S_WV}, 12")
    g(f"v_lshrrev_b32 v{T}, 3, v{V_LANE}")
    g(f"v_lshlrev_b32 v{T}, 10, v{T}")
    g(f"v_and_b32 v{T+1}, 7, v{V_LANE}")
    g(f"v_xor_b32 v{T+1}, v{T+1}, v{V_G}")
    g(f"s_lshl_b32 s{S_T0}, s{S_RB}, 17")
    g(f"s_lshl_b32 s{S_T1}, s{S_WV}, 15")
    g(f"s_add_u32 s{S_T0}, s{S_T0}, s{S_T1}")
    g(f"v_lshl_add_u32 v{V_XD}, v{T+1}, 4, v{T}")
    g(f"v_add_u32 v{V_XD}, s{S_T0}, v{V_XD}")
    g(f"v_xor_b32 v{V_XD+1}, 64, v{V_XD}")
    g(f"v_add_u32 v{V_XD+1}, {7168}, v{V_XD+1}")
    g(f"v_add_u32 v{V_XD+2}, {2*7168}, v{V_XD}")
    g(f"v_add_u32 v{V_XD+3}, {2*7168}, v{V_XD+1}")
    g(f"v_lshrrev_b32 v{T+1}, 1, v{V_I}")
    g(f"v_xor_b32 v{T+1}, v{V_G}, v{T+1}")
    g(f"v_lshrrev_b32 v{T+2}, 2, v{T+1}")
    g(f"v_lshlrev_b32 v{T+2}, 10, v{T+2}")
    g(f"v_and_b32 v{T+3}, 3, v{T+1}")
    g(f"v_lshl_add_u32 v{T+2}, v{T+3}, 5, v{T+2}")
    g(f"v_and_b32 v{T+3}, 1, v{V_I}")
    g(f"v_lshl_add_u32 v{T+2}, v{T+3}, 4, v{T+2}")
    g(f"v_xor_b32 v{T+5}, 1024, v{T+2}")
    g(f"s_lshl_b32 s{S_T2}, s{S_WV}, 4")
    g(f"v_add_u32 v{T+4}, s{S_T2}, v{V_G}")
    g(f"v_mul_u32_u24 v{T+4}, 3072, v{T+4}")
    g(f"s_lshl_b32 s{S_T2}, s{S_CG}, 7")
    g(f"s_add_u32 s{S_T3}, s{S_T2}, 1024")
    g(f"v_add3_u32 v{V_WD}, v{T+4}, v{T+2}, s{S_T3}")
    g(f"v_add_u32 v{V_WD+1}, {12288-1024}, v{V_WD}")
    g(f"s_add_u32 s{S_T3}, s{S_T3}, {2*(12288-1024)}")
    g(f"v_add3_u32 v{V_WD+2}, v{T+4}, v{T+5}, s{S_T3}")
    g(f"v_add_u32 v{V_WD+3}, {12288-1024}, v{V_WD+2}")
    g(f"s_lshl_b32 s{S_T0}, s{S_ROT}, 7")
    g(f"s_mul_i32 s{S_T1}, s{S_ROT}, 196608")
    g(f"s_mov_b32 m0, s{S_W4K}")
    g("s_waitcnt lgkmcnt(0)")
    g.stamp("kernarg")
    g(f"s_cmp_eq_u32 s{S_BR}, 0")
    g(f"s_cselect_b32 s{S_X}, s4, s10")
    g(f"s_cselect_b32 s{S_X+1}, s5, s11")
    g(f"s_mov_b32 s{S_X+2}, {2048*512*2}")
    g(f"s_mov_b32 s{S_X+3}, 0x20000")
    g(f"s_cselect_b32 s{S_W}, s6, s12")
    g(f"s_cselect_b32 s{S_W+1}, s7, s13")
    g(f"s_mov_b32 s{S_W+2}, {512*1536*2}")
    g(f"s_mov_b32 s{S_W+3}, 0x20000")
    for m in range(4):
        g.vmem(f"buffer_load_dwordx4 v{V_XD+m}, {sr(S_X,4)}, s{S_T0} offen offset:{m*1024} {o.xflag} lds", ("st", 0))
    g(f"s_add_u32 m0, s{S_W4K}, 16384")
    g(f"s_cselect_b32 s{S_WO}, s8, s14") if False else None
    g("s_nop 0")
    for i in range(4):
        g.vmem(f"buffer_load_dwordx4 v{V_WD+i}, {sr(S_W,4)}, s{S_T1} offen offset:{i*1024} {o.wflag} lds", ("st", 0))
    g(f"s_cmp_eq_u32 s{S_BR}, 0")
    g(f"s_cselect_b32 s{S_WO}, s8, s14")
    g(f"s_cselect_b32 s{S_WO+1}, s9, s15")
    g(f"s_mov_b32 s{S_WO+2}, {512*512*2}")
    g(f"s_mov_b32 s{S_WO+3}, 0x20000")
    g(f"s_mov_b32 s{S_OUT}, s16")
    g(f"s_mov_b32 s{S_OUT+1}, s17")
    g(f"s_mov_b32 s{S_OUT+2}, {2048*1024*2}")
    g(f"s_mov_b32 s{S_OUT+3}, 0x20000")
    g(f"s_mov_b32 s{S_WS}, s20")
    g(f"s_mov_b32 s{S_WS+1}, s21")
    g(f"s_mov_b32 s{S_WS+2}, {WS_SIZE}")
    g(f"s_mov_b32 s{S_WS+3}, 0x20000")
    for t in range(8):
        g(f"s_add_u32 s{S_T0}, s{S_ROT}, {t}")
        g(f"s_and_b32 s{S_T0}, s{S_T0}, 7")
        g(f"s_lshl_b32 s{S_SX+t}, s{S_T0}, 7")
        g(f"s_mul_i32 s{S_SW+t}, s{S_T0}, 196608")

def prologue2(g):
    g(f"s_mov_b32 s{S_16K}, 16384")
    g(f"s_mov_b32 s{S_4K}, 4096")
    g(f"s_mov_b32 s{S_8K}, 8192")
    g(f"s_mov_b32 s{S_12K}, 12288")
    g(f"s_lshl_b32 s{S_W2K}, s{S_WV}, 11")
    g(f"s_lshl_b32 s{S_W1K}, s{S_WV}, 10")
    for r, val in ((S_LOG2E, LOG2E), (S_C1, ONE_EPS), (S_EPS, EPS)):
        g(f"s_mov_b32 s{r}, {val:#x}")
        g(f"s_mov_b32 s{r+1}, {val:#x}")
    g(f"v_lshrrev_b32 v{T}, 1, v{V_I}")
    g(f"v_xor_b32 v{T}, v{T}, v{V_G}")
    g(f"v_lshlrev_b32 v{T+1}, 7, v{V_I}")
    g(f"v_lshl_add_u32 v{T}, v{T}, 4, v{T+1}")
    g(f"v_add_u32 v{V_XR}, s{S_W4K}, v{T}")
    g(f"v_xor_b32 v{V_XR+1}, 64, v{V_XR}")
    g(f"v_lshrrev_b32 v{T}, 2, v{V_I}")
    g(f"v_and_b32 v{T+1}, 3, v{V_I}")
    g(f"v_and_b32 v{T+2}, 1, v{V_G}")
    g(f"v_lshl_add_u32 v{T+2}, v{T+2}, 2, v{T}")
    g(f"v_lshl_add_u32 v{T+3}, v{V_G}, 3, v{T}")
    g(f"v_lshlrev_b32 v{T+4}, 8, v{T+3}")
    g(f"v_lshl_add_u32 v{T+4}, v{T+1}, 3, v{T+4}")
    for ct in range(8):
        g(f"v_xor_b32 v{T+5}, {ct}, v{T+2}")
        g(f"v_lshl_add_u32 v{V_BKV+ct}, v{T+5}, 5, v{T+4}")
    g(f"v_lshlrev_b32 v{T+4}, 7, v{T+3}")
    g(f"v_lshl_add_u32 v{T+4}, v{T+1}, 3, v{T+4}")
    g(f"v_lshrrev_b32 v{T+5}, 1, v{T}")
    g(f"v_and_b32 v{T+6}, 1, v{V_G}")
    g(f"v_lshl_add_u32 v{T+5}, v{T+6}, 1, v{T+5}")
    g(f"v_add_u32 v{T+4}, {3*SLOT}, v{T+4}")
    for ct in range(4):
        g(f"v_xor_b32 v{T+6}, {ct}, v{T+5}")
        g(f"v_lshl_add_u32 v{V_BQ+ct}, v{T+6}, 5, v{T+4}")
        g.hi[V_BQ + ct] = 3 * SLOT
    g(f"v_lshl_add_u32 v{T+3}, v{V_G}, 2, v{T}")
    g(f"v_lshlrev_b32 v{T+4}, 8, v{T+3}")
    g(f"v_lshl_add_u32 v{T+4}, v{T+1}, 3, v{T+4}")
    g(f"v_add_u32 v{T+4}, {SLOT}, v{T+4}")
    for ct in range(8):
        g(f"v_xor_b32 v{T+5}, {ct}, v{T+2}")
        g(f"v_lshl_add_u32 v{V_BO+ct}, v{T+5}, 5, v{T+4}")
        g.hi[V_BO + ct] = SLOT
    g(f"v_lshrrev_b32 v{T}, 3, v{V_I}")
    g(f"v_lshl_add_u32 v{T}, v{V_G}, 1, v{T}")
    g(f"s_lshl_b32 s{S_T3}, s{S_WV}, 4")
    g(f"v_add_u32 v{T}, s{S_T3}, v{T}")
    g(f"v_mul_u32_u24 v{T}, 3072, v{T}")
    g(f"v_bfe_u32 v{T+1}, v{V_I}, 1, 2")
    g(f"v_and_b32 v{T+2}, 1, v{V_G}")
    g(f"v_xor_b32 v{T+1}, v{T+1}, v{T+2}")
    g(f"v_lshlrev_b32 v{T+1}, 5, v{T+1}")
    g(f"v_and_b32 v{T+3}, 1, v{V_I}")
    g(f"v_lshl_add_u32 v{T+1}, v{T+3}, 4, v{T+1}")
    g(f"v_xor_b32 v{T+2}, 64, v{T+1}")
    g(f"s_lshl_b32 s{S_T2}, s{S_CG}, 7")
    g(f"v_add3_u32 v{V_WQ}, v{T}, v{T+1}, s{S_T2}")
    g(f"s_add_u32 s{S_T2}, s{S_T2}, {8*3072-1024}")
    g(f"v_add3_u32 v{V_WQ+1}, v{T}, v{T+2}, s{S_T2}")
    g(f"s_lshl_b32 s{S_T0}, s{S_WV}, 3")
    g(f"v_add_u32 v{T}, s{S_T0}, v{V_G}")
    g(f"v_lshlrev_b32 v{T}, 10, v{T}")
    g(f"v_lshrrev_b32 v{T+1}, 1, v{V_I}")
    g(f"v_xor_b32 v{T+1}, v{T+1}, v{V_G}")
    g(f"v_lshlrev_b32 v{T+1}, 5, v{T+1}")
    g(f"v_lshl_add_u32 v{T+1}, v{T+3}, 4, v{T+1}")
    g(f"v_xor_b32 v{T+2}, 128, v{T+1}")
    g(f"s_lshl_b32 s{S_T0}, s{S_CB}, 8")
    g(f"v_add3_u32 v{V_WO}, v{T}, v{T+1}, s{S_T0}")
    g(f"s_add_u32 s{S_T0}, s{S_T0}, {4096-1024}")
    g(f"v_add3_u32 v{V_WO+1}, v{T}, v{T+2}, s{S_T0}")
    g(f"s_lshr_b32 s{S_T0}, s2, 3")
    g(f"s_lshl_b32 s{S_T0}, s{S_T0}, 2")
    g(f"s_add_u32 s{S_T0}, s{S_T0}, s{S_WV}")
    g(f"s_lshl_b32 s{S_T0}, s{S_T0}, 2")
    g(f"v_add_u32 v{T}, s{S_T0}, v{V_G}")
    g(f"v_lshlrev_b32 v{T+1}, 6, v{V_I}")
    g(f"v_lshl_add_u32 v{VPFO}, v{T}, 10, v{T+1}")
    g(f"v_mul_u32_u24 v{T}, 3072, v{T}")
    g(f"v_add_u32 v{VPFQ}, v{T}, v{T+1}")
    g(f"s_lshl_b32 s{S_T0}, s{S_BR}, 21")
    g(f"s_lshl_b32 s{S_T1}, s{S_RB}, 17")
    g(f"s_add_u32 s{S_T0}, s{S_T0}, s{S_T1}")
    g(f"s_lshl_b32 s{S_T1}, s{S_WV}, 15")
    g(f"s_add_u32 s{S_T0}, s{S_T0}, s{S_T1}")
    g(f"s_lshl_b32 s{S_T1}, s{S_CG}, 11")
    g(f"s_add_u32 s{S_T0}, s{S_T0}, s{S_T1}")
    g(f"v_lshl_add_u32 v{VOPA}, v{V_LANE}, 4, s{S_T0}")
    g(f"s_lshl_b32 s{S_T0}, s{S_BR}, 7")
    g(f"s_lshl_b32 s{S_T1}, s{S_RB}, 3")
    g(f"s_add_u32 s{S_T0}, s{S_T0}, s{S_T1}")
    g(f"s_lshl_b32 s{S_T1}, s{S_WV}, 1")
    g(f"s_add_u32 s{S_T0}, s{S_T0}, s{S_T1}")
    g(f"s_lshl_b32 s{S_T0}, s{S_T0}, 3")
    g(f"s_add_u32 s{S_T0}, s{S_T0}, s{S_CG}")
    g(f"s_lshl_b32 s{S_T0}, s{S_T0}, 8")
    g(f"s_add_u32 s{S_T0}, s{S_T0}, {WS_CK}")
    g(f"v_lshl_add_u32 v{VRA}, v{V_LANE}, 2, s{S_T0}")
    g(f"s_lshl_b32 s{S_T0}, s{S_BR}, 5")
    g(f"s_add_u32 s{S_T1}, s{S_T0}, s{S_RB64}")
    g(f"s_lshl_b32 s{S_T1}, s{S_T1}, 2")
    g(f"s_add_u32 s{S_T1}, s{S_T1}, s{S_CB}")
    g(f"s_lshl_b32 s{S_T1}, s{S_T1}, 5")
    g(f"s_add_u32 s{S_T1}, s{S_T1}, s{S_WV}")
    g(f"s_lshl_b32 s{S_T1}, s{S_T1}, 2")
    g(f"s_add_u32 s{S_XW}, s{S_T1}, {WS_XT}")
    g(f"s_lshl_b32 s{S_T1}, s{S_RB}, 1")
    g(f"s_add_u32 s{S_T0}, s{S_T0}, s{S_T1}")
    g(f"s_lshr_b32 s{S_T1}, s{S_WV}, 1")
    g(f"s_add_u32 s{S_T0}, s{S_T0}, s{S_T1}")
    g(f"s_lshl_b32 s{S_T0}, s{S_T0}, 9")
    g(f"s_add_u32 s{S_T0}, s{S_T0}, {WS_XT}")
    g(f"v_lshl_add_u32 v{VXA}, v{V_G}, 7, s{S_T0}")
    g(f"s_getreg_b32 s{S_LOC}, hwreg(HW_REG_XCC_ID)")
    g(f"s_and_b32 s{S_LOC}, s{S_LOC}, 15")
    g(f"s_lshl_b32 s{S_T0}, s{S_BR}, 7")
    g(f"s_add_u32 s{S_T0}, s{S_T0}, {WS_EP}")
    g(f"v_mov_b32 v{VF}, 0")
    g.vmem(f"buffer_load_dword v{VEP}, v{VF}, {sr(S_WS,4)}, s{S_T0} offen sc1", "ep")

def prologue3(g):
    g(f"v_lshlrev_b32 v{V_L16}, 4, v{V_LANE}")
    g(f"v_mov_b32 v{V_ZERO}, 0")
    g(f"v_mov_b32 v{VMSK}, 0xff")
    g(f"v_cmp_eq_u32 {sr(S_MI0,2)}, 0, v{V_I}")
    g(f"v_add_u32 v{V_LRW}, s{S_W4K}, v{V_L16}")
    g(f"s_lshl_b32 s{S_T0}, s{S_WV}, 8")
    g(f"s_add_u32 s{S_T0}, s{S_T0}, {L_REDZ}")
    g(f"v_lshl_add_u32 v{V_LZW}, v{V_G}, 4, s{S_T0}")
    g(f"v_add_u32 v{V_LRR}, s{S_W1K}, v{V_L16}")
    g(f"s_lshl_b32 s{S_T0}, s{S_WV}, 6")
    g(f"s_add_u32 s{S_T0}, s{S_T0}, {L_REDZ}")
    g(f"v_lshl_add_u32 v{V_LZR}, v{V_G}, 4, s{S_T0}")
    g(f"s_add_u32 s{S_T0}, s{S_W1K}, {L_SHR}")
    g(f"v_add_u32 v{V_SHW}, s{S_T0}, v{V_L16}")
    g(f"s_lshl_b32 s{S_T0}, s{S_BR}, 3")
    g(f"s_add_u32 s{S_T0}, s{S_T0}, s{S_CG}")
    g(f"s_lshl_b32 s{S_T0}, s{S_T0}, 2")
    g(f"s_add_u32 s{S_T0}, s{S_T0}, s{S_WV}")
    g(f"s_lshl_b32 s{S_T1}, s{S_T0}, 14")
    g(f"s_add_u32 s{S_T1}, s{S_T1}, {WS_PK}")
    g(f"s_lshl_b32 s{S_T2}, s{S_T0}, 10")
    g(f"s_add_u32 s{S_T2}, s{S_T2}, {WS_PZ}")
    g(f"v_add_u32 v{VPK}, s{S_T1}, v{V_L16}")
    g(f"s_lshl_b32 s{S_T1}, s{S_RB}, 10")
    g(f"v_add_u32 v{V_PKW}, s{S_T1}, v{VPK}")
    g(f"v_lshlrev_b32 v{VPZ}, 6, v{V_I}")
    g(f"v_lshl_add_u32 v{VPZ}, v{V_G}, 4, v{VPZ}")
    g(f"v_add_u32 v{VPZ}, s{S_T2}, v{VPZ}")
    g(f"s_lshl_b32 s{S_T3}, s{S_RB}, 6")
    g(f"s_add_u32 s{S_T2}, s{S_T2}, s{S_T3}")
    g(f"v_lshl_add_u32 v{V_PZW}, v{V_G}, 4, s{S_T2}")
    g(f"v_mov_b32 v{T}, 0x3f803f80")
    for k in range(4):
        g(f"v_accvgpr_write_b32 a{A_ONES+k}, v{T}")
    g(f"s_lshl_b32 s{S_T3}, s{S_BR}, 21")
    g(f"s_lshl_b32 s{S_T1}, s{S_RB64}, 16")
    g(f"s_add_u32 s{S_T3}, s{S_T3}, s{S_T1}")
    g(f"s_lshl_b32 s{S_T1}, s{S_WV}, 14")
    g(f"s_add_u32 s{S_T3}, s{S_T3}, s{S_T1}")
    g(f"v_add_u32 v{A0}, s{S_T3}, v{V_L16}")
    g(f"s_lshl_b32 s{S_T0}, s{S_BR}, 7")
    g(f"s_lshl_b32 s{S_T1}, s{S_RB64}, 2")
    g(f"s_add_u32 s{S_T0}, s{S_T0}, s{S_T1}")
    g(f"s_add_u32 s{S_T0}, s{S_T0}, s{S_WV}")
    g(f"s_lshl_b32 s{S_T0}, s{S_T0}, 11")
    g(f"s_add_u32 s{S_T0}, s{S_T0}, {WS_CK}")
    g(f"v_lshl_add_u32 v{A1}, v{V_LANE}, 2, s{S_T0}")
    g(f"s_lshl_b32 s{S_T0}, s{S_RB64}, 17")
    g(f"s_lshl_b32 s{S_T1}, s{S_WV}, 15")
    g(f"s_add_u32 s{S_T0}, s{S_T0}, s{S_T1}")
    g(f"s_lshl_b32 s{S_T1}, s{S_BR}, 10")
    g(f"s_add_u32 s{S_T0}, s{S_T0}, s{S_T1}")
    g(f"s_lshl_b32 s{S_T1}, s{S_CB}, 8")
    g(f"s_add_u32 s{S_T0}, s{S_T0}, s{S_T1}")
    g(f"v_lshlrev_b32 v{VO}, 11, v{V_I}")
    g(f"v_and_b32 v{T}, 1, v{V_G}")
    g(f"v_lshl_add_u32 v{VO}, v{T}, 5, v{VO}")
    g(f"v_lshrrev_b32 v{T}, 1, v{V_G}")
    g(f"v_lshl_add_u32 v{VO}, v{T}, 4, v{VO}")
    g(f"v_add_u32 v{VO}, s{S_T0}, v{VO}")
    g(f"s_mov_b32 s{S_CNT}, 0")
    g(f"s_mov_b32 s{S_CNTA}, 0")


def V(fn):
    fn.isv = True
    return fn

def stage_fill(g, t, e):
    o = g.opt; sl = slot_of(t); F = []
    F.append((e, lambda: g(f"s_add_u32 m0, s{S_W4K}, {sl}"), True))
    for m in range(4):
        F.append((e, V(lambda m=m: g.vmem(f"buffer_load_dwordx4 v{V_XD+m}, {sr(S_X,4)}, s{S_SX+t} offen offset:{m*1024} {o.xflag} lds", ("st", t))), False))
    F.append((e, lambda: g(f"s_add_u32 m0, s{S_W4K}, {sl+16384}"), True))
    for i in range(4):
        F.append((e, V(lambda i=i: g.vmem(f"buffer_load_dwordx4 v{V_WD+i}, {sr(S_W,4)}, s{S_SW+t} offen offset:{i*1024} {o.wflag} lds", ("st", t))), False))
    return F

def sent_fill(g, e):
    F = []
    for rt in range(2):
        for uu in range(2):
            so = "0" if rt == 0 else f"s{S_16K}"
            F.append((e, V(lambda so=so, uu=uu: g.vmem(f"buffer_store_dwordx4 {vr(VSEN,4)}, v{VOPA}, {sr(S_WS,4)}, {so} offen offset:{uu*1024} sc1", "sent")), False))
    return F

def wq_fill(g, tq, e):
    F = [(e, lambda: g(f"s_add_u32 m0, s{S_W2K}, {lds_q(tq)}"), True)]
    for i in range(2):
        F.append((e, V(lambda i=i: g.vmem(f"buffer_load_dwordx4 v{V_WQ+i}, {sr(S_W,4)}, s{S_SW+tq} offen offset:{i*1024} {g.opt.qflag} lds", ("wq", tq))), False))
    return F

def wo_fill(g, u, e):
    F = [(e, lambda: g(f"s_mov_b32 s{S_SOFF}, {u*32768}"), False),
         (e, lambda: g(f"s_add_u32 m0, s{S_W2K}, {lds_wo(u)}"), True)]
    for i in range(2):
        F.append((e, V(lambda i=i: g.vmem(f"buffer_load_dwordx4 v{V_WO+i}, {sr(S_WO,4)}, s{S_SOFF} offen offset:{i*1024} {g.opt.oflag} lds", ("wo", u))), False))
    return F

def phi2(g, src, tmp, dst):
    u, a = tmp, tmp + 2
    g(f"v_pk_mul_f32 {vr(u,2)}, {vr(src,2)}, {sr(S_LOG2E,2)}")
    g(f"v_pk_add_f32 {vr(a,2)}, {vr(src,2)}, {sr(S_C1,2)}")
    g(f"v_exp_f32 v{u}, v{u} clamp")
    g(f"v_exp_f32 v{u+1}, v{u+1} clamp")
    return [f"v_pk_add_f32 {vr(u,2)}, {vr(u,2)}, {sr(S_EPS,2)}",
            f"v_max_f32 v{a}, v{a}, v{u}",
            f"v_max_f32 v{a+1}, v{a+1}, v{u+1}",
            f"v_cvt_pk_bf16_f32 v{dst}, v{a}, v{a+1}"]

def phi_block(g, pairs, tmpbase, ntmp=3, hook=None):
    pend = None
    for n, (src, dst) in enumerate(pairs):
        tail = phi2(g, src, tmpbase + (n % ntmp) * 4, dst)
        if pend:
            for s in pend: g(s)
        pend = tail
        if hook: hook(n)
    g("s_nop 0")
    for s in pend: g(s)

SOK = ["0", f"s{S_4K}", f"s{S_8K}", f"s{S_12K}"]
def partial_fill(g, e):
    F = [(e, V(lambda: g.vmem(f"buffer_load_dwordx4 {vr(ZL,4)}, v{VPZ}, {sr(S_WS,4)}, 0 offen sc1", "pl")), False)]
    F.append((e, V(lambda: g.vmem(f"buffer_load_dword v{VRD}, v{VXA}, {sr(S_WS,4)}, 0 offen sc1", "pl")), False))
    for p in range(16):
        F.append((e, V(lambda p=p: g.vmem(f"buffer_load_dwordx4 {vr(V_ACCKV+p*4,4)}, v{VPK}, {sr(S_WS,4)}, {SOK[p//4]} offen offset:{(p%4)*1024} sc1", "pl")), g.opt.plsolo))
    return F

def gen(opt):
    g = G(opt)
    g(f"; @launch grid=(256,1,1) block=(256,1,1) lds={LDS_BYTES}")
    g('.amdgcn_target "amdgcn-amd-amdhsa--gfx950"')
    g(".text")
    g(f".globl {NAME}\n.p2align 8\n.type {NAME},@function\n{NAME}:")
    prologue(g)
    D = opt.depth
    for t in range(1, D):
        g.flush(stage_fill(g, t, 0))
        if t == 1: prologue2(g)
    if D == 1: prologue2(g)
    prologue3(g)
    P = opt.pf
    NF = 128
    def xr_fn(t, jj, rt):
        def f():
            off = g.ldsaddr(V_XR + jj, slot_of(t) + rt * 2048, 0)
            g.lds(f"ds_read_b128 {ar(xa(2*t+jj, rt),4)}, v{V_XR+jj} offset:{off}", ("xf", t, jj, rt))
        return f
    def kv_fn(n, half):
        j, ct = divmod(n, 8)
        r = V_RING + (n % NRING) * 4 + half * 2
        def f():
            off = g.ldsaddr(V_BKV + ct, slot_of(j // 2) + 16384 + (j % 2) * 8192, 1024)
            g.lds(f"ds_read_b64_tr_b16 {vr(r,2)}, v{V_BKV+ct} offset:{off+half*1024}", ("bkv", n))
        return f
    mf = []
    for n in range(NF):
        j, ct = divmod(n, 8)
        r = V_RING + (n % NRING) * 4
        for rt in range(2):
            c = "0" if j == 0 else vr(acckv(rt, ct), 4)
            mf.append(f"v_mfma_f32_16x16x32_bf16 {vr(acckv(rt,ct),4)}, {ar(xa(j,rt),4)}, {vr(r,4)}, {c}")
    fixed = {}; fill = []
    def fx(k, fn): fixed.setdefault(k, []).append(fn)
    nxt = D; wqn = 0
    for _ in range(opt.init):
        fill += stage_fill(g, nxt, 0); nxt += 1
    for n in range(NF):
        m = n + P
        if m < NF:
            if m % 16 == 0:
                t = m // 16
                fx(2 * n, lambda t=t: g.need(fill, ("st", t), 8))
                fx(2 * n, lambda: g("s_barrier"))
                fx(2 * n, lambda t=t: g.stamp(f"B{t}"))
                for q, (jj, rt) in enumerate([(0, 0), (0, 1), (1, 0), (1, 1)]):
                    fx(2 * n + 1 + 2 * q + (0 if q < 2 else 6), xr_fn(t, jj, rt))
                while nxt < 8 and (nxt < 5 or nxt - 5 <= t - 2) and nxt <= t + (D if t < opt.d2from else opt.d2) - 1:
                    fill += stage_fill(g, nxt, 2 * n + 1); nxt += 1
                if t == opt.pfq:
                    fill.append((2 * n + 1, V(lambda: g.vmem(f"buffer_load_dword v{V_DUM}, v{VPFQ}, {sr(S_W,4)}, 0 offen", "pf")), False))
                if t == opt.pfo:
                    fill.append((2 * n + 1, V(lambda: g.vmem(f"buffer_load_dword v{V_DUM}, v{VPFO}, {sr(S_WO,4)}, 0 offen", "pf")), False))
                if nxt == 8:
                    while wqn < 8 and (3 + wqn // 4) <= t - 2:
                        fill += wq_fill(g, wqn, max(2 * n + 1, opt.wq0 + wqn * opt.wqs)); wqn += 1
            fx(2 * n, kv_fn(m, 0)); fx(2 * n + 1, kv_fn(m, 1))
        if n % 2 == 1 and n + 1 < NF:
            def wfn(n=n):
                tags = [("bkv", min(n + 2, NF - 1))]
                j2 = (n + 2) // 8
                for jn in {(n + 1) // 8, min(n + 2, NF - 1) // 8}:
                    tags += [("xf", jn // 2, jn % 2, 0), ("xf", jn // 2, jn % 2, 1)]
                g.wait_lg(*tags)
            fx(2 * n + 1, wfn)
    tagops = [lambda: g.wait_vm("ep"), lambda: g(f"v_readfirstlane_b32 s{S_TAG}, v{VEP}"),
              lambda: g(f"s_add_u32 s{S_TAG}, s{S_TAG}, 0x9e3779b1"), lambda: g(f"v_mov_b32 v{VTAG}, s{S_TAG}"),
              lambda: g(f"s_andn2_b32 s{S_T3}, s{S_TAG}, 15"), lambda: g(f"s_or_b32 s{S_T3}, s{S_T3}, s{S_LOC}"),
              lambda: g(f"v_mov_b32 v{VXV}, s{S_T3}"), lambda: g(f"v_mov_b32 v{VPFO2}, v{VPFO}")]
    for q, fn in enumerate(tagops): fx(244 + q + (q > 1), fn)
    g.wait_vm(("st", 0))
    g("s_barrier")
    g.stamp("sync0")
    for jj, rt in [(0, 0), (0, 1)]: xr_fn(0, jj, rt)()
    for n in range(2): kv_fn(n, 0)(); kv_fn(n, 1)()
    for jj, rt in [(1, 0), (1, 1)]: xr_fn(0, jj, rt)()
    for n in range(2, P): kv_fn(n, 0)(); kv_fn(n, 1)()
    g.wait_lg(("bkv", 1))
    g.stream(mf, fixed, fill, cap=opt.cap, vsp=opt.vsp)
    g.stamp("kv_end")
    PK = V_E; VV = V_RING
    assert wqn == 8 and nxt == 8
    if not opt.wqepi: g.flush(fill)
    if opt.pfo == 8:
        fill.append((0, V(lambda: g.vmem(f"buffer_load_dword v{V_DUM}, v{VPFO2}, {sr(S_WO,4)}, 0 offen", "pf")), False))
    KVP = V_RING + 20; ZP = V_RING + 36
    pairs = [(acckv(rt, h) + 2 * p, PK + h * 4 + rt * 2 + p) for h in range(4) for rt in range(2) for p in range(2)]
    def cv(h):
        for rt in range(2):
            for p in range(2):
                s = acckv(rt, 4 + h) + 2 * p
                g(f"v_cvt_pk_bf16_f32 v{VV + h*4 + rt*2 + p}, v{s}, v{s+1}")
    def mfk(h):
        g(f"v_mfma_f32_16x16x32_bf16 {vr(KVP+h*4,4)}, {vr(PK+h*4,4)}, {vr(VV+h*4,4)}, 0")
        g(f"v_mfma_f32_16x16x32_bf16 {vr(ZP+h*4,4)}, {vr(PK+h*4,4)}, {ar(A_ONES,4)}, 0")
    def wr(h):
        g.lds(f"ds_write_b128 v{V_LRW}, {vr(KVP+h*4,4)} offset:{h*1024}", "rw")
        g(f"s_mov_b64 exec, {sr(S_MI0,2)}")
        g.lds(f"ds_write_b128 v{V_LZW}, {vr(ZP+h*4,4)} offset:{h*64}", "rw")
        g(f"s_mov_b64 exec, -1")
    def hook(n):
        for _ in range(opt.wqepi):
            if fill:
                _e, fn, last = fill.pop(0); fn()
                if last: break
        if n % 4 == 2: cv(n // 4)
        if n >= 5 and n % 4 == 1: mfk(n // 4 - 1)
        if n >= 7 and n % 4 == 3: wr(n // 4 - 1)
    phi_block(g, pairs, TM, hook=hook)
    g.flush(fill)
    g.stamp("Ephik")
    g("s_nop 1")
    mfk(3)
    g("s_nop 7")
    wr(3)
    SQ = opt.qsync
    g.need(fill, ("wq", SQ - 1), 2)
    g("s_waitcnt lgkmcnt(0)")
    g("s_barrier")
    g.stamp("Ebar")
    R0 = V_RING
    for w2 in range(4):
        g.lds(f"ds_read_b128 {vr(R0+w2*4,4)}, v{V_LRR} offset:{w2*4096}", ("rr", w2))
    for w2 in range(4):
        g.lds(f"ds_read_b128 {vr(R0+16+w2*4,4)}, v{V_LZR} offset:{w2*256}", ("rz", w2))
    QR, NQR = V_RING + 32, 8
    PQ = 6
    NQ = 64
    def q_fn(n, half):
        j, h = divmod(n, 4)
        r = QR + (n % NQR) * 4 + half * 2
        def f():
            off = g.ldsaddr(V_BQ + h, lds_q(j // 2) + (j % 2) * 4096, 512)
            g.lds(f"ds_read_b64_tr_b16 {vr(r,2)}, v{V_BQ+h} offset:{off+half*512}", ("bq", n))
        return f
    for n in range(3): q_fn(n, 0)(); q_fn(n, 1)()
    g.wait_lg(("rr", 1))
    g(f"v_pk_add_f32 {vr(R0,2)}, {vr(R0,2)}, {vr(R0+4,2)}")
    g(f"v_pk_add_f32 {vr(R0+2,2)}, {vr(R0+2,2)}, {vr(R0+6,2)}")
    g.wait_lg(("rr", 3))
    g(f"v_pk_add_f32 {vr(R0+8,2)}, {vr(R0+8,2)}, {vr(R0+12,2)}")
    g(f"v_pk_add_f32 {vr(R0+10,2)}, {vr(R0+10,2)}, {vr(R0+14,2)}")
    g(f"v_pk_add_f32 {vr(R0,2)}, {vr(R0,2)}, {vr(R0+8,2)}")
    g(f"v_pk_add_f32 {vr(R0+2,2)}, {vr(R0+2,2)}, {vr(R0+10,2)}")
    for k in range(4): g(f"v_bfi_b32 v{R0+k}, v{VMSK}, v{VTAG}, v{R0+k}")
    g.vmem(f"buffer_store_dwordx4 {vr(R0,4)}, v{V_PKW}, {sr(S_WS,4)}, 0 offen sc1", "pk_st")
    Z0 = R0 + 16
    g.wait_lg(("rz", 3))
    g(f"v_pk_add_f32 {vr(Z0,2)}, {vr(Z0,2)}, {vr(Z0+4,2)}")
    g(f"v_pk_add_f32 {vr(Z0+2,2)}, {vr(Z0+2,2)}, {vr(Z0+6,2)}")
    g(f"v_pk_add_f32 {vr(Z0+8,2)}, {vr(Z0+8,2)}, {vr(Z0+12,2)}")
    g(f"v_pk_add_f32 {vr(Z0+10,2)}, {vr(Z0+10,2)}, {vr(Z0+14,2)}")
    g(f"v_pk_add_f32 {vr(Z0,2)}, {vr(Z0,2)}, {vr(Z0+8,2)}")
    g(f"v_pk_add_f32 {vr(Z0+2,2)}, {vr(Z0+2,2)}, {vr(Z0+10,2)}")
    for k in range(4): g(f"v_bfi_b32 v{Z0+k}, v{VMSK}, v{VTAG}, v{Z0+k}")
    g(f"s_mov_b64 exec, {sr(S_MI0,2)}")
    g.vmem(f"buffer_store_dwordx4 {vr(Z0,4)}, v{V_PZW}, {sr(S_WS,4)}, 0 offen sc1", "pz_st")
    g(f"s_mov_b64 exec, 1")
    g.vmem(f"buffer_store_dword v{VXV}, v{V_ZERO}, {sr(S_WS,4)}, s{S_XW} offen sc1", "xt_st")
    g(f"s_mov_b64 exec, -1")
    if opt.pfo == 9:
        g.vmem(f"buffer_load_dword v{V_DUM}, v{VPFO2}, {sr(S_WO,4)}, 0 offen", "pf")
    g.stamp("published")
    for n in range(3, PQ): q_fn(n, 0)(); q_fn(n, 1)()
    mf = []; fixed = {}; fill = []
    for n in range(NQ):
        j, h = divmod(n, 4)
        r = QR + (n % NQR) * 4
        for rt in range(2):
            c = "0" if j == 0 else vr(accq(rt, h), 4)
            mf.append(f"v_mfma_f32_16x16x32_bf16 {vr(accq(rt,h),4)}, {vr(r,4)}, {ar(xa(j,rt),4)}, {c}")
        m = n + PQ
        if m < NQ:
            if m % (8 * SQ) == 0:
                fx(2 * n, lambda m=m: g.need(fill, ("wq", min(m // 8 + SQ - 1, 7)), 2))
                fx(2 * n, lambda: g("s_barrier"))
            fx(2 * n, q_fn(m, 0)); fx(2 * n + 1, q_fn(m, 1))
        if n in (16, 32, 48): fx(2 * n, lambda n=n: g.stamp(f"Eq{n}"))
        if n % 2 == 1 and n + 1 < NQ:
            fx(2 * n + 1, lambda n=n: g.wait_lg(("bq", min(n + 2, NQ - 1))))
    EPSQ = 60
    for k in range(4): fill.append((0, lambda k=k: g(f"v_mov_b32 v{EPSQ+k}, {EPS:#x}"), False))
    for u in range(8): fill += wo_fill(g, u, opt.wo0)
    if opt.woq_after:
        fill += partial_fill(g, opt.plstart)
        for u in range(8, opt.nwoq): fill += wo_fill(g, u, 2 * (8 * SQ - PQ) + 1)
    else:
        for u in range(8, opt.nwoq): fill += wo_fill(g, u, 2 * (8 * SQ - PQ) + 1)
        fill += partial_fill(g, opt.plstart)
    g.wait_lg(("bq", 1))
    g.stream(mf, fixed, fill, cap=opt.cap, vsp=opt.vspq)
    g.stamp("q_end")
    g.flush(fill)
    g("s_nop 7")
    PQB = V_E
    pairs = [(accq(rt, h) + 2 * p, PQB + (rt * 4 + h) * 2 + p) for rt in range(2) for h in range(4) for p in range(2)]
    phi_block(g, pairs, TM)
    g.stamp("phiq_end")
    B = V_ACCKV
    g("L_chkA:")
    g("s_waitcnt vmcnt(0)")
    g.vm = []
    if opt.chk == 4:
        regs = [ZL + 2, ZL + 3] + [B + k for k in range(64)]
    else:
        regs = [B + 4 * k + 3 for k in range(16)]
    g(f"v_xor_b32 v{ACC}, v{VTAG}, v{ZL}")
    g(f"v_xor_b32 v{VF}, v{VTAG}, v{ZL+(1 if opt.chk == 4 else 3)}")
    for n, rg in enumerate(regs):
        a = ACC if n % 2 == 0 else VF
        g(f"v_bitop3_b32 v{a}, v{a}, v{rg}, v{VTAG} bitop3:0xf6")
    g(f"v_or_b32 v{ACC}, v{ACC}, v{VF}")
    g(f"v_and_b32 v{ACC}, 0xff, v{ACC}")
    g(f"v_cmp_ne_u32 vcc, 0, v{ACC}")
    g(f"s_add_u32 s{S_CNTA}, s{S_CNTA}, 1")
    g("s_cbranch_vccz L_okA")
    g(f"s_cmp_gt_u32 s{S_CNTA}, {opt.spin}")
    g("s_cbranch_scc1 L_okA")
    for _, f, _l in partial_fill(g, 0): f()
    g("s_branch L_chkA")
    g("L_okA:")
    g.vm = []
    g.stamp("okA")
    mid = []
    for u in range(opt.nwoq, 14): mid += wo_fill(g, u, 0)
    va = []
    for sh in (8, 4, 2, 1):
        for k in range(4):
            va.append(f"v_add_f32_dpp v{ZL+k}, v{ZL+k}, v{ZL+k} row_ror:{sh} row_mask:0xf bank_mask:0xf")
    for st in (32, 16, 8, 4):
        for k in range(0, st, 2):
            va.append(f"v_pk_add_f32 {vr(B+k,2)}, {vr(B+k,2)}, {vr(B+k+st,2)}")
    for n_, l in enumerate(va):
        g(l)
        if mid and n_ % opt.midgap == 0: mid.pop(0)[1]()
    g(f"v_cvt_pk_bf16_f32 v{B+6}, v{ZL}, v{ZL+1}")
    g(f"v_cvt_pk_bf16_f32 v{B+7}, v{ZL+2}, v{ZL+3}")
    g(f"v_cvt_pk_bf16_f32 v{B+4}, v{B}, v{B+1}")
    g(f"v_cvt_pk_bf16_f32 v{B+5}, v{B+2}, v{B+3}")
    g.lds(f"ds_write_b128 v{V_SHW}, {vr(B+4,4)}", "sw")
    g(f"v_cmp_ne_u32 vcc, v{VRD}, v{VXV}")
    g("s_nop 1")
    g(f"s_cmp_eq_u64 vcc, 0")
    g(f"s_cselect_b32 s{S_LOC}, {opt.local}, 0")
    g("s_waitcnt lgkmcnt(0)")
    g("s_barrier")
    KZ = B + 16
    for h in range(4):
        g.lds(f"ds_read_b128 {vr(KZ+h*4,4)}, v{V_L16} offset:{L_SHR + h*1024}", ("sr", h))
    g.stamp("Pshr"); g.stamp("Eshr")
    for u in range(14, 16): mid += wo_fill(g, u, 0)
    if opt.midpre: g.flush(mid)
    NUM = V_ACCQ; DEN = V_RING
    for h in range(4):
        g.wait_lg(("sr", h))
        for rt in range(2):
            pq = PQB + (rt * 4 + h) * 2
            g(f"v_mfma_f32_16x16x16_bf16 {vr(DEN+(rt*4+h)*4,4)}, {vr(KZ+h*4+2,2)}, {vr(pq,2)}, {vr(EPSQ,4)}")
            g(f"v_mfma_f32_16x16x16_bf16 {vr(NUM+(rt*4+h)*4,4)}, {vr(KZ+h*4,2)}, {vr(pq,2)}, 0")
    OB = V_RING + 32
    order = [(rt, h) for h in range(4) for rt in range(2)]
    for (rt, h) in order[:4]:
        d = DEN + (rt * 4 + h) * 4
        g(f"v_rcp_f32 v{d}, v{d}")
    g("s_nop 3")
    for (rt, h) in order[4:]:
        d = DEN + (rt * 4 + h) * 4
        g(f"v_rcp_f32 v{d}, v{d}")
    sts = []
    if opt.rest:
        g(f"v_mov_b32 v{VPK}, v{VOPA}")
        g(f"v_mov_b32 v{VPZ}, v{VRA}")
    for (rt, h) in order:
        d = DEN + (rt * 4 + h) * 4; nn = NUM + (rt * 4 + h) * 4; ob = OB + (rt * 4 + h) * 2
        g(f"v_pk_mul_f32 {vr(nn,2)}, {vr(nn,2)}, {vr(d,2)} op_sel_hi:[1,0]")
        g(f"v_pk_mul_f32 {vr(nn+2,2)}, {vr(nn+2,2)}, {vr(d,2)} op_sel_hi:[1,0]")
        g(f"v_cvt_pk_bf16_f32 v{ob}, v{nn}, v{nn+1}")
        g(f"v_cvt_pk_bf16_f32 v{ob+1}, v{nn+2}, v{nn+3}")
        if h % 2 == 1:
            so = "0" if rt == 0 else f"s{S_16K}"
            sts.append(f"buffer_store_dwordx4 {vr(OB+(rt*4+h-1)*2,4)}, v{VPK if opt.rest else VOPA}, {sr(S_WS,4)}, {so} offen offset:{(h//2)*1024}")
    for rt in range(2):
        b_ = OB + rt * 8; c_ = TM + rt
        g(f"v_add3_u32 v{c_}, v{b_}, v{b_+1}, v{VTAG}")
        g(f"v_add3_u32 v{c_}, v{b_+2}, v{b_+3}, v{c_}")
        g(f"v_add3_u32 v{c_}, v{b_+4}, v{b_+5}, v{c_}")
        g(f"v_add3_u32 v{c_}, v{b_+6}, v{b_+7}, v{c_}")
        sts.append(f"buffer_store_dword v{c_}, v{VPZ if opt.rest else VRA}, {sr(S_WS,4)}, 0 offen offset:{rt*2048}")
    g(f"s_cmp_eq_u32 s{S_LOC}, 0")
    g("s_cbranch_scc1 L_st_remote")
    for l in sts: g.vmem(l + " " + opt.locflag, "o_st")
    g("L_st_done:")
    g.remote = sts
    g.stamp("o_stored")
    g.flush(mid)
    NPRE = opt.npre
    OF = 64; ACO = 224; WOV = 128
    def wofrag(u, ct):
        return ("a", (u * 8 + ct) * 4) if u < 8 else ("v", WOV + ((u - 8) * 8 + ct) * 4)
    def wo_fn(u, ct, dst, half):
        k, r = dst
        f_ = ar if k == "a" else vr
        def f():
            off = g.ldsaddr(V_BO + ct, lds_wo(u), 4096)
            g.lds(f"ds_read_b64_tr_b16 {f_(r+half*2,2)}, v{V_BO+ct} offset:{off+half*4096}", ("wo", u, ct))
        return f
    CKR = TM + 2
    def of_txt(u, fl=None): return f"buffer_load_dwordx4 {vr(OF+u*4,4)}, v{A0}, {sr(S_WS,4)}, {SOK[u//4]} offen offset:{(u%4)*1024} {opt.ldflag if fl is None else fl}"
    def ck_txt(c, fl=None): return f"buffer_load_dword v{CKR+c}, v{A1}, {sr(S_WS,4)}, 0 offen offset:{c*256} {opt.ldflag if fl is None else fl}"
    lds_ = []
    for c in range(8):
        lds_.append(V(lambda c=c: g.vmem(of_txt(2*c), ("of", c))))
        lds_.append(V(lambda c=c: g.vmem(of_txt(2*c+1), ("of", c))))
        lds_.append(V(lambda c=c: g.vmem(ck_txt(c), ("of", c))))
    def chk_ops(c):
        b_ = OF + c * 8
        return [f"v_add3_u32 v{ACC}, v{b_}, v{b_+1}, v{VTAG}",
                f"v_add3_u32 v{ACC}, v{b_+2}, v{b_+3}, v{ACC}",
                f"v_add3_u32 v{ACC}, v{b_+4}, v{b_+5}, v{ACC}",
                f"v_add3_u32 v{ACC}, v{b_+6}, v{b_+7}, v{ACC}",
                f"v_cmp_ne_u32 vcc, v{ACC}, v{CKR+c}"]
    g.retry = (of_txt, ck_txt, chk_ops)
    NP = opt.npre * 8
    allf = [(u, ct) for u in range(16) for ct in range(8)]
    NVR = 20 if opt.rest else 24
    def pos(n):
        if n < 64: return ("a", n * 4)
        if n < 64 + NVR:
            r = WOV + (n - 64) * 4
            if opt.rest and r >= OB: r += 16
            return ("v", r)
        return ("a", (n - 64 - NVR) * 4)
    nof = 0
    for n in range(NP):
        u, ct = allf[n]
        wo_fn(u, ct, pos(n), 0)(); wo_fn(u, ct, pos(n), 1)()
        if n + 1 >= opt.ofat and nof < opt.ofpre and (n + 1 - opt.ofat) % opt.ofgap == 0:
            if nof == 0: g.stamp("of_issue")
            lds_.pop(0)(); nof += 1
    if nof == 0: g.stamp("of_issue")
    while nof < opt.ofpre: lds_.pop(0)(); nof += 1
    g.wait_vm(("wo", 15))
    g("s_barrier")
    g.stamp("preread")
    mf = []; fixed = {}; fill = [(0, f, False) for f in lds_]
    if opt.rest:
        for q, l in enumerate(g.remote):
            fill.append((opt.rest + 3 * q, V(lambda l=l: g.vmem(l + " sc1", "rest")), False))
    for n, (u, ct) in enumerate(allf):
        k, r = pos(n)
        f_ = ar if k == "a" else vr
        c = "0" if u == 0 else vr(ACO + ct * 4, 4)
        mf.append(f"v_mfma_f32_16x16x32_bf16 {vr(ACO+ct*4,4)}, {f_(r,4)}, {vr(OF+u*4,4)}, {c}")
        if n in (1, 32, 64, 96): fx(n, lambda n=n: g.stamp(f"Pm{n}"))
        if n % 16 == 0:
            cc = n // 16
            ops = chk_ops(cc)
            g0 = max(n - 6, 0)
            fx(g0, lambda cc=cc: g.need(fill, ("of", cc), 3))
            for q, l in enumerate(ops):
                fx(max(n - 6 + q, 0), lambda l=l: g(l))
            fx(max(n - 1, 0), lambda cc=cc: (g(f"s_cbranch_vccnz L_rt{cc}"), g(f"L_back{cc}:")))
        if ct == 0 and n >= NP:
            fx(n, lambda u=u: g.wait_lg(("wo", u, 7)))
    reads = [(n, half) for n in range(NP, 128) for half in range(2)]
    gap = 0; cnt = 0
    def capg(gp):
        m16 = gp % 16
        if m16 == 10: return 0
        if m16 >= 10 or gp % 8 == 0: return 1
        return opt.rpg
    for idx, (n, half) in enumerate(reads):
        u, ct = allf[n]
        gmin = (n - 64 - NVR + 1) if n >= 64 + NVR else opt.rd0
        if gmin > gap: gap = gmin; cnt = 0
        while cnt >= capg(gap): gap += 1; cnt = 0
        assert gap < u * 8 - 4, (gap, n, u)
        fx(gap, wo_fn(u, ct, pos(n), half)); cnt += 1
    g.wait_lg(("wo",) + allf[NP - 1])
    g.stream(mf, fixed, fill, cap=opt.cap, vsp=opt.vsp2)
    assert not fill
    g.stamp("mfma2")
    g("s_nop 7")
    OP = 64
    for p in range(4):
        a0 = ACO + (2 * p) * 4; a1 = ACO + (2 * p + 1) * 4; o = OP + p * 4
        g(f"v_cvt_pk_bf16_f32 v{o}, v{a0}, v{a0+1}")
        g(f"v_cvt_pk_bf16_f32 v{o+1}, v{a0+2}, v{a0+3}")
        g(f"v_cvt_pk_bf16_f32 v{o+2}, v{a1}, v{a1+1}")
        g(f"v_cvt_pk_bf16_f32 v{o+3}, v{a1+2}, v{a1+3}")
        g("s_nop 1")
        g(f"v_permlane16_swap_b32 v{o}, v{o+2}")
        g(f"v_permlane16_swap_b32 v{o+1}, v{o+3}")
        g.vmem(f"buffer_store_dwordx4 {vr(o,4)}, v{VO}, {sr(S_OUT,4)}, 0 offen offset:{p*64} {opt.outflag}", "out")
    g("s_cmp_ge_u32 s2, 2")
    g("s_cbranch_scc1 L_noep")
    g(f"s_cmp_lg_u32 s{S_WV}, 0")
    g("s_cbranch_scc1 L_noep")
    g(f"s_lshl_b32 s{S_T0}, s{S_BR}, 7")
    g(f"s_add_u32 s{S_T0}, s{S_T0}, {WS_EP}")
    g(f"v_mov_b32 v{VF}, 0")
    g(f"v_cmp_eq_u32 vcc, 0, v{V_LANE}")
    g(f"s_and_saveexec_b64 {sr(S_EX,2)}, vcc")
    g(f"buffer_store_dword v{VTAG}, v{VF}, {sr(S_WS,4)}, s{S_T0} offen sc1")
    g(f"s_mov_b64 exec, {sr(S_EX,2)}")
    g("L_noep:")
    if opt.ts:
        g("s_waitcnt vmcnt(0)")
        g.stamp("out_done")
        g(f"s_lshl_b32 s{S_T0}, s2, 2")
        g(f"s_add_u32 s{S_T0}, s{S_T0}, s{S_WV}")
        g(f"s_lshl_b32 s{S_T0}, s{S_T0}, 7")
        g(f"s_add_u32 s{S_T0}, s{S_T0}, {WS_TS}")
        g(f"v_mov_b32 v{A1}, 0")
        g(f"v_cmp_eq_u32 vcc, 0, v{V_LANE}")
        g(f"s_and_saveexec_b64 {sr(S_EX,2)}, vcc")
        for i in range(16):
            if i < g.nstamp:
                g(f"v_mov_b32 v64, s{64+2*i}"); g(f"v_mov_b32 v65, s{65+2*i}")
            elif i == 15:
                g(f"s_lshl_b32 s{S_LOC}, s{S_LOC}, 8"); g(f"s_add_u32 s{S_CNTA}, s{S_CNTA}, s{S_LOC}"); g(f"v_mov_b32 v64, s{S_CNTA}"); g(f"v_mov_b32 v65, s{S_CNT}")
            else:
                g(f"v_mov_b32 v64, s64"); g(f"v_mov_b32 v65, s65")
            g(f"buffer_store_dwordx2 v[64:65], v{A1}, {sr(S_WS,4)}, s{S_T0} offen offset:{i*8}")
            g("s_nop 1")
    g("L_end:")
    g("s_endpgm")
    g("L_st_remote:")
    for l in g.remote: g(l + " sc1")
    g("s_branch L_st_done")
    of_txt, ck_txt, chk_ops = g.retry
    for c in range(8):
        g(f"L_rt{c}:")
        g(f"s_add_u32 s{S_CNT}, s{S_CNT}, 1")
        g(f"s_cmp_gt_u32 s{S_CNT}, {opt.spin}")
        g(f"s_cbranch_scc1 L_back{c}")
        g(of_txt(2 * c, 'sc1')); g(of_txt(2 * c + 1, 'sc1')); g(ck_txt(c, 'sc1'))
        g("s_waitcnt vmcnt(0)")
        for l in chk_ops(c): g(l)
        g("s_nop 1")
        g(f"s_cbranch_vccnz L_rt{c}")
        g(f"s_branch L_back{c}")
    g("L_code_end:")
    g(f""".section .rodata,"a"
.p2align 6
.amdhsa_kernel {NAME}
  .amdhsa_next_free_vgpr 512
  .amdhsa_next_free_sgpr 102
  .amdhsa_accum_offset 256
  .amdhsa_group_segment_fixed_size 0
  .amdhsa_kernarg_size 72
  .amdhsa_user_sgpr_count 2
  .amdhsa_user_sgpr_kernarg_segment_ptr 1
  .amdhsa_system_sgpr_workgroup_id_x 1
.end_amdhsa_kernel""")
    print("late-issued fillers:", getattr(g, "late", 0), file=sys.stderr)
    if opt.ts:
        g("; stamps: " + " ".join(g.names))
    return g.text()

def parser():
    ap = argparse.ArgumentParser()
    ap.add_argument("-o", default="k.s")
    ap.add_argument("--ts", action="store_true")
    ap.add_argument("--tsk", action="store_true")
    ap.add_argument("--tsp", action="store_true")
    ap.add_argument("--cyc", action="store_true")
    ap.add_argument("--tse", action="store_true")
    ap.add_argument("--plrot", type=int, default=1)
    ap.add_argument("--map", default="B")
    ap.add_argument("--rota", type=int, default=4)
    ap.add_argument("--rotb", type=int, default=4)
    ap.add_argument("--rotc", type=int, default=2)
    ap.add_argument("--depth", type=int, default=3)
    ap.add_argument("--pf", type=int, default=6)
    ap.add_argument("--cap", type=int, default=2)
    ap.add_argument("--rest", type=int, default=0)
    ap.add_argument("--local", type=int, default=1)
    ap.add_argument("--locflag", default="")
    ap.add_argument("--ldflag", default="nt")
    ap.add_argument("--ipf", type=int, default=2)
    ap.add_argument("--ofpre", type=int, default=15)
    ap.add_argument("--vsp2", type=int, default=2)
    ap.add_argument("--rd0", type=int, default=24)
    ap.add_argument("--midgap", type=int, default=2)
    ap.add_argument("--midpre", type=int, default=1)
    ap.add_argument("--rpg", type=int, default=2)
    ap.add_argument("--sent", type=int, default=3)
    ap.add_argument("--ofat", type=int, default=32)
    ap.add_argument("--ofgap", type=int, default=2)
    ap.add_argument("--init", type=int, default=0)
    ap.add_argument("--nwoq", type=int, default=11)
    ap.add_argument("--woq_after", type=int, default=0)
    ap.add_argument("--plfirst", type=int, default=0)
    ap.add_argument("--pollat", type=int, default=52)
    ap.add_argument("--bgap", type=int, default=41)
    ap.add_argument("--d2", type=int, default=4)
    ap.add_argument("--d2from", type=int, default=2)
    ap.add_argument("--wq0", type=int, default=200)
    ap.add_argument("--wqs", type=int, default=6)
    ap.add_argument("--wqepi", type=int, default=2)
    ap.add_argument("--wo0", type=int, default=0)
    ap.add_argument("--pfq", type=int, default=4)
    ap.add_argument("--pfo", type=int, default=8)
    ap.add_argument("--opf", type=int, default=1)
    ap.add_argument("--vsp", type=int, default=2)
    ap.add_argument("--vspq", type=int, default=2)
    ap.add_argument("--qsync", type=int, default=4)
    ap.add_argument("--plstart", type=int, default=80)
    ap.add_argument("--plsolo", type=int, default=1)
    ap.add_argument("--npre", type=int, default=8)
    ap.add_argument("--s0", type=int, default=2)
    ap.add_argument("--flagat", type=int, default=40)
    ap.add_argument("--polla", type=int, default=0)
    ap.add_argument("--chk", type=int, default=1)
    ap.add_argument("--spin", type=int, default=20000)
    ap.add_argument("--xflag", default="nt")
    ap.add_argument("--wflag", default="")
    ap.add_argument("--qflag", default="")
    ap.add_argument("--oflag", default="")
    ap.add_argument("--outflag", default="sc0 sc1")
    return ap
if __name__ == "__main__":
    opt = parser().parse_args()
    open(opt.o, "w").write(gen(opt))
```

```python
import sys, argparse
NAME = "concat_heads__linear_attn_block__linear_attn_block__prompt_kernel"

WS_O    = 0
WS_PK   = 4 << 20
WS_PZ   = 5 << 20
WS_FL   = (5 << 20) + (64 << 10)
WS_EP   = WS_FL + (16 << 10)
WS_TS   = 6 << 20
WS_CK   = 7 << 20
WS_XT   = (7 << 20) + (512 << 10)
WS_SIZE = 8 << 20
LOG2E = 0x3fb8aa3b
EPS   = 0x358637bd
ONE_EPS = 0x3f800008

class G:
    def __init__(self, opt):
        self.L = []; self.opt = opt; self.vm = []; self.lg = []; self.nstamp = 0; self.names = []
        self.hi = {}
    def __call__(self, s): self.L.append(s)
    def vmem(self, s, tag=None): self.L.append(s); self.vm.append(tag)
    def lds(self, s, tag=None): self.L.append(s); self.lg.append(tag)
    def _n_after(self, lst, tags):
        idx = max(i for i, t in enumerate(lst) if t in tags)
        return len(lst) - 1 - idx
    def wait_vm(self, *tags):
        n = self._n_after(self.vm, tags); self.L.append(f"s_waitcnt vmcnt({min(n,63)})")
    def wait_lg(self, *tags):
        n = self._n_after(self.lg, tags); self.L.append(f"s_waitcnt lgkmcnt({min(n,15)})")
    def stamp(self, name):
        if not self.opt.ts: return
        if self.opt.tsk and not (name.startswith("B") or name in ("start", "sync0", "kv_end", "published", "q_end", "out_done")): return
        if not self.opt.tsk and name.startswith("B"): return
        if self.opt.tsp and name in ("kernarg", "sync0", "kv_end", "published", "q_end", "phiq_end"): return
        if not self.opt.tsp and name.startswith("P"): return
        if not self.opt.tse and name.startswith("E"): return
        if self.opt.tse and name in ("kernarg", "sync0", "of_issue", "preread", "mfma2", "Ephik"): return
        i = self.nstamp; self.nstamp += 1; self.names.append(name)
        assert i < 13
        self.L.append(f"{'s_memtime' if self.opt.cyc else 's_memrealtime'} s[{64+2*i}:{65+2*i}]")
        self.L.append("s_waitcnt lgkmcnt(0)")
    def ldsaddr(self, vreg, byte, span=4096):
        cur = self.hi.get(vreg, 0)
        if not (cur <= byte and byte + span < cur + 0x10000):
            new = byte & ~0x7fff
            self.L.append(f"v_add_u32 v{vreg}, {(new - cur) & 0xffffffff:#x}, v{vreg}")
            self.hi[vreg] = cur = new
        return byte - cur
    def stream(self, mfmas, fixed, fillers, cap=2, vsp=1):
        lastv = -100
        for k, m in enumerate(mfmas):
            n0 = len(self.L)
            for fn in fixed.get(k, []): fn()
            while fillers and fillers[0][0] <= k and len(self.L) - n0 < cap:
                _, fn, last = fillers[0]
                isv = getattr(fn, "isv", False)
                if isv and k - lastv < vsp: break
                fillers.pop(0)
                fn()
                if isv: lastv = k
                if last: break
            self.L.append(m)
    def need(self, fillers, tag, count):
        while self.vm.count(tag) < count:
            _, fn, last = fillers.pop(0)
            fn()
            if last: self.L.append("s_nop 0")
            self.late = getattr(self, "late", 0) + 1
        self.wait_vm(tag)
    def flush(self, fillers):
        for _, fn, last in fillers:
            fn()
            if last: self.L.append("s_nop 0")
        del fillers[:]
    def text(self): return "\n".join(self.L) + "\n"

def vr(b, n=1): return f"v{b}" if n == 1 else f"v[{b}:{b+n-1}]"
def ar(b, n=1): return f"a{b}" if n == 1 else f"a[{b}:{b+n-1}]"
def sr(b, n=1): return f"s{b}" if n == 1 else f"s[{b}:{b+n-1}]"

S_SX, S_SW = 4, 12
S_W2K, S_W1K = 22, 23
S_X, S_W, S_WO, S_OUT, S_WS = 24, 28, 32, 36, 40
S_BR, S_RB, S_CG, S_WV = 44, 45, 46, 47
S_T0, S_T1, S_T2, S_T3 = 48, 49, 50, 51
S_16K = 52; S_TAG = 53; S_RB64, S_CB = 54, 55
S_LOG2E, S_C1, S_EPS = 56, 58, 60
S_CNT = 62; S_SOFF = 63
S_EX = 96; S_CNTA = 98; S_ROT = 99; S_W4K = 100; S_SO2 = 101
S_4K, S_8K, S_12K = 3, 20, 21
V_LANE, V_G, V_I = 1, 2, 3
V_BKV = 4
V_BQ = 12
V_BO = 16
V_XR = 24
V_WQ = 26
V_WO = 28
VEP = 30
VO = 31
TM = 32
A0, A1 = 44, 45
VPK, VPZ, VTAG, VMSK = 46, 47, 48, 49
ACC, VF, VFA = 50, 51, 56
ZL = 52
VPFQ, VPFO, VPFD, VPFO2 = 42, 43, 41, 57
VOPA, VRA, VRD, VXA, VXV = 240, 241, 242, 243, 244
V_LRW, V_LZW, V_LRR, V_LZR, V_PZW, V_PKW, V_SHW, V_L16, V_DUM, V_ZERO = 245, 246, 247, 248, 249, 250, 251, 252, 253, 254
S_XW, S_LOC = 94, 95
S_MI0 = 90
A_ONES, A_EPS = 128, 132
V_PPF = 255
V_XD = 56
V_WD = 60
V_ACCKV = 64; V_ACCQ = 128; V_RING = 160; NRING = 16; V_E = 224
T = 32
def acckv(rt, ct): return V_ACCKV + (rt * 8 + ct) * 4
def accq(rt, h): return V_ACCQ + (rt * 4 + h) * 4
def xa(j, rt): return (j * 2 + rt) * 4

SLOT = 32768
def slot_of(t): return (t % 5) * SLOT
def lds_q(tq): return 3 * SLOT + tq * 8192
L_RED = 0; L_REDZ = 16 << 10; L_SHR = 20 << 10
def lds_wo(u):
    if u < 8: return SLOT + u * 8192
    if u < 11: return 3 * SLOT + (u - 8) * 8192
    if u < 13: return (u - 11) * 8192
    if u == 13: return 24576
    return 3 * SLOT + (u - 11) * 8192
LDS_BYTES = 160 << 10

def prologue(g):
    o = g.opt
    g("s_cmp_ge_u32 s2, 256")
    g("s_cbranch_scc1 L_end")
    g.stamp("start")
    g("s_load_dwordx16 s[4:19], s[0:1], 0")
    g("s_load_dwordx2 s[20:21], s[0:1], 64")
    if o.ipf:
        g("s_getpc_b64 s[22:23]")
        g("L_pc:")
        g(f"s_lshr_b32 s{S_T0}, s2, 3")
        g(f"s_lshl_b32 s{S_T0}, s{S_T0}, 2")
        g(f"v_lshrrev_b32 v{T+1}, 6, v0")
        g(f"v_add_u32 v{T+1}, s{S_T0}, v{T+1}")
        g(f"v_mul_u32_u24 v{T+1}, {o.ipf*128}, v{T+1}")
        g(f"v_and_b32 v{T+2}, 63, v0")
        g(f"v_lshl_add_u32 v{T+1}, v{T+2}, 7, v{T+1}")
        g(f"v_min_u32 v{T+1}, L_code_end-L_pc-4, v{T+1}")
        g(f"s_mov_b64 exec, {(1 << o.ipf) - 1}")
        g.vmem(f"global_load_dword v{V_DUM}, v{T+1}, s[22:23]", "ipf")
        g("s_mov_b64 exec, -1")
    g(f"v_lshrrev_b32 v{T}, 6, v0")
    g(f"v_and_b32 v{V_LANE}, 63, v0")
    g(f"v_readfirstlane_b32 s{S_WV}, v{T}")
    g(f"s_and_b32 s{S_BR}, s2, 1")
    g(f"s_lshr_b32 s{S_T0}, s2, 3")
    g(f"s_and_b32 s{S_T1}, s{S_T0}, 7")
    g(f"s_lshr_b32 s{S_CB}, s{S_T0}, 3")
    if o.map == "A":
        g(f"s_bfe_u32 s{S_T2}, s2, 0x10001")
        g(f"s_bfe_u32 s{S_T3}, s2, 0x10002")
        g(f"s_lshl_b32 s{S_RB}, s{S_T2}, 3")
        g(f"s_add_u32 s{S_RB}, s{S_RB}, s{S_T1}")
        g(f"s_lshl_b32 s{S_CG}, s{S_T3}, 2")
        g(f"s_add_u32 s{S_CG}, s{S_CG}, s{S_CB}")
        g(f"s_lshl_b32 s{S_RB64}, s{S_T2}, 4")
        g(f"s_lshl_b32 s{S_T3}, s{S_T3}, 3")
        g(f"s_add_u32 s{S_RB64}, s{S_RB64}, s{S_T3}")
        g(f"s_add_u32 s{S_RB64}, s{S_RB64}, s{S_T1}")
    else:
        g(f"s_bfe_u32 s{S_T2}, s2, 0x20001")
        g(f"s_lshl_b32 s{S_RB}, s{S_T2}, 2")
        g(f"s_add_u32 s{S_RB}, s{S_RB}, s{S_CB}")
        g(f"s_add_u32 s{S_CG}, s{S_T1}, {o.cgshift}")
        g(f"s_and_b32 s{S_CG}, s{S_CG}, 7")
        g(f"s_lshl_b32 s{S_RB64}, s{S_T2}, 3")
        g(f"s_add_u32 s{S_RB64}, s{S_RB64}, s{S_T1}")
    g(f"s_mul_i32 s{S_T1}, s{S_T1}, {o.rota}")
    g(f"s_mul_i32 s{S_T2}, s{S_CB}, {o.rotb}")
    g(f"s_add_u32 s{S_ROT}, s{S_T1}, s{S_T2}")
    if o.rotc:
        g(f"s_bfe_u32 s{S_T2}, s2, 0x20001")
        g(f"s_mul_i32 s{S_T2}, s{S_T2}, {o.rotc}")
        g(f"s_add_u32 s{S_ROT}, s{S_ROT}, s{S_T2}")
    g(f"s_and_b32 s{S_ROT}, s{S_ROT}, 7")
    g(f"v_lshrrev_b32 v{V_G}, 4, v{V_LANE}")
    g(f"v_and_b32 v{V_I}, 15, v0")
    g(f"s_lshl_b32 s{S_W4K}, s{S_WV}, 12")
    g(f"v_lshrrev_b32 v{T}, 3, v{V_LANE}")
    g(f"v_lshlrev_b32 v{T}, 10, v{T}")
    g(f"v_and_b32 v{T+1}, 7, v{V_LANE}")
    g(f"v_xor_b32 v{T+1}, v{T+1}, v{V_G}")
    g(f"s_lshl_b32 s{S_T0}, s{S_RB}, 17")
    g(f"s_lshl_b32 s{S_T1}, s{S_WV}, 15")
    g(f"s_add_u32 s{S_T0}, s{S_T0}, s{S_T1}")
    g(f"v_lshl_add_u32 v{V_XD}, v{T+1}, 4, v{T}")
    g(f"v_add_u32 v{V_XD}, s{S_T0}, v{V_XD}")
    g(f"v_xor_b32 v{V_XD+1}, 64, v{V_XD}")
    g(f"v_add_u32 v{V_XD+1}, {7168}, v{V_XD+1}")
    g(f"v_add_u32 v{V_XD+2}, {2*7168}, v{V_XD}")
    g(f"v_add_u32 v{V_XD+3}, {2*7168}, v{V_XD+1}")
    g(f"v_lshrrev_b32 v{T+1}, 1, v{V_I}")
    g(f"v_xor_b32 v{T+1}, v{V_G}, v{T+1}")
    g(f"v_lshrrev_b32 v{T+2}, 2, v{T+1}")
    g(f"v_lshlrev_b32 v{T+2}, 10, v{T+2}")
    g(f"v_and_b32 v{T+3}, 3, v{T+1}")
    g(f"v_lshl_add_u32 v{T+2}, v{T+3}, 5, v{T+2}")
    g(f"v_and_b32 v{T+3}, 1, v{V_I}")
    g(f"v_lshl_add_u32 v{T+2}, v{T+3}, 4, v{T+2}")
    g(f"v_xor_b32 v{T+5}, 1024, v{T+2}")
    g(f"s_lshl_b32 s{S_T2}, s{S_WV}, 4")
    g(f"v_add_u32 v{T+4}, s{S_T2}, v{V_G}")
    g(f"v_mul_u32_u24 v{T+4}, 3072, v{T+4}")
    g(f"s_lshl_b32 s{S_T2}, s{S_CG}, 7")
    g(f"s_add_u32 s{S_T3}, s{S_T2}, 1024")
    g(f"v_add3_u32 v{V_WD}, v{T+4}, v{T+2}, s{S_T3}")
    g(f"v_add_u32 v{V_WD+1}, {12288-1024}, v{V_WD}")
    g(f"s_add_u32 s{S_T3}, s{S_T3}, {2*(12288-1024)}")
    g(f"v_add3_u32 v{V_WD+2}, v{T+4}, v{T+5}, s{S_T3}")
    g(f"v_add_u32 v{V_WD+3}, {12288-1024}, v{V_WD+2}")
    g(f"s_lshl_b32 s{S_T0}, s{S_ROT}, 7")
    g(f"s_mul_i32 s{S_T1}, s{S_ROT}, 196608")
    g(f"s_mov_b32 m0, s{S_W4K}")
    g("s_waitcnt lgkmcnt(0)")
    g.stamp("kernarg")
    g(f"s_cmp_eq_u32 s{S_BR}, 0")
    g(f"s_cselect_b32 s{S_X}, s4, s10")
    g(f"s_cselect_b32 s{S_X+1}, s5, s11")
    g(f"s_mov_b32 s{S_X+2}, {2048*512*2}")
    g(f"s_mov_b32 s{S_X+3}, 0x20000")
    g(f"s_cselect_b32 s{S_W}, s6, s12")
    g(f"s_cselect_b32 s{S_W+1}, s7, s13")
    g(f"s_mov_b32 s{S_W+2}, {512*1536*2}")
    g(f"s_mov_b32 s{S_W+3}, 0x20000")
    for m in range(4):
        g.vmem(f"buffer_load_dwordx4 v{V_XD+m}, {sr(S_X,4)}, s{S_T0} offen offset:{m*1024} {o.xflag} lds", ("st", 0))
    g(f"s_add_u32 m0, s{S_W4K}, 16384")
    g(f"s_cselect_b32 s{S_WO}, s8, s14") if False else None
    g("s_nop 0")
    for i in range(4):
        g.vmem(f"buffer_load_dwordx4 v{V_WD+i}, {sr(S_W,4)}, s{S_T1} offen offset:{i*1024} {o.wflag} lds", ("st", 0))
    g(f"s_cmp_eq_u32 s{S_BR}, 0")
    g(f"s_cselect_b32 s{S_WO}, s8, s14")
    g(f"s_cselect_b32 s{S_WO+1}, s9, s15")
    g(f"s_mov_b32 s{S_WO+2}, {512*512*2}")
    g(f"s_mov_b32 s{S_WO+3}, 0x20000")
    g(f"s_mov_b32 s{S_OUT}, s16")
    g(f"s_mov_b32 s{S_OUT+1}, s17")
    g(f"s_mov_b32 s{S_OUT+2}, {2048*1024*2}")
    g(f"s_mov_b32 s{S_OUT+3}, 0x20000")
    g(f"s_mov_b32 s{S_WS}, s20")
    g(f"s_mov_b32 s{S_WS+1}, s21")
    g(f"s_mov_b32 s{S_WS+2}, {WS_SIZE}")
    g(f"s_mov_b32 s{S_WS+3}, 0x20000")
    for t in range(8):
        g(f"s_add_u32 s{S_T0}, s{S_ROT}, {t}")
        g(f"s_and_b32 s{S_T0}, s{S_T0}, 7")
        g(f"s_lshl_b32 s{S_SX+t}, s{S_T0}, 7")
        g(f"s_mul_i32 s{S_SW+t}, s{S_T0}, 196608")

def prologue2(g):
    g(f"s_mov_b32 s{S_16K}, 16384")
    g(f"s_mov_b32 s{S_4K}, 4096")
    g(f"s_mov_b32 s{S_8K}, 8192")
    g(f"s_mov_b32 s{S_12K}, 12288")
    g(f"s_lshl_b32 s{S_W2K}, s{S_WV}, 11")
    g(f"s_lshl_b32 s{S_W1K}, s{S_WV}, 10")
    for r, val in ((S_LOG2E, LOG2E), (S_C1, ONE_EPS), (S_EPS, EPS)):
        g(f"s_mov_b32 s{r}, {val:#x}")
        g(f"s_mov_b32 s{r+1}, {val:#x}")
    g(f"v_lshrrev_b32 v{T}, 1, v{V_I}")
    g(f"v_xor_b32 v{T}, v{T}, v{V_G}")
    g(f"v_lshlrev_b32 v{T+1}, 7, v{V_I}")
    g(f"v_lshl_add_u32 v{T}, v{T}, 4, v{T+1}")
    g(f"v_add_u32 v{V_XR}, s{S_W4K}, v{T}")
    g(f"v_xor_b32 v{V_XR+1}, 64, v{V_XR}")
    g(f"v_lshrrev_b32 v{T}, 2, v{V_I}")
    g(f"v_and_b32 v{T+1}, 3, v{V_I}")
    g(f"v_and_b32 v{T+2}, 1, v{V_G}")
    g(f"v_lshl_add_u32 v{T+2}, v{T+2}, 2, v{T}")
    g(f"v_lshl_add_u32 v{T+3}, v{V_G}, 3, v{T}")
    g(f"v_lshlrev_b32 v{T+4}, 8, v{T+3}")
    g(f"v_lshl_add_u32 v{T+4}, v{T+1}, 3, v{T+4}")
    for ct in range(8):
        g(f"v_xor_b32 v{T+5}, {ct}, v{T+2}")
        g(f"v_lshl_add_u32 v{V_BKV+ct}, v{T+5}, 5, v{T+4}")
    g(f"v_lshlrev_b32 v{T+4}, 7, v{T+3}")
    g(f"v_lshl_add_u32 v{T+4}, v{T+1}, 3, v{T+4}")
    g(f"v_lshrrev_b32 v{T+5}, 1, v{T}")
    g(f"v_and_b32 v{T+6}, 1, v{V_G}")
    g(f"v_lshl_add_u32 v{T+5}, v{T+6}, 1, v{T+5}")
    g(f"v_add_u32 v{T+4}, {3*SLOT}, v{T+4}")
    for ct in range(4):
        g(f"v_xor_b32 v{T+6}, {ct}, v{T+5}")
        g(f"v_lshl_add_u32 v{V_BQ+ct}, v{T+6}, 5, v{T+4}")
        g.hi[V_BQ + ct] = 3 * SLOT
    g(f"v_lshl_add_u32 v{T+3}, v{V_G}, 2, v{T}")
    g(f"v_lshlrev_b32 v{T+4}, 8, v{T+3}")
    g(f"v_lshl_add_u32 v{T+4}, v{T+1}, 3, v{T+4}")
    g(f"v_add_u32 v{T+4}, {SLOT}, v{T+4}")
    for ct in range(8):
        g(f"v_xor_b32 v{T+5}, {ct}, v{T+2}")
        g(f"v_lshl_add_u32 v{V_BO+ct}, v{T+5}, 5, v{T+4}")
        g.hi[V_BO + ct] = SLOT
    g(f"v_lshrrev_b32 v{T}, 3, v{V_I}")
    g(f"v_lshl_add_u32 v{T}, v{V_G}, 1, v{T}")
    g(f"s_lshl_b32 s{S_T3}, s{S_WV}, 4")
    g(f"v_add_u32 v{T}, s{S_T3}, v{T}")
    g(f"v_mul_u32_u24 v{T}, 3072, v{T}")
    g(f"v_bfe_u32 v{T+1}, v{V_I}, 1, 2")
    g(f"v_and_b32 v{T+2}, 1, v{V_G}")
    g(f"v_xor_b32 v{T+1}, v{T+1}, v{T+2}")
    g(f"v_lshlrev_b32 v{T+1}, 5, v{T+1}")
    g(f"v_and_b32 v{T+3}, 1, v{V_I}")
    g(f"v_lshl_add_u32 v{T+1}, v{T+3}, 4, v{T+1}")
    g(f"v_xor_b32 v{T+2}, 64, v{T+1}")
    g(f"s_lshl_b32 s{S_T2}, s{S_CG}, 7")
    g(f"v_add3_u32 v{V_WQ}, v{T}, v{T+1}, s{S_T2}")
    g(f"s_add_u32 s{S_T2}, s{S_T2}, {8*3072-1024}")
    g(f"v_add3_u32 v{V_WQ+1}, v{T}, v{T+2}, s{S_T2}")
    g(f"s_lshl_b32 s{S_T0}, s{S_WV}, 3")
    g(f"v_add_u32 v{T}, s{S_T0}, v{V_G}")
    g(f"v_lshlrev_b32 v{T}, 10, v{T}")
    g(f"v_lshrrev_b32 v{T+1}, 1, v{V_I}")
    g(f"v_xor_b32 v{T+1}, v{T+1}, v{V_G}")
    g(f"v_lshlrev_b32 v{T+1}, 5, v{T+1}")
    g(f"v_lshl_add_u32 v{T+1}, v{T+3}, 4, v{T+1}")
    g(f"v_xor_b32 v{T+2}, 128, v{T+1}")
    g(f"s_lshl_b32 s{S_T0}, s{S_CB}, 8")
    g(f"v_add3_u32 v{V_WO}, v{T}, v{T+1}, s{S_T0}")
    g(f"s_add_u32 s{S_T0}, s{S_T0}, {4096-1024}")
    g(f"v_add3_u32 v{V_WO+1}, v{T}, v{T+2}, s{S_T0}")
    g(f"s_lshr_b32 s{S_T0}, s2, 3")
    g(f"s_lshl_b32 s{S_T0}, s{S_T0}, 2")
    g(f"s_add_u32 s{S_T0}, s{S_T0}, s{S_WV}")
    g(f"s_lshl_b32 s{S_T0}, s{S_T0}, 2")
    g(f"v_add_u32 v{T}, s{S_T0}, v{V_G}")
    g(f"v_lshlrev_b32 v{T+1}, 6, v{V_I}")
    g(f"v_lshl_add_u32 v{VPFO}, v{T}, 10, v{T+1}")
    g(f"v_mul_u32_u24 v{T}, 3072, v{T}")
    g(f"v_add_u32 v{VPFQ}, v{T}, v{T+1}")
    g(f"s_lshl_b32 s{S_T0}, s{S_BR}, 21")
    g(f"s_lshl_b32 s{S_T1}, s{S_RB}, 17")
    g(f"s_add_u32 s{S_T0}, s{S_T0}, s{S_T1}")
    g(f"s_lshl_b32 s{S_T1}, s{S_WV}, 15")
    g(f"s_add_u32 s{S_T0}, s{S_T0}, s{S_T1}")
    g(f"s_lshl_b32 s{S_T1}, s{S_CG}, 11")
    g(f"s_add_u32 s{S_T0}, s{S_T0}, s{S_T1}")
    g(f"v_lshl_add_u32 v{VOPA}, v{V_LANE}, 4, s{S_T0}")
    g(f"s_lshl_b32 s{S_T0}, s{S_BR}, 7")
    g(f"s_lshl_b32 s{S_T1}, s{S_RB}, 3")
    g(f"s_add_u32 s{S_T0}, s{S_T0}, s{S_T1}")
    g(f"s_lshl_b32 s{S_T1}, s{S_WV}, 1")
    g(f"s_add_u32 s{S_T0}, s{S_T0}, s{S_T1}")
    g(f"s_lshl_b32 s{S_T0}, s{S_T0}, 3")
    g(f"s_add_u32 s{S_T0}, s{S_T0}, s{S_CG}")
    g(f"s_lshl_b32 s{S_T0}, s{S_T0}, 8")
    g(f"s_add_u32 s{S_T0}, s{S_T0}, {WS_CK}")
    g(f"v_lshl_add_u32 v{VRA}, v{V_LANE}, 2, s{S_T0}")
    g(f"s_lshl_b32 s{S_T0}, s{S_BR}, 5")
    g(f"s_add_u32 s{S_T1}, s{S_T0}, s{S_RB64}")
    g(f"s_lshl_b32 s{S_T1}, s{S_T1}, 2")
    g(f"s_add_u32 s{S_T1}, s{S_T1}, s{S_CB}")
    g(f"s_lshl_b32 s{S_T1}, s{S_T1}, 5")
    g(f"s_add_u32 s{S_T1}, s{S_T1}, s{S_WV}")
    g(f"s_lshl_b32 s{S_T1}, s{S_T1}, 2")
    g(f"s_add_u32 s{S_XW}, s{S_T1}, {WS_XT}")
    g(f"s_lshl_b32 s{S_T1}, s{S_RB}, 1")
    g(f"s_add_u32 s{S_T0}, s{S_T0}, s{S_T1}")
    g(f"s_lshr_b32 s{S_T1}, s{S_WV}, 1")
    g(f"s_add_u32 s{S_T0}, s{S_T0}, s{S_T1}")
    g(f"s_lshl_b32 s{S_T0}, s{S_T0}, 9")
    g(f"s_add_u32 s{S_T0}, s{S_T0}, {WS_XT}")
    g(f"v_lshl_add_u32 v{VXA}, v{V_G}, 7, s{S_T0}")
    g(f"s_getreg_b32 s{S_LOC}, hwreg(HW_REG_XCC_ID)")
    g(f"s_and_b32 s{S_LOC}, s{S_LOC}, 15")
    g(f"s_lshl_b32 s{S_T0}, s{S_BR}, 7")
    g(f"s_add_u32 s{S_T0}, s{S_T0}, {WS_EP}")
    g(f"v_mov_b32 v{VF}, 0")
    g.vmem(f"buffer_load_dword v{VEP}, v{VF}, {sr(S_WS,4)}, s{S_T0} offen sc1", "ep")

def prologue3(g):
    g(f"v_lshlrev_b32 v{V_L16}, 4, v{V_LANE}")
    g(f"v_mov_b32 v{V_ZERO}, 0")
    g(f"v_mov_b32 v{VMSK}, 0xff")
    g(f"v_cmp_eq_u32 {sr(S_MI0,2)}, 0, v{V_I}")
    g(f"v_add_u32 v{V_LRW}, s{S_W4K}, v{V_L16}")
    g(f"s_lshl_b32 s{S_T0}, s{S_WV}, 8")
    g(f"s_add_u32 s{S_T0}, s{S_T0}, {L_REDZ}")
    g(f"v_lshl_add_u32 v{V_LZW}, v{V_G}, 4, s{S_T0}")
    g(f"v_add_u32 v{V_LRR}, s{S_W1K}, v{V_L16}")
    g(f"s_lshl_b32 s{S_T0}, s{S_WV}, 6")
    g(f"s_add_u32 s{S_T0}, s{S_T0}, {L_REDZ}")
    g(f"v_lshl_add_u32 v{V_LZR}, v{V_G}, 4, s{S_T0}")
    g(f"s_add_u32 s{S_T0}, s{S_W1K}, {L_SHR}")
    g(f"v_add_u32 v{V_SHW}, s{S_T0}, v{V_L16}")
    g(f"s_lshl_b32 s{S_T0}, s{S_BR}, 3")
    g(f"s_add_u32 s{S_T0}, s{S_T0}, s{S_CG}")
    g(f"s_lshl_b32 s{S_T0}, s{S_T0}, 2")
    g(f"s_add_u32 s{S_T0}, s{S_T0}, s{S_WV}")
    g(f"s_lshl_b32 s{S_T1}, s{S_T0}, 14")
    g(f"s_add_u32 s{S_T1}, s{S_T1}, {WS_PK}")
    g(f"s_lshl_b32 s{S_T2}, s{S_T0}, 10")
    g(f"s_add_u32 s{S_T2}, s{S_T2}, {WS_PZ}")
    g(f"v_add_u32 v{VPK}, s{S_T1}, v{V_L16}")
    g(f"s_lshl_b32 s{S_T1}, s{S_RB}, 10")
    g(f"v_add_u32 v{V_PKW}, s{S_T1}, v{VPK}")
    g(f"v_lshlrev_b32 v{VPZ}, 6, v{V_I}")
    g(f"v_lshl_add_u32 v{VPZ}, v{V_G}, 4, v{VPZ}")
    g(f"v_add_u32 v{VPZ}, s{S_T2}, v{VPZ}")
    g(f"s_lshl_b32 s{S_T3}, s{S_RB}, 6")
    g(f"s_add_u32 s{S_T2}, s{S_T2}, s{S_T3}")
    g(f"v_lshl_add_u32 v{V_PZW}, v{V_G}, 4, s{S_T2}")
    g(f"v_readfirstlane_b32 s{S_T0}, v{VPK}")
    g(f"v_readfirstlane_b32 s{S_T1}, v{VPZ}")
    g(f"s_and_b32 s{S_T2}, s{S_RB}, 3")
    g(f"s_lshl_b32 s{S_T3}, s{S_T2}, 12")
    g(f"s_add_u32 s{S_T0}, s{S_T0}, s{S_T3}")
    g(f"v_lshl_add_u32 v{V_PPF}, v{V_LANE}, 7, s{S_T0}")
    g(f"s_lshl_b32 s{S_T3}, s{S_T2}, 8")
    g(f"s_add_u32 s{S_T1}, s{S_T1}, s{S_T3}")
    g(f"v_and_b32 v{T}, 1, v{V_LANE}")
    g(f"v_lshl_add_u32 v{T}, v{T}, 7, s{S_T1}")
    g(f"v_cmp_gt_u32 vcc, 32, v{V_LANE}")
    g("s_nop 1")
    g(f"v_cndmask_b32 v{V_PPF}, v{T}, v{V_PPF}, vcc")
    g(f"v_mov_b32 v{T}, 0x3f803f80")
    for k in range(4):
        g(f"v_accvgpr_write_b32 a{A_ONES+k}, v{T}")
    g(f"s_lshl_b32 s{S_T3}, s{S_BR}, 21")
    g(f"s_lshl_b32 s{S_T1}, s{S_RB64}, 16")
    g(f"s_add_u32 s{S_T3}, s{S_T3}, s{S_T1}")
    g(f"s_lshl_b32 s{S_T1}, s{S_WV}, 14")
    g(f"s_add_u32 s{S_T3}, s{S_T3}, s{S_T1}")
    g(f"v_add_u32 v{A0}, s{S_T3}, v{V_L16}")
    g(f"s_lshl_b32 s{S_T0}, s{S_BR}, 7")
    g(f"s_lshl_b32 s{S_T1}, s{S_RB64}, 2")
    g(f"s_add_u32 s{S_T0}, s{S_T0}, s{S_T1}")
    g(f"s_add_u32 s{S_T0}, s{S_T0}, s{S_WV}")
    g(f"s_lshl_b32 s{S_T0}, s{S_T0}, 11")
    g(f"s_add_u32 s{S_T0}, s{S_T0}, {WS_CK}")
    g(f"v_lshl_add_u32 v{A1}, v{V_LANE}, 2, s{S_T0}")
    g(f"s_lshl_b32 s{S_T0}, s{S_RB64}, 17")
    g(f"s_lshl_b32 s{S_T1}, s{S_WV}, 15")
    g(f"s_add_u32 s{S_T0}, s{S_T0}, s{S_T1}")
    g(f"s_lshl_b32 s{S_T1}, s{S_BR}, 10")
    g(f"s_add_u32 s{S_T0}, s{S_T0}, s{S_T1}")
    g(f"s_lshl_b32 s{S_T1}, s{S_CB}, 8")
    g(f"s_add_u32 s{S_T0}, s{S_T0}, s{S_T1}")
    g(f"v_lshlrev_b32 v{VO}, 11, v{V_I}")
    g(f"v_and_b32 v{T}, 1, v{V_G}")
    g(f"v_lshl_add_u32 v{VO}, v{T}, 5, v{VO}")
    g(f"v_lshrrev_b32 v{T}, 1, v{V_G}")
    g(f"v_lshl_add_u32 v{VO}, v{T}, 4, v{VO}")
    g(f"v_add_u32 v{VO}, s{S_T0}, v{VO}")
    g(f"s_mov_b32 s{S_CNT}, 0")
    g(f"s_mov_b32 s{S_CNTA}, 0")


def V(fn):
    fn.isv = True
    return fn

def stage_fill(g, t, e):
    o = g.opt; sl = slot_of(t); F = []
    F.append((e, lambda: g(f"s_add_u32 m0, s{S_W4K}, {sl}"), True))
    for m in range(4):
        F.append((e, V(lambda m=m: g.vmem(f"buffer_load_dwordx4 v{V_XD+m}, {sr(S_X,4)}, s{S_SX+t} offen offset:{m*1024} {o.xflag if t < 4 else o.xflag2} lds", ("st", t))), False))
    F.append((e, lambda: g(f"s_add_u32 m0, s{S_W4K}, {sl+16384}"), True))
    for i in range(4):
        F.append((e, V(lambda i=i: g.vmem(f"buffer_load_dwordx4 v{V_WD+i}, {sr(S_W,4)}, s{S_SW+t} offen offset:{i*1024} {o.wflag} lds", ("st", t))), False))
    return F

def sent_fill(g, e):
    F = []
    for rt in range(2):
        for uu in range(2):
            so = "0" if rt == 0 else f"s{S_16K}"
            F.append((e, V(lambda so=so, uu=uu: g.vmem(f"buffer_store_dwordx4 {vr(VSEN,4)}, v{VOPA}, {sr(S_WS,4)}, {so} offen offset:{uu*1024} sc1", "sent")), False))
    return F

def wq_fill(g, tq, e):
    F = [(e, lambda: g(f"s_add_u32 m0, s{S_W2K}, {lds_q(tq)}"), True)]
    for i in range(2):
        F.append((e, V(lambda i=i: g.vmem(f"buffer_load_dwordx4 v{V_WQ+i}, {sr(S_W,4)}, s{S_SW+tq} offen offset:{i*1024} {g.opt.qflag} lds", ("wq", tq))), False))
    return F

def wo_fill(g, u, e):
    F = [(e, lambda: g(f"s_mov_b32 s{S_SOFF}, {u*32768}"), False),
         (e, lambda: g(f"s_add_u32 m0, s{S_W2K}, {lds_wo(u)}"), True)]
    for i in range(2):
        F.append((e, V(lambda i=i: g.vmem(f"buffer_load_dwordx4 v{V_WO+i}, {sr(S_WO,4)}, s{S_SOFF} offen offset:{i*1024} {g.opt.oflag} lds", ("wo", u))), False))
    return F

def phi2(g, src, tmp, dst):
    u, a = tmp, tmp + 2
    g(f"v_pk_mul_f32 {vr(u,2)}, {vr(src,2)}, {sr(S_LOG2E,2)}")
    g(f"v_pk_add_f32 {vr(a,2)}, {vr(src,2)}, {sr(S_C1,2)}")
    g(f"v_exp_f32 v{u}, v{u} clamp")
    g(f"v_exp_f32 v{u+1}, v{u+1} clamp")
    return [f"v_pk_add_f32 {vr(u,2)}, {vr(u,2)}, {sr(S_EPS,2)}",
            f"v_max_f32 v{a}, v{a}, v{u}",
            f"v_max_f32 v{a+1}, v{a+1}, v{u+1}",
            f"v_cvt_pk_bf16_f32 v{dst}, v{a}, v{a+1}"]

def phi_block(g, pairs, tmpbase, ntmp=3, hook=None):
    pend = None
    for n, (src, dst) in enumerate(pairs):
        tail = phi2(g, src, tmpbase + (n % ntmp) * 4, dst)
        if pend:
            for s in pend: g(s)
        pend = tail
        if hook: hook(n)
    g("s_nop 0")
    for s in pend: g(s)

SOK = ["0", f"s{S_4K}", f"s{S_8K}", f"s{S_12K}"]
def partial_fill(g, e, fl=None):
    fl = g.opt.plflag if fl is None else fl
    F = [(e, V(lambda: g.vmem(f"buffer_load_dwordx4 {vr(ZL,4)}, v{VPZ}, {sr(S_WS,4)}, 0 offen {fl}", "pl")), False)]
    F.append((e, V(lambda: g.vmem(f"buffer_load_dword v{VRD}, v{VXA}, {sr(S_WS,4)}, 0 offen {fl}", "pl")), False))
    for p in range(16):
        F.append((e, V(lambda p=p: g.vmem(f"buffer_load_dwordx4 {vr(V_ACCKV+p*4,4)}, v{VPK}, {sr(S_WS,4)}, {SOK[p//4]} offen offset:{(p%4)*1024} {fl}", "pl")), g.opt.plsolo))
    return F

def gen(opt):
    g = G(opt)
    g(f"; @launch grid=(256,1,1) block=(256,1,1) lds={LDS_BYTES}")
    g('.amdgcn_target "amdgcn-amd-amdhsa--gfx950"')
    g(".text")
    g(f".globl {NAME}\n.p2align 8\n.type {NAME},@function\n{NAME}:")
    prologue(g)
    D = opt.depth
    for t in range(1, D):
        g.flush(stage_fill(g, t, 0))
        if t == 1: prologue2(g)
    if D == 1: prologue2(g)
    prologue3(g)
    P = opt.pf
    NF = 128
    def xr_fn(t, jj, rt):
        def f():
            off = g.ldsaddr(V_XR + jj, slot_of(t) + rt * 2048, 0)
            g.lds(f"ds_read_b128 {ar(xa(2*t+jj, rt),4)}, v{V_XR+jj} offset:{off}", ("xf", t, jj, rt))
        return f
    def kv_fn(n, half):
        j, ct = divmod(n, 8)
        r = V_RING + (n % NRING) * 4 + half * 2
        def f():
            off = g.ldsaddr(V_BKV + ct, slot_of(j // 2) + 16384 + (j % 2) * 8192, 1024)
            g.lds(f"ds_read_b64_tr_b16 {vr(r,2)}, v{V_BKV+ct} offset:{off+half*1024}", ("bkv", n))
        return f
    mf = []
    for n in range(NF):
        j, ct = divmod(n, 8)
        r = V_RING + (n % NRING) * 4
        for rt in range(2):
            c = "0" if j == 0 else vr(acckv(rt, ct), 4)
            mf.append(f"v_mfma_f32_16x16x32_bf16 {vr(acckv(rt,ct),4)}, {ar(xa(j,rt),4)}, {vr(r,4)}, {c}")
    fixed = {}; fill = []
    def fx(k, fn): fixed.setdefault(k, []).append(fn)
    nxt = D; wqn = 0
    for _ in range(opt.init):
        fill += stage_fill(g, nxt, 0); nxt += 1
    for n in range(NF):
        m = n + P
        if m < NF:
            if m % 16 == 0:
                t = m // 16
                fx(2 * n, lambda t=t: g.need(fill, ("st", t), 8))
                fx(2 * n, lambda: g("s_barrier"))
                fx(2 * n, lambda t=t: g.stamp(f"B{t}"))
                for q, (jj, rt) in enumerate([(0, 0), (0, 1), (1, 0), (1, 1)]):
                    fx(2 * n + 1 + 2 * q + (0 if q < 2 else 6), xr_fn(t, jj, rt))
                while nxt < 8 and (nxt < 5 or nxt - 5 <= t - 2) and nxt <= t + (D if t < opt.d2from else opt.d2) - 1:
                    fill += stage_fill(g, nxt, 2 * n + 1); nxt += 1
                if t == opt.pfq:
                    fill.append((2 * n + 1, V(lambda: g.vmem(f"buffer_load_dword v{V_DUM}, v{VPFQ}, {sr(S_W,4)}, 0 offen", "pf")), False))
                if t == opt.pfo:
                    fill.append((2 * n + 1, V(lambda: g.vmem(f"buffer_load_dword v{V_DUM}, v{VPFO}, {sr(S_WO,4)}, 0 offen", "pf")), False))
                if nxt == 8:
                    while wqn < 8 and (3 + wqn // 4) <= t - 2:
                        fill += wq_fill(g, wqn, max(2 * n + 1, opt.wq0 + wqn * opt.wqs)); wqn += 1
            fx(2 * n, kv_fn(m, 0)); fx(2 * n + 1, kv_fn(m, 1))
        if n % 2 == 1 and n + 1 < NF:
            def wfn(n=n):
                tags = [("bkv", min(n + 2, NF - 1))]
                j2 = (n + 2) // 8
                for jn in {(n + 1) // 8, min(n + 2, NF - 1) // 8}:
                    tags += [("xf", jn // 2, jn % 2, 0), ("xf", jn // 2, jn % 2, 1)]
                g.wait_lg(*tags)
            fx(2 * n + 1, wfn)
    tagops = [lambda: g.wait_vm("ep"), lambda: g(f"v_readfirstlane_b32 s{S_TAG}, v{VEP}"),
              lambda: g(f"s_add_u32 s{S_TAG}, s{S_TAG}, 0x9e3779b1"), lambda: g(f"v_mov_b32 v{VTAG}, s{S_TAG}"),
              lambda: g(f"s_andn2_b32 s{S_T3}, s{S_TAG}, 15"), lambda: g(f"s_or_b32 s{S_T3}, s{S_T3}, s{S_LOC}"),
              lambda: g(f"v_mov_b32 v{VXV}, s{S_T3}"), lambda: g(f"v_mov_b32 v{VPFO2}, v{VPFO}")]
    for q, fn in enumerate(tagops): fx(244 + q + (q > 1), fn)
    g.wait_vm(("st", 0))
    g("s_barrier")
    g.stamp("sync0")
    for jj, rt in [(0, 0), (0, 1)]: xr_fn(0, jj, rt)()
    for n in range(2): kv_fn(n, 0)(); kv_fn(n, 1)()
    for jj, rt in [(1, 0), (1, 1)]: xr_fn(0, jj, rt)()
    for n in range(2, P): kv_fn(n, 0)(); kv_fn(n, 1)()
    g.wait_lg(("bkv", 1))
    g.stream(mf, fixed, fill, cap=opt.cap, vsp=opt.vsp)
    g.stamp("kv_end")
    PK = V_E; VV = V_RING
    assert wqn == 8 and nxt == 8
    if not opt.wqepi: g.flush(fill)
    if opt.pfo == 8:
        fill.append((0, V(lambda: g.vmem(f"buffer_load_dword v{V_DUM}, v{VPFO2}, {sr(S_WO,4)}, 0 offen", "pf")), False))
    KVP = V_RING + 20; ZP = V_RING + 36
    pairs = [(acckv(rt, h) + 2 * p, PK + h * 4 + rt * 2 + p) for h in range(4) for rt in range(2) for p in range(2)]
    def cv(h):
        for rt in range(2):
            for p in range(2):
                s = acckv(rt, 4 + h) + 2 * p
                g(f"v_cvt_pk_bf16_f32 v{VV + h*4 + rt*2 + p}, v{s}, v{s+1}")
    def mfk(h):
        g(f"v_mfma_f32_16x16x32_bf16 {vr(KVP+h*4,4)}, {vr(PK+h*4,4)}, {vr(VV+h*4,4)}, 0")
        g(f"v_mfma_f32_16x16x32_bf16 {vr(ZP+h*4,4)}, {vr(PK+h*4,4)}, {ar(A_ONES,4)}, 0")
    def wr(h):
        g.lds(f"ds_write_b128 v{V_LRW}, {vr(KVP+h*4,4)} offset:{h*1024}", "rw")
        g(f"s_mov_b64 exec, {sr(S_MI0,2)}")
        g.lds(f"ds_write_b128 v{V_LZW}, {vr(ZP+h*4,4)} offset:{h*64}", "rw")
        g(f"s_mov_b64 exec, -1")
    def hook(n):
        for _ in range(opt.wqepi):
            if fill:
                _e, fn, last = fill.pop(0); fn()
                if last: break
        if n % 4 == 2: cv(n // 4)
        if n >= 5 and n % 4 == 1: mfk(n // 4 - 1)
        if n >= 7 and n % 4 == 3: wr(n // 4 - 1)
    phi_block(g, pairs, TM, hook=hook)
    g.flush(fill)
    g.stamp("Ephik")
    g("s_nop 1")
    mfk(3)
    g("s_nop 7")
    wr(3)
    SQ = opt.qsync
    g.need(fill, ("wq", SQ - 1), 2)
    g("s_waitcnt lgkmcnt(0)")
    g("s_barrier")
    g.stamp("Ebar")
    R0 = V_RING
    for w2 in range(4):
        g.lds(f"ds_read_b128 {vr(R0+w2*4,4)}, v{V_LRR} offset:{w2*4096}", ("rr", w2))
    for w2 in range(4):
        g.lds(f"ds_read_b128 {vr(R0+16+w2*4,4)}, v{V_LZR} offset:{w2*256}", ("rz", w2))
    QR, NQR = V_RING + 32, 8
    PQ = 6
    NQ = 64
    def q_fn(n, half):
        j, h = divmod(n, 4)
        r = QR + (n % NQR) * 4 + half * 2
        def f():
            off = g.ldsaddr(V_BQ + h, lds_q(j // 2) + (j % 2) * 4096, 512)
            g.lds(f"ds_read_b64_tr_b16 {vr(r,2)}, v{V_BQ+h} offset:{off+half*512}", ("bq", n))
        return f
    for n in range(3): q_fn(n, 0)(); q_fn(n, 1)()
    g.wait_lg(("rr", 1))
    g(f"v_pk_add_f32 {vr(R0,2)}, {vr(R0,2)}, {vr(R0+4,2)}")
    g(f"v_pk_add_f32 {vr(R0+2,2)}, {vr(R0+2,2)}, {vr(R0+6,2)}")
    g.wait_lg(("rr", 3))
    g(f"v_pk_add_f32 {vr(R0+8,2)}, {vr(R0+8,2)}, {vr(R0+12,2)}")
    g(f"v_pk_add_f32 {vr(R0+10,2)}, {vr(R0+10,2)}, {vr(R0+14,2)}")
    g(f"v_pk_add_f32 {vr(R0,2)}, {vr(R0,2)}, {vr(R0+8,2)}")
    g(f"v_pk_add_f32 {vr(R0+2,2)}, {vr(R0+2,2)}, {vr(R0+10,2)}")
    for k in range(4): g(f"v_bfi_b32 v{R0+k}, v{VMSK}, v{VTAG}, v{R0+k}")
    g.vmem(f"buffer_store_dwordx4 {vr(R0,4)}, v{V_PKW}, {sr(S_WS,4)}, 0 offen {opt.pubflag}", "pk_st")
    Z0 = R0 + 16
    g.wait_lg(("rz", 3))
    g(f"v_pk_add_f32 {vr(Z0,2)}, {vr(Z0,2)}, {vr(Z0+4,2)}")
    g(f"v_pk_add_f32 {vr(Z0+2,2)}, {vr(Z0+2,2)}, {vr(Z0+6,2)}")
    g(f"v_pk_add_f32 {vr(Z0+8,2)}, {vr(Z0+8,2)}, {vr(Z0+12,2)}")
    g(f"v_pk_add_f32 {vr(Z0+10,2)}, {vr(Z0+10,2)}, {vr(Z0+14,2)}")
    g(f"v_pk_add_f32 {vr(Z0,2)}, {vr(Z0,2)}, {vr(Z0+8,2)}")
    g(f"v_pk_add_f32 {vr(Z0+2,2)}, {vr(Z0+2,2)}, {vr(Z0+10,2)}")
    for k in range(4): g(f"v_bfi_b32 v{Z0+k}, v{VMSK}, v{VTAG}, v{Z0+k}")
    g(f"s_mov_b64 exec, {sr(S_MI0,2)}")
    g.vmem(f"buffer_store_dwordx4 {vr(Z0,4)}, v{V_PZW}, {sr(S_WS,4)}, 0 offen {opt.pubflag}", "pz_st")
    g(f"s_mov_b64 exec, 1")
    g.vmem(f"buffer_store_dword v{VXV}, v{V_ZERO}, {sr(S_WS,4)}, s{S_XW} offen sc1", "xt_st")
    g(f"s_mov_b64 exec, -1")
    if opt.pfo == 9:
        g.vmem(f"buffer_load_dword v{V_DUM}, v{VPFO2}, {sr(S_WO,4)}, 0 offen", "pf")
    g.stamp("published")
    for n in range(3, PQ): q_fn(n, 0)(); q_fn(n, 1)()
    mf = []; fixed = {}; fill = []
    for n in range(NQ):
        j, h = divmod(n, 4)
        r = QR + (n % NQR) * 4
        for rt in range(2):
            c = "0" if j == 0 else vr(accq(rt, h), 4)
            mf.append(f"v_mfma_f32_16x16x32_bf16 {vr(accq(rt,h),4)}, {vr(r,4)}, {ar(xa(j,rt),4)}, {c}")
        m = n + PQ
        if m < NQ:
            if m % (8 * SQ) == 0:
                fx(2 * n, lambda m=m: g.need(fill, ("wq", min(m // 8 + SQ - 1, 7)), 2))
                fx(2 * n, lambda: g("s_barrier"))
            fx(2 * n, q_fn(m, 0)); fx(2 * n + 1, q_fn(m, 1))
        if n in (16, 32, 48): fx(2 * n, lambda n=n: g.stamp(f"Eq{n}"))
        if n % 2 == 1 and n + 1 < NQ:
            fx(2 * n + 1, lambda n=n: g.wait_lg(("bq", min(n + 2, NQ - 1))))
    EPSQ = 60
    if opt.ppf:
        def ppf():
            g("s_mov_b32 exec_hi, 3")
            g.vmem(f"buffer_load_dword v{V_DUM}, v{V_PPF}, {sr(S_WS,4)}, 0 offen sc1", "ppf")
            g("s_mov_b32 exec_hi, -1")
        fx(opt.ppf, ppf)
    for k in range(4): fill.append((0, lambda k=k: g(f"v_mov_b32 v{EPSQ+k}, {EPS:#x}"), False))
    for u in range(8): fill += wo_fill(g, u, opt.wo0)
    if opt.woq_after:
        fill += partial_fill(g, opt.plstart)
        for u in range(8, opt.nwoq): fill += wo_fill(g, u, 2 * (8 * SQ - PQ) + 1)
    else:
        for u in range(8, opt.nwoq): fill += wo_fill(g, u, 2 * (8 * SQ - PQ) + 1)
        fill += partial_fill(g, opt.plstart)
    g.wait_lg(("bq", 1))
    g.stream(mf, fixed, fill, cap=opt.cap, vsp=opt.vspq)
    g.stamp("q_end")
    if opt.plphi < 0: g.flush(fill)
    g("s_nop 7")
    PQB = V_E
    pairs = [(accq(rt, h) + 2 * p, PQB + (rt * 4 + h) * 2 + p) for rt in range(2) for h in range(4) for p in range(2)]
    def hookq(n):
        if n >= opt.plphi:
            for _ in range(opt.plper):
                if fill:
                    _e, fn, last = fill.pop(0); fn()
                    if last: break
    phi_block(g, pairs, TM, hook=hookq)
    g.flush(fill)
    g.stamp("phiq_end")
    B = V_ACCKV
    g("L_chkA:")
    g("s_waitcnt vmcnt(0)")
    g.vm = []
    if opt.chk == 4:
        regs = [ZL + 2, ZL + 3] + [B + k for k in range(64)]
    else:
        regs = [B + 4 * k + 3 for k in range(16)]
    g(f"v_xor_b32 v{ACC}, v{VTAG}, v{ZL}")
    g(f"v_xor_b32 v{VF}, v{VTAG}, v{ZL+(1 if opt.chk == 4 else 3)}")
    for n, rg in enumerate(regs):
        a = ACC if n % 2 == 0 else VF
        g(f"v_bitop3_b32 v{a}, v{a}, v{rg}, v{VTAG} bitop3:0xf6")
    g(f"v_or_b32 v{ACC}, v{ACC}, v{VF}")
    g(f"v_and_b32 v{ACC}, 0xff, v{ACC}")
    g(f"v_cmp_ne_u32 vcc, 0, v{ACC}")
    g(f"s_add_u32 s{S_CNTA}, s{S_CNTA}, 1")
    g("s_cbranch_vccz L_okA")
    g(f"s_cmp_gt_u32 s{S_CNTA}, {opt.spin}")
    g("s_cbranch_scc1 L_okA")
    for _, f, _l in partial_fill(g, 0, 'sc1'): f()
    g("s_branch L_chkA")
    g("L_okA:")
    g.vm = []
    g.stamp("okA")
    mid = []
    for u in range(opt.nwoq, 14): mid += wo_fill(g, u, 0)
    va = []
    for sh in (8, 4, 2, 1):
        for k in range(4):
            va.append(f"v_add_f32_dpp v{ZL+k}, v{ZL+k}, v{ZL+k} row_ror:{sh} row_mask:0xf bank_mask:0xf")
    for st in (32, 16, 8, 4):
        for k in range(0, st, 2):
            va.append(f"v_pk_add_f32 {vr(B+k,2)}, {vr(B+k,2)}, {vr(B+k+st,2)}")
    for n_, l in enumerate(va):
        g(l)
        if mid and n_ % opt.midgap == 0: mid.pop(0)[1]()
    g(f"v_cvt_pk_bf16_f32 v{B+6}, v{ZL}, v{ZL+1}")
    g(f"v_cvt_pk_bf16_f32 v{B+7}, v{ZL+2}, v{ZL+3}")
    g(f"v_cvt_pk_bf16_f32 v{B+4}, v{B}, v{B+1}")
    g(f"v_cvt_pk_bf16_f32 v{B+5}, v{B+2}, v{B+3}")
    g.lds(f"ds_write_b128 v{V_SHW}, {vr(B+4,4)}", "sw")
    g(f"v_cmp_ne_u32 vcc, v{VRD}, v{VXV}")
    g("s_nop 1")
    g(f"s_cmp_eq_u64 vcc, 0")
    g(f"s_cselect_b32 s{S_LOC}, {opt.local}, 0")
    g("s_waitcnt lgkmcnt(0)")
    g("s_barrier")
    KZ = B + 16
    for h in range(4):
        g.lds(f"ds_read_b128 {vr(KZ+h*4,4)}, v{V_L16} offset:{L_SHR + h*1024}", ("sr", h))
    g.stamp("Pshr"); g.stamp("Eshr")
    for u in range(14, 16): mid += wo_fill(g, u, 0)
    if opt.midpre: g.flush(mid)
    NUM = V_ACCQ; DEN = V_RING
    WOV = 128
    def wo_fn(u, ct, dst, half):
        k, r = dst
        f_ = ar if k == "a" else vr
        def f():
            off = g.ldsaddr(V_BO + ct, lds_wo(u), 4096)
            g.lds(f"ds_read_b64_tr_b16 {f_(r+half*2,2)}, v{V_BO+ct} offset:{off+half*4096}", ("wo", u, ct))
        return f
    early = [(n, half) for n in range(opt.early) for half in range(2)]
    for h in range(4):
        g.wait_lg(("sr", h))
        for rt in range(2):
            pq = PQB + (rt * 4 + h) * 2
            for l in (f"v_mfma_f32_16x16x16_bf16 {vr(DEN+(rt*4+h)*4,4)}, {vr(KZ+h*4+2,2)}, {vr(pq,2)}, {vr(EPSQ,4)}",
                      f"v_mfma_f32_16x16x16_bf16 {vr(NUM+(rt*4+h)*4,4)}, {vr(KZ+h*4,2)}, {vr(pq,2)}, 0"):
                g(l)
                for _ in range(2):
                    if early:
                        n, half = early.pop(0)
                        wo_fn(n // 8, n % 8, ("a", n * 4), half)()
    assert not early
    OB = V_RING + 32
    order = [(rt, h) for h in range(4) for rt in range(2)]
    for (rt, h) in order[:4]:
        d = DEN + (rt * 4 + h) * 4
        g(f"v_rcp_f32 v{d}, v{d}")
    g("s_nop 3")
    for (rt, h) in order[4:]:
        d = DEN + (rt * 4 + h) * 4
        g(f"v_rcp_f32 v{d}, v{d}")
    sts = []
    if opt.rest:
        g(f"v_mov_b32 v{VPK}, v{VOPA}")
        g(f"v_mov_b32 v{VPZ}, v{VRA}")
    for (rt, h) in order:
        d = DEN + (rt * 4 + h) * 4; nn = NUM + (rt * 4 + h) * 4; ob = OB + (rt * 4 + h) * 2
        g(f"v_pk_mul_f32 {vr(nn,2)}, {vr(nn,2)}, {vr(d,2)} op_sel_hi:[1,0]")
        g(f"v_pk_mul_f32 {vr(nn+2,2)}, {vr(nn+2,2)}, {vr(d,2)} op_sel_hi:[1,0]")
        g(f"v_cvt_pk_bf16_f32 v{ob}, v{nn}, v{nn+1}")
        g(f"v_cvt_pk_bf16_f32 v{ob+1}, v{nn+2}, v{nn+3}")
        if h % 2 == 1:
            so = "0" if rt == 0 else f"s{S_16K}"
            sts.append(f"buffer_store_dwordx4 {vr(OB+(rt*4+h-1)*2,4)}, v{VPK if opt.rest else VOPA}, {sr(S_WS,4)}, {so} offen offset:{(h//2)*1024}")
    for rt in range(2):
        b_ = OB + rt * 8; c_ = TM + rt
        g(f"v_add3_u32 v{c_}, v{b_}, v{b_+1}, v{VTAG}")
        g(f"v_add3_u32 v{c_}, v{b_+2}, v{b_+3}, v{c_}")
        g(f"v_add3_u32 v{c_}, v{b_+4}, v{b_+5}, v{c_}")
        g(f"v_add3_u32 v{c_}, v{b_+6}, v{b_+7}, v{c_}")
        sts.append(f"buffer_store_dword v{c_}, v{VPZ if opt.rest else VRA}, {sr(S_WS,4)}, 0 offen offset:{rt*2048}")
    g(f"s_cmp_eq_u32 s{S_LOC}, 0")
    g("s_cbranch_scc1 L_st_remote")
    for l in sts: g.vmem(l + " " + opt.locflag, "o_st")
    g("L_st_done:")
    g.remote = sts
    g.stamp("o_stored")
    g.flush(mid)
    NPRE = opt.npre
    OF = 64; ACO = 224
    CKR = TM + 2
    def of_txt(u, fl=None): return f"buffer_load_dwordx4 {vr(OF+u*4,4)}, v{A0}, {sr(S_WS,4)}, {SOK[u//4]} offen offset:{(u%4)*1024} {opt.ldflag if fl is None else fl}"
    def ck_txt(c, fl=None): return f"buffer_load_dword v{CKR+c}, v{A1}, {sr(S_WS,4)}, 0 offen offset:{c*256} {opt.ldflag if fl is None else fl}"
    lds_ = []
    for c in range(8):
        lds_.append(V(lambda c=c: g.vmem(of_txt(2*c), ("of", c))))
        lds_.append(V(lambda c=c: g.vmem(of_txt(2*c+1), ("of", c))))
        lds_.append(V(lambda c=c: g.vmem(ck_txt(c), ("of", c))))
    def chk_ops(c):
        b_ = OF + c * 8
        return [f"v_add3_u32 v{ACC}, v{b_}, v{b_+1}, v{VTAG}",
                f"v_add3_u32 v{ACC}, v{b_+2}, v{b_+3}, v{ACC}",
                f"v_add3_u32 v{ACC}, v{b_+4}, v{b_+5}, v{ACC}",
                f"v_add3_u32 v{ACC}, v{b_+6}, v{b_+7}, v{ACC}",
                f"v_cmp_ne_u32 vcc, v{ACC}, v{CKR+c}"]
    g.retry = (of_txt, ck_txt, chk_ops)
    NP = opt.npre * 8
    allf = [(u, ct) for u in range(16) for ct in range(8)]
    NVR = 20 if opt.rest else 24
    def pos(n):
        if n < 64: return ("a", n * 4)
        if n < 64 + NVR:
            r = WOV + (n - 64) * 4
            if opt.rest and r >= OB: r += 16
            return ("v", r)
        return ("a", (n - 64 - NVR) * 4)
    nof = 0
    for n in range(opt.early, NP):
        u, ct = allf[n]
        if n == 64:
            g.wait_vm(("wo", 15))
            g("s_barrier")
        wo_fn(u, ct, pos(n), 0)(); wo_fn(u, ct, pos(n), 1)()
        if n + 1 >= opt.ofat and nof < opt.ofpre and (n + 1 - opt.ofat) % opt.ofgap == 0:
            if nof == 0: g.stamp("of_issue")
            lds_.pop(0)(); nof += 1
    if nof == 0: g.stamp("of_issue")
    while nof < opt.ofpre: lds_.pop(0)(); nof += 1
    if NP <= 64:
        g.wait_vm(("wo", 15))
        g("s_barrier")
    g.stamp("preread")
    mf = []; fixed = {}; fill = [(0, f, False) for f in lds_]; busy = set()
    if opt.rest:
        for q, l in enumerate(g.remote):
            fill.append((opt.rest + 3 * q, V(lambda l=l: g.vmem(l + " sc1", "rest")), False))
    for n, (u, ct) in enumerate(allf):
        k, r = pos(n)
        f_ = ar if k == "a" else vr
        c = "0" if u == 0 else vr(ACO + ct * 4, 4)
        mf.append(f"v_mfma_f32_16x16x32_bf16 {vr(ACO+ct*4,4)}, {f_(r,4)}, {vr(OF+u*4,4)}, {c}")
        if n in (1, 32, 64, 96): fx(n, lambda n=n: g.stamp(f"Pm{n}"))
        if n % 16 == 0:
            cc = n // 16
            ops = chk_ops(cc)
            nb = min(n, opt.chk0 + opt.chkd * cc) if cc else 0
            g0 = max(nb - 6, 0)
            fx(g0, lambda cc=cc: g.need(fill, ("of", cc), 3))
            for q, l in enumerate(ops):
                fx(max(nb - 6 + q, 0), lambda l=l: g(l))
            fx(max(nb - 1, 0), lambda cc=cc: (g(f"s_cbranch_vccnz L_rt{cc}"), g(f"L_back{cc}:")))
            busy.update(range(max(nb - 6, 0), nb))
        if ct == 0 and n >= NP:
            fx(n, lambda u=u: g.wait_lg(("wo", u, 7)))
    if opt.wbl2:
        def wb():
            g(f"s_cmp_lt_u32 s{S_SO2}, {opt.wbn}")
            g("s_cbranch_scc0 L_nowb")
            g("buffer_wbl2 sc1")
            g("L_nowb:")
        fx(opt.wbl2, wb)
        g(f"s_lshl_b32 s{S_SO2}, s{S_WV}, 8")
        g(f"s_add_u32 s{S_SO2}, s{S_SO2}, s2")
    reads = [(n, half) for n in range(NP, 128) for half in range(2)]
    gap = 0; cnt = 0
    def capg(gp):
        if gp in busy and gp - 1 not in busy: return 0
        if gp in busy or gp % 8 == 0: return 1
        return opt.rpg
    for idx, (n, half) in enumerate(reads):
        u, ct = allf[n]
        gmin = (n - 64 - NVR + 1) if n >= 64 + NVR else opt.rd0
        if gmin > gap: gap = gmin; cnt = 0
        while cnt >= capg(gap): gap += 1; cnt = 0
        assert gap < u * 8 - 4, (gap, n, u)
        fx(gap, wo_fn(u, ct, pos(n), half)); cnt += 1
    g.wait_lg(("wo",) + allf[NP - 1])
    g.stream(mf, fixed, fill, cap=opt.cap, vsp=opt.vsp2)
    assert not fill
    g.stamp("mfma2")
    g("s_nop 7")
    OP = 64
    for p in range(4):
        a0 = ACO + (2 * p) * 4; a1 = ACO + (2 * p + 1) * 4; o = OP + p * 4
        g(f"v_cvt_pk_bf16_f32 v{o}, v{a0}, v{a0+1}")
        g(f"v_cvt_pk_bf16_f32 v{o+1}, v{a0+2}, v{a0+3}")
        g(f"v_cvt_pk_bf16_f32 v{o+2}, v{a1}, v{a1+1}")
        g(f"v_cvt_pk_bf16_f32 v{o+3}, v{a1+2}, v{a1+3}")
        g("s_nop 1")
        g(f"v_permlane16_swap_b32 v{o}, v{o+2}")
        g(f"v_permlane16_swap_b32 v{o+1}, v{o+3}")
        g.vmem(f"buffer_store_dwordx4 {vr(o,4)}, v{VO}, {sr(S_OUT,4)}, 0 offen offset:{p*64} {opt.outflag}", "out")
    g("s_cmp_ge_u32 s2, 2")
    g("s_cbranch_scc1 L_noep")
    g(f"s_cmp_lg_u32 s{S_WV}, 0")
    g("s_cbranch_scc1 L_noep")
    g(f"s_lshl_b32 s{S_T0}, s{S_BR}, 7")
    g(f"s_add_u32 s{S_T0}, s{S_T0}, {WS_EP}")
    g(f"v_mov_b32 v{VF}, 0")
    g(f"v_cmp_eq_u32 vcc, 0, v{V_LANE}")
    g(f"s_and_saveexec_b64 {sr(S_EX,2)}, vcc")
    g(f"buffer_store_dword v{VTAG}, v{VF}, {sr(S_WS,4)}, s{S_T0} offen sc1")
    g(f"s_mov_b64 exec, {sr(S_EX,2)}")
    g("L_noep:")
    if opt.ts:
        g("s_waitcnt vmcnt(0)")
        g.stamp("out_done")
        g(f"s_lshl_b32 s{S_T0}, s2, 2")
        g(f"s_add_u32 s{S_T0}, s{S_T0}, s{S_WV}")
        g(f"s_lshl_b32 s{S_T0}, s{S_T0}, 7")
        g(f"s_add_u32 s{S_T0}, s{S_T0}, {WS_TS}")
        g(f"v_mov_b32 v{A1}, 0")
        g(f"v_cmp_eq_u32 vcc, 0, v{V_LANE}")
        g(f"s_and_saveexec_b64 {sr(S_EX,2)}, vcc")
        for i in range(16):
            if i < g.nstamp:
                g(f"v_mov_b32 v64, s{64+2*i}"); g(f"v_mov_b32 v65, s{65+2*i}")
            elif i == 15:
                g(f"s_lshl_b32 s{S_LOC}, s{S_LOC}, 8"); g(f"s_add_u32 s{S_CNTA}, s{S_CNTA}, s{S_LOC}"); g(f"v_mov_b32 v64, s{S_CNTA}"); g(f"v_mov_b32 v65, s{S_CNT}")
            else:
                g(f"v_mov_b32 v64, s64"); g(f"v_mov_b32 v65, s65")
            g(f"buffer_store_dwordx2 v[64:65], v{A1}, {sr(S_WS,4)}, s{S_T0} offen offset:{i*8}")
            g("s_nop 1")
    g("L_end:")
    g("s_endpgm")
    g("L_st_remote:")
    for l in g.remote: g(l + " sc1")
    g("s_branch L_st_done")
    of_txt, ck_txt, chk_ops = g.retry
    for c in range(8):
        g(f"L_rt{c}:")
        g(f"s_add_u32 s{S_CNT}, s{S_CNT}, 1")
        g(f"s_cmp_gt_u32 s{S_CNT}, {opt.spin}")
        g(f"s_cbranch_scc1 L_back{c}")
        g(of_txt(2 * c, 'sc1')); g(of_txt(2 * c + 1, 'sc1')); g(ck_txt(c, 'sc1'))
        g("s_waitcnt vmcnt(0)")
        for l in chk_ops(c): g(l)
        g("s_nop 1")
        g(f"s_cbranch_vccnz L_rt{c}")
        g(f"s_branch L_back{c}")
    g("L_code_end:")
    g(f""".section .rodata,"a"
.p2align 6
.amdhsa_kernel {NAME}
  .amdhsa_next_free_vgpr 512
  .amdhsa_next_free_sgpr 102
  .amdhsa_accum_offset 256
  .amdhsa_group_segment_fixed_size 0
  .amdhsa_kernarg_size 72
  .amdhsa_user_sgpr_count 2
  .amdhsa_user_sgpr_kernarg_segment_ptr 1
  .amdhsa_system_sgpr_workgroup_id_x 1
.end_amdhsa_kernel""")
    print("late-issued fillers:", getattr(g, "late", 0), file=sys.stderr)
    if opt.ts:
        g("; stamps: " + " ".join(g.names))
    return g.text()

def parser():
    ap = argparse.ArgumentParser()
    ap.add_argument("-o", default="k.s")
    ap.add_argument("--ts", action="store_true")
    ap.add_argument("--tsk", action="store_true")
    ap.add_argument("--tsp", action="store_true")
    ap.add_argument("--cyc", action="store_true")
    ap.add_argument("--tse", action="store_true")
    ap.add_argument("--plrot", type=int, default=1)
    ap.add_argument("--map", default="B")
    ap.add_argument("--rota", type=int, default=4)
    ap.add_argument("--rotb", type=int, default=4)
    ap.add_argument("--rotc", type=int, default=2)
    ap.add_argument("--depth", type=int, default=3)
    ap.add_argument("--pf", type=int, default=6)
    ap.add_argument("--cap", type=int, default=2)
    ap.add_argument("--chk0", type=int, default=999)
    ap.add_argument("--chkd", type=int, default=7)
    ap.add_argument("--wbl2", type=int, default=108)
    ap.add_argument("--wbn", type=int, default=8)
    ap.add_argument("--cgshift", type=int, default=0)
    ap.add_argument("--plphi", type=int, default=-1)
    ap.add_argument("--plper", type=int, default=2)
    ap.add_argument("--ppf", type=int, default=0)
    ap.add_argument("--early", type=int, default=0)
    ap.add_argument("--rest", type=int, default=0)
    ap.add_argument("--local", type=int, default=1)
    ap.add_argument("--locflag", default="")
    ap.add_argument("--ldflag", default="nt")
    ap.add_argument("--plflag", default="sc1")
    ap.add_argument("--pubflag", default="sc1")
    ap.add_argument("--ipf", type=int, default=2)
    ap.add_argument("--ofpre", type=int, default=15)
    ap.add_argument("--vsp2", type=int, default=2)
    ap.add_argument("--rd0", type=int, default=24)
    ap.add_argument("--midgap", type=int, default=2)
    ap.add_argument("--midpre", type=int, default=1)
    ap.add_argument("--rpg", type=int, default=2)
    ap.add_argument("--sent", type=int, default=3)
    ap.add_argument("--ofat", type=int, default=32)
    ap.add_argument("--ofgap", type=int, default=2)
    ap.add_argument("--init", type=int, default=0)
    ap.add_argument("--nwoq", type=int, default=11)
    ap.add_argument("--woq_after", type=int, default=0)
    ap.add_argument("--plfirst", type=int, default=0)
    ap.add_argument("--pollat", type=int, default=52)
    ap.add_argument("--bgap", type=int, default=41)
    ap.add_argument("--d2", type=int, default=4)
    ap.add_argument("--d2from", type=int, default=2)
    ap.add_argument("--wq0", type=int, default=200)
    ap.add_argument("--wqs", type=int, default=6)
    ap.add_argument("--wqepi", type=int, default=2)
    ap.add_argument("--wo0", type=int, default=0)
    ap.add_argument("--pfq", type=int, default=4)
    ap.add_argument("--pfo", type=int, default=8)
    ap.add_argument("--opf", type=int, default=1)
    ap.add_argument("--vsp", type=int, default=2)
    ap.add_argument("--vspq", type=int, default=2)
    ap.add_argument("--qsync", type=int, default=4)
    ap.add_argument("--plstart", type=int, default=80)
    ap.add_argument("--plsolo", type=int, default=1)
    ap.add_argument("--npre", type=int, default=8)
    ap.add_argument("--s0", type=int, default=2)
    ap.add_argument("--flagat", type=int, default=40)
    ap.add_argument("--polla", type=int, default=0)
    ap.add_argument("--chk", type=int, default=1)
    ap.add_argument("--spin", type=int, default=20000)
    ap.add_argument("--xflag", default="nt")
    ap.add_argument("--xflag2", default="nt")
    ap.add_argument("--wflag", default="")
    ap.add_argument("--qflag", default="")
    ap.add_argument("--oflag", default="")
    ap.add_argument("--outflag", default="sc0 sc1")
    return ap
if __name__ == "__main__":
    opt = parser().parse_args()
    open(opt.o, "w").write(gen(opt))
```

```python
import sys, argparse
NAME = "concat_heads__linear_attn_block__linear_attn_block__prompt_kernel"

WS_O    = 0
WS_PK   = 4 << 20
WS_PZ   = 5 << 20
WS_FL   = (5 << 20) + (64 << 10)
WS_EP   = WS_FL + (16 << 10)
WS_TS   = 6 << 20
WS_CK   = 7 << 20
WS_XT   = (7 << 20) + (512 << 10)
WS_SIZE = 8 << 20
LOG2E = 0x3fb8aa3b
EPS   = 0x358637bd
ONE_EPS = 0x3f800008

class G:
    def __init__(self, opt):
        self.L = []; self.opt = opt; self.vm = []; self.lg = []; self.nstamp = 0; self.names = []
        self.hi = {}
    def __call__(self, s): self.L.append(s)
    def vmem(self, s, tag=None): self.L.append(s); self.vm.append(tag)
    def lds(self, s, tag=None): self.L.append(s); self.lg.append(tag)
    def _n_after(self, lst, tags):
        idx = max(i for i, t in enumerate(lst) if t in tags)
        return len(lst) - 1 - idx
    def wait_vm(self, *tags):
        n = self._n_after(self.vm, tags); self.L.append(f"s_waitcnt vmcnt({min(n,63)})")
    def wait_lg(self, *tags):
        n = self._n_after(self.lg, tags); self.L.append(f"s_waitcnt lgkmcnt({min(n,15)})")
    def stamp(self, name):
        if not self.opt.ts: return
        if self.opt.tsk and not (name.startswith("B") or name in ("start", "sync0", "kv_end", "published", "q_end", "out_done")): return
        if not self.opt.tsk and name.startswith("B"): return
        if self.opt.tsp and name in ("kernarg", "sync0", "kv_end", "published", "q_end", "phiq_end"): return
        if not self.opt.tsp and name.startswith("P"): return
        if not self.opt.tse and name.startswith("E"): return
        if self.opt.tse and name in ("kernarg", "sync0", "of_issue", "preread", "mfma2", "Ephik"): return
        i = self.nstamp; self.nstamp += 1; self.names.append(name)
        assert i < 13
        self.L.append(f"{'s_memtime' if self.opt.cyc else 's_memrealtime'} s[{64+2*i}:{65+2*i}]")
        self.L.append("s_waitcnt lgkmcnt(0)")
    def ldsaddr(self, vreg, byte, span=4096):
        cur = self.hi.get(vreg, 0)
        if not (cur <= byte and byte + span < cur + 0x10000):
            new = byte & ~0x7fff
            self.L.append(f"v_add_u32 v{vreg}, {(new - cur) & 0xffffffff:#x}, v{vreg}")
            self.hi[vreg] = cur = new
        return byte - cur
    def stream(self, mfmas, fixed, fillers, cap=2, vsp=1):
        lastv = -100
        for k, m in enumerate(mfmas):
            n0 = len(self.L)
            for fn in fixed.get(k, []): fn()
            while fillers and fillers[0][0] <= k and len(self.L) - n0 < cap:
                _, fn, last = fillers[0]
                isv = getattr(fn, "isv", False)
                if isv and k - lastv < vsp: break
                fillers.pop(0)
                fn()
                if isv: lastv = k
                if last: break
            self.L.append(m)
    def need(self, fillers, tag, count):
        while self.vm.count(tag) < count:
            _, fn, last = fillers.pop(0)
            fn()
            if last: self.L.append("s_nop 0")
            self.late = getattr(self, "late", 0) + 1
        self.wait_vm(tag)
    def flush(self, fillers):
        for _, fn, last in fillers:
            fn()
            if last: self.L.append("s_nop 0")
        del fillers[:]
    def text(self): return "\n".join(self.L) + "\n"

def vr(b, n=1): return f"v{b}" if n == 1 else f"v[{b}:{b+n-1}]"
def ar(b, n=1): return f"a{b}" if n == 1 else f"a[{b}:{b+n-1}]"
def sr(b, n=1): return f"s{b}" if n == 1 else f"s[{b}:{b+n-1}]"

S_SX, S_SW = 4, 12
S_W2K, S_W1K = 22, 23
S_X, S_W, S_WO, S_OUT, S_WS = 24, 28, 32, 36, 40
S_BR, S_RB, S_CG, S_WV = 44, 45, 46, 47
S_T0, S_T1, S_T2, S_T3 = 48, 49, 50, 51
S_16K = 52; S_TAG = 53; S_RB64, S_CB = 54, 55
S_LOG2E, S_C1, S_EPS = 56, 58, 60
S_CNT = 62; S_SOFF = 63
S_EX = 96; S_CNTA = 98; S_ROT = 99; S_W4K = 100; S_SO2 = 101
S_4K, S_8K, S_12K = 3, 20, 21
V_LANE, V_G, V_I = 1, 2, 3
V_BKV = 4
V_BQ = 12
V_BO = 16
V_XR = 24
V_WQ = 26
V_WO = 28
VEP = 30
VO = 31
TM = 32
A0, A1 = 44, 45
VPK, VPZ, VTAG, VMSK = 46, 47, 48, 49
ACC, VF, VFA = 50, 51, 56
ZL = 52
VPFQ, VPFO, VPFD, VPFO2 = 42, 43, 41, 57
VOPA, VRA, VRD, VXA, VXV = 240, 241, 242, 243, 244
V_LRW, V_LZW, V_LRR, V_LZR, V_PZW, V_PKW, V_SHW, V_L16, V_DUM, V_ZERO = 245, 246, 247, 248, 249, 250, 251, 252, 253, 254
S_XW, S_LOC = 94, 95
S_MI0 = 90
A_ONES, A_EPS = 128, 132
V_PPF = 255
V_XD = 56
V_WD = 60
V_ACCKV = 64; V_ACCQ = 128; V_RING = 160; NRING = 16; V_E = 224
T = 32
def acckv(rt, ct): return V_ACCKV + (rt * 8 + ct) * 4
def accq(rt, h): return V_ACCQ + (rt * 4 + h) * 4
def xa(j, rt): return (j * 2 + rt) * 4

SLOT = 32768
def slot_of(t): return (t % 5) * SLOT
def lds_q(tq): return 3 * SLOT + tq * 8192
L_RED = 0; L_REDZ = 16 << 10; L_SHR = 20 << 10
def lds_wo(u):
    if u < 8: return SLOT + u * 8192
    if u < 11: return 3 * SLOT + (u - 8) * 8192
    if u < 13: return (u - 11) * 8192
    if u == 13: return 24576
    return 3 * SLOT + (u - 11) * 8192
LDS_BYTES = 160 << 10

def prologue(g):
    o = g.opt
    g("s_cmp_ge_u32 s2, 256")
    g("s_cbranch_scc1 L_end")
    g.stamp("start")
    g("s_load_dwordx16 s[4:19], s[0:1], 0")
    g("s_load_dwordx2 s[20:21], s[0:1], 64")
    if o.ipf:
        g("s_getpc_b64 s[22:23]")
        g("L_pc:")
        g(f"s_lshr_b32 s{S_T0}, s2, 3")
        g(f"s_lshl_b32 s{S_T0}, s{S_T0}, 2")
        g(f"v_lshrrev_b32 v{T+1}, 6, v0")
        g(f"v_add_u32 v{T+1}, s{S_T0}, v{T+1}")
        g(f"v_mul_u32_u24 v{T+1}, {o.ipf*128}, v{T+1}")
        g(f"v_and_b32 v{T+2}, 63, v0")
        g(f"v_lshl_add_u32 v{T+1}, v{T+2}, 7, v{T+1}")
        g(f"v_min_u32 v{T+1}, L_code_end-L_pc-4, v{T+1}")
        g(f"s_mov_b64 exec, {(1 << o.ipf) - 1}")
        g.vmem(f"global_load_dword v{V_DUM}, v{T+1}, s[22:23]", "ipf")
        g("s_mov_b64 exec, -1")
    g(f"v_lshrrev_b32 v{T}, 6, v0")
    g(f"v_and_b32 v{V_LANE}, 63, v0")
    g(f"v_readfirstlane_b32 s{S_WV}, v{T}")
    g(f"s_and_b32 s{S_BR}, s2, 1")
    g(f"s_lshr_b32 s{S_T0}, s2, 3")
    g(f"s_and_b32 s{S_T1}, s{S_T0}, 7")
    g(f"s_lshr_b32 s{S_CB}, s{S_T0}, 3")
    if o.map == "A":
        g(f"s_bfe_u32 s{S_T2}, s2, 0x10001")
        g(f"s_bfe_u32 s{S_T3}, s2, 0x10002")
        g(f"s_lshl_b32 s{S_RB}, s{S_T2}, 3")
        g(f"s_add_u32 s{S_RB}, s{S_RB}, s{S_T1}")
        g(f"s_lshl_b32 s{S_CG}, s{S_T3}, 2")
        g(f"s_add_u32 s{S_CG}, s{S_CG}, s{S_CB}")
        g(f"s_lshl_b32 s{S_RB64}, s{S_T2}, 4")
        g(f"s_lshl_b32 s{S_T3}, s{S_T3}, 3")
        g(f"s_add_u32 s{S_RB64}, s{S_RB64}, s{S_T3}")
        g(f"s_add_u32 s{S_RB64}, s{S_RB64}, s{S_T1}")
    else:
        g(f"s_bfe_u32 s{S_T2}, s2, 0x20001")
        g(f"s_lshl_b32 s{S_RB}, s{S_T2}, 2")
        g(f"s_add_u32 s{S_RB}, s{S_RB}, s{S_CB}")
        g(f"s_add_u32 s{S_CG}, s{S_T1}, {o.cgshift}")
        g(f"s_and_b32 s{S_CG}, s{S_CG}, 7")
        g(f"s_lshl_b32 s{S_RB64}, s{S_T2}, 3")
        g(f"s_add_u32 s{S_RB64}, s{S_RB64}, s{S_T1}")
    g(f"s_mul_i32 s{S_T1}, s{S_T1}, {o.rota}")
    g(f"s_mul_i32 s{S_T2}, s{S_CB}, {o.rotb}")
    g(f"s_add_u32 s{S_ROT}, s{S_T1}, s{S_T2}")
    if o.rotc:
        g(f"s_bfe_u32 s{S_T2}, s2, 0x20001")
        g(f"s_mul_i32 s{S_T2}, s{S_T2}, {o.rotc}")
        g(f"s_add_u32 s{S_ROT}, s{S_ROT}, s{S_T2}")
    g(f"s_and_b32 s{S_ROT}, s{S_ROT}, 7")
    g(f"v_lshrrev_b32 v{V_G}, 4, v{V_LANE}")
    g(f"v_and_b32 v{V_I}, 15, v0")
    g(f"s_lshl_b32 s{S_W4K}, s{S_WV}, 12")
    g(f"v_lshrrev_b32 v{T}, 3, v{V_LANE}")
    g(f"v_lshlrev_b32 v{T}, 10, v{T}")
    g(f"v_and_b32 v{T+1}, 7, v{V_LANE}")
    g(f"v_xor_b32 v{T+1}, v{T+1}, v{V_G}")
    g(f"s_lshl_b32 s{S_T0}, s{S_RB}, 17")
    g(f"s_lshl_b32 s{S_T1}, s{S_WV}, 15")
    g(f"s_add_u32 s{S_T0}, s{S_T0}, s{S_T1}")
    g(f"v_lshl_add_u32 v{V_XD}, v{T+1}, 4, v{T}")
    g(f"v_add_u32 v{V_XD}, s{S_T0}, v{V_XD}")
    g(f"v_xor_b32 v{V_XD+1}, 64, v{V_XD}")
    g(f"v_add_u32 v{V_XD+1}, {7168}, v{V_XD+1}")
    g(f"v_add_u32 v{V_XD+2}, {2*7168}, v{V_XD}")
    g(f"v_add_u32 v{V_XD+3}, {2*7168}, v{V_XD+1}")
    g(f"v_lshrrev_b32 v{T+1}, 1, v{V_I}")
    g(f"v_xor_b32 v{T+1}, v{V_G}, v{T+1}")
    g(f"v_lshrrev_b32 v{T+2}, 2, v{T+1}")
    g(f"v_lshlrev_b32 v{T+2}, 10, v{T+2}")
    g(f"v_and_b32 v{T+3}, 3, v{T+1}")
    g(f"v_lshl_add_u32 v{T+2}, v{T+3}, 5, v{T+2}")
    g(f"v_and_b32 v{T+3}, 1, v{V_I}")
    g(f"v_lshl_add_u32 v{T+2}, v{T+3}, 4, v{T+2}")
    g(f"v_xor_b32 v{T+5}, 1024, v{T+2}")
    g(f"s_lshl_b32 s{S_T2}, s{S_WV}, 4")
    g(f"v_add_u32 v{T+4}, s{S_T2}, v{V_G}")
    g(f"v_mul_u32_u24 v{T+4}, 3072, v{T+4}")
    g(f"s_lshl_b32 s{S_T2}, s{S_CG}, 7")
    g(f"s_add_u32 s{S_T3}, s{S_T2}, 1024")
    g(f"v_add3_u32 v{V_WD}, v{T+4}, v{T+2}, s{S_T3}")
    g(f"v_add_u32 v{V_WD+1}, {12288-1024}, v{V_WD}")
    g(f"s_add_u32 s{S_T3}, s{S_T3}, {2*(12288-1024)}")
    g(f"v_add3_u32 v{V_WD+2}, v{T+4}, v{T+5}, s{S_T3}")
    g(f"v_add_u32 v{V_WD+3}, {12288-1024}, v{V_WD+2}")
    g(f"s_lshl_b32 s{S_T0}, s{S_ROT}, 7")
    g(f"s_mul_i32 s{S_T1}, s{S_ROT}, 196608")
    g(f"s_mov_b32 m0, s{S_W4K}")
    g("s_waitcnt lgkmcnt(0)")
    g.stamp("kernarg")
    g(f"s_cmp_eq_u32 s{S_BR}, 0")
    g(f"s_cselect_b32 s{S_X}, s4, s10")
    g(f"s_cselect_b32 s{S_X+1}, s5, s11")
    g(f"s_mov_b32 s{S_X+2}, {2048*512*2}")
    g(f"s_mov_b32 s{S_X+3}, 0x20000")
    g(f"s_cselect_b32 s{S_W}, s6, s12")
    g(f"s_cselect_b32 s{S_W+1}, s7, s13")
    g(f"s_mov_b32 s{S_W+2}, {512*1536*2}")
    g(f"s_mov_b32 s{S_W+3}, 0x20000")
    for m in range(4):
        g.vmem(f"buffer_load_dwordx4 v{V_XD+m}, {sr(S_X,4)}, s{S_T0} offen offset:{m*1024} {o.xflag} lds", ("st", 0))
    g(f"s_add_u32 m0, s{S_W4K}, 16384")
    g(f"s_cselect_b32 s{S_WO}, s8, s14") if False else None
    g("s_nop 0")
    for i in range(4):
        g.vmem(f"buffer_load_dwordx4 v{V_WD+i}, {sr(S_W,4)}, s{S_T1} offen offset:{i*1024} {o.wflag} lds", ("st", 0))
    g(f"s_cmp_eq_u32 s{S_BR}, 0")
    g(f"s_cselect_b32 s{S_WO}, s8, s14")
    g(f"s_cselect_b32 s{S_WO+1}, s9, s15")
    g(f"s_mov_b32 s{S_WO+2}, {512*512*2}")
    g(f"s_mov_b32 s{S_WO+3}, 0x20000")
    g(f"s_mov_b32 s{S_OUT}, s16")
    g(f"s_mov_b32 s{S_OUT+1}, s17")
    g(f"s_mov_b32 s{S_OUT+2}, {2048*1024*2}")
    g(f"s_mov_b32 s{S_OUT+3}, 0x20000")
    g(f"s_mov_b32 s{S_WS}, s20")
    g(f"s_mov_b32 s{S_WS+1}, s21")
    g(f"s_mov_b32 s{S_WS+2}, {WS_SIZE}")
    g(f"s_mov_b32 s{S_WS+3}, 0x20000")
    for t in range(8):
        g(f"s_add_u32 s{S_T0}, s{S_ROT}, {t}")
        g(f"s_and_b32 s{S_T0}, s{S_T0}, 7")
        g(f"s_lshl_b32 s{S_SX+t}, s{S_T0}, 7")
        g(f"s_mul_i32 s{S_SW+t}, s{S_T0}, 196608")

def prologue2(g):
    g(f"s_mov_b32 s{S_16K}, 16384")
    g(f"s_mov_b32 s{S_4K}, 4096")
    g(f"s_mov_b32 s{S_8K}, 8192")
    g(f"s_mov_b32 s{S_12K}, 12288")
    g(f"s_lshl_b32 s{S_W2K}, s{S_WV}, 11")
    g(f"s_lshl_b32 s{S_W1K}, s{S_WV}, 10")
    for r, val in ((S_LOG2E, LOG2E), (S_C1, ONE_EPS), (S_EPS, EPS)):
        g(f"s_mov_b32 s{r}, {val:#x}")
        g(f"s_mov_b32 s{r+1}, {val:#x}")
    g(f"v_lshrrev_b32 v{T}, 1, v{V_I}")
    g(f"v_xor_b32 v{T}, v{T}, v{V_G}")
    g(f"v_lshlrev_b32 v{T+1}, 7, v{V_I}")
    g(f"v_lshl_add_u32 v{T}, v{T}, 4, v{T+1}")
    g(f"v_add_u32 v{V_XR}, s{S_W4K}, v{T}")
    g(f"v_xor_b32 v{V_XR+1}, 64, v{V_XR}")
    g(f"v_lshrrev_b32 v{T}, 2, v{V_I}")
    g(f"v_and_b32 v{T+1}, 3, v{V_I}")
    g(f"v_and_b32 v{T+2}, 1, v{V_G}")
    g(f"v_lshl_add_u32 v{T+2}, v{T+2}, 2, v{T}")
    g(f"v_lshl_add_u32 v{T+3}, v{V_G}, 3, v{T}")
    g(f"v_lshlrev_b32 v{T+4}, 8, v{T+3}")
    g(f"v_lshl_add_u32 v{T+4}, v{T+1}, 3, v{T+4}")
    for ct in range(8):
        g(f"v_xor_b32 v{T+5}, {ct}, v{T+2}")
        g(f"v_lshl_add_u32 v{V_BKV+ct}, v{T+5}, 5, v{T+4}")
    g(f"v_lshlrev_b32 v{T+4}, 7, v{T+3}")
    g(f"v_lshl_add_u32 v{T+4}, v{T+1}, 3, v{T+4}")
    g(f"v_lshrrev_b32 v{T+5}, 1, v{T}")
    g(f"v_and_b32 v{T+6}, 1, v{V_G}")
    g(f"v_lshl_add_u32 v{T+5}, v{T+6}, 1, v{T+5}")
    g(f"v_add_u32 v{T+4}, {3*SLOT}, v{T+4}")
    for ct in range(4):
        g(f"v_xor_b32 v{T+6}, {ct}, v{T+5}")
        g(f"v_lshl_add_u32 v{V_BQ+ct}, v{T+6}, 5, v{T+4}")
        g.hi[V_BQ + ct] = 3 * SLOT
    g(f"v_lshl_add_u32 v{T+3}, v{V_G}, 2, v{T}")
    g(f"v_lshlrev_b32 v{T+4}, 8, v{T+3}")
    g(f"v_lshl_add_u32 v{T+4}, v{T+1}, 3, v{T+4}")
    g(f"v_add_u32 v{T+4}, {SLOT}, v{T+4}")
    for ct in range(8):
        g(f"v_xor_b32 v{T+5}, {ct}, v{T+2}")
        g(f"v_lshl_add_u32 v{V_BO+ct}, v{T+5}, 5, v{T+4}")
        g.hi[V_BO + ct] = SLOT
    g(f"v_lshrrev_b32 v{T}, 3, v{V_I}")
    g(f"v_lshl_add_u32 v{T}, v{V_G}, 1, v{T}")
    g(f"s_lshl_b32 s{S_T3}, s{S_WV}, 4")
    g(f"v_add_u32 v{T}, s{S_T3}, v{T}")
    g(f"v_mul_u32_u24 v{T}, 3072, v{T}")
    g(f"v_bfe_u32 v{T+1}, v{V_I}, 1, 2")
    g(f"v_and_b32 v{T+2}, 1, v{V_G}")
    g(f"v_xor_b32 v{T+1}, v{T+1}, v{T+2}")
    g(f"v_lshlrev_b32 v{T+1}, 5, v{T+1}")
    g(f"v_and_b32 v{T+3}, 1, v{V_I}")
    g(f"v_lshl_add_u32 v{T+1}, v{T+3}, 4, v{T+1}")
    g(f"v_xor_b32 v{T+2}, 64, v{T+1}")
    g(f"s_lshl_b32 s{S_T2}, s{S_CG}, 7")
    g(f"v_add3_u32 v{V_WQ}, v{T}, v{T+1}, s{S_T2}")
    g(f"s_add_u32 s{S_T2}, s{S_T2}, {8*3072-1024}")
    g(f"v_add3_u32 v{V_WQ+1}, v{T}, v{T+2}, s{S_T2}")
    g(f"s_lshl_b32 s{S_T0}, s{S_WV}, 3")
    g(f"v_add_u32 v{T}, s{S_T0}, v{V_G}")
    g(f"v_lshlrev_b32 v{T}, 10, v{T}")
    g(f"v_lshrrev_b32 v{T+1}, 1, v{V_I}")
    g(f"v_xor_b32 v{T+1}, v{T+1}, v{V_G}")
    g(f"v_lshlrev_b32 v{T+1}, 5, v{T+1}")
    g(f"v_lshl_add_u32 v{T+1}, v{T+3}, 4, v{T+1}")
    g(f"v_xor_b32 v{T+2}, 128, v{T+1}")
    g(f"s_lshl_b32 s{S_T0}, s{S_CB}, 8")
    g(f"v_add3_u32 v{V_WO}, v{T}, v{T+1}, s{S_T0}")
    g(f"s_add_u32 s{S_T0}, s{S_T0}, {4096-1024}")
    g(f"v_add3_u32 v{V_WO+1}, v{T}, v{T+2}, s{S_T0}")
    g(f"s_lshr_b32 s{S_T0}, s2, 3")
    g(f"s_lshl_b32 s{S_T0}, s{S_T0}, 2")
    g(f"s_add_u32 s{S_T0}, s{S_T0}, s{S_WV}")
    g(f"s_lshl_b32 s{S_T0}, s{S_T0}, 2")
    g(f"v_add_u32 v{T}, s{S_T0}, v{V_G}")
    g(f"v_lshlrev_b32 v{T+1}, 6, v{V_I}")
    g(f"v_lshl_add_u32 v{VPFO}, v{T}, 10, v{T+1}")
    g(f"v_mul_u32_u24 v{T}, 3072, v{T}")
    g(f"v_add_u32 v{VPFQ}, v{T}, v{T+1}")
    g(f"s_lshl_b32 s{S_T0}, s{S_BR}, 21")
    g(f"s_lshl_b32 s{S_T1}, s{S_RB}, 17")
    g(f"s_add_u32 s{S_T0}, s{S_T0}, s{S_T1}")
    g(f"s_lshl_b32 s{S_T1}, s{S_WV}, 15")
    g(f"s_add_u32 s{S_T0}, s{S_T0}, s{S_T1}")
    g(f"s_lshl_b32 s{S_T1}, s{S_CG}, 11")
    g(f"s_add_u32 s{S_T0}, s{S_T0}, s{S_T1}")
    g(f"v_lshl_add_u32 v{VOPA}, v{V_LANE}, 4, s{S_T0}")
    g(f"s_lshl_b32 s{S_T0}, s{S_BR}, 7")
    g(f"s_lshl_b32 s{S_T1}, s{S_RB}, 3")
    g(f"s_add_u32 s{S_T0}, s{S_T0}, s{S_T1}")
    g(f"s_lshl_b32 s{S_T1}, s{S_WV}, 1")
    g(f"s_add_u32 s{S_T0}, s{S_T0}, s{S_T1}")
    g(f"s_lshl_b32 s{S_T0}, s{S_T0}, 3")
    g(f"s_add_u32 s{S_T0}, s{S_T0}, s{S_CG}")
    g(f"s_lshl_b32 s{S_T0}, s{S_T0}, 8")
    g(f"s_add_u32 s{S_T0}, s{S_T0}, {WS_CK}")
    g(f"v_lshl_add_u32 v{VRA}, v{V_LANE}, 2, s{S_T0}")
    g(f"s_lshl_b32 s{S_T0}, s{S_BR}, 5")
    g(f"s_add_u32 s{S_T1}, s{S_T0}, s{S_RB64}")
    g(f"s_lshl_b32 s{S_T1}, s{S_T1}, 2")
    g(f"s_add_u32 s{S_T1}, s{S_T1}, s{S_CB}")
    g(f"s_lshl_b32 s{S_T1}, s{S_T1}, 5")
    g(f"s_add_u32 s{S_T1}, s{S_T1}, s{S_WV}")
    g(f"s_lshl_b32 s{S_T1}, s{S_T1}, 2")
    g(f"s_add_u32 s{S_XW}, s{S_T1}, {WS_XT}")
    g(f"s_lshl_b32 s{S_T1}, s{S_RB}, 1")
    g(f"s_add_u32 s{S_T0}, s{S_T0}, s{S_T1}")
    g(f"s_lshr_b32 s{S_T1}, s{S_WV}, 1")
    g(f"s_add_u32 s{S_T0}, s{S_T0}, s{S_T1}")
    g(f"s_lshl_b32 s{S_T0}, s{S_T0}, 9")
    g(f"s_add_u32 s{S_T0}, s{S_T0}, {WS_XT}")
    g(f"v_lshl_add_u32 v{VXA}, v{V_G}, 7, s{S_T0}")
    g(f"s_getreg_b32 s{S_LOC}, hwreg(HW_REG_XCC_ID)")
    g(f"s_and_b32 s{S_LOC}, s{S_LOC}, 15")
    g(f"s_lshl_b32 s{S_T0}, s{S_BR}, 7")
    g(f"s_add_u32 s{S_T0}, s{S_T0}, {WS_EP}")
    g(f"v_mov_b32 v{VF}, 0")
    g.vmem(f"buffer_load_dword v{VEP}, v{VF}, {sr(S_WS,4)}, s{S_T0} offen sc1", "ep")

def prologue3(g):
    g(f"v_lshlrev_b32 v{V_L16}, 4, v{V_LANE}")
    g(f"v_mov_b32 v{V_ZERO}, 0")
    g(f"v_mov_b32 v{VMSK}, 0xff")
    g(f"v_cmp_eq_u32 {sr(S_MI0,2)}, 0, v{V_I}")
    g(f"v_add_u32 v{V_LRW}, s{S_W4K}, v{V_L16}")
    g(f"s_lshl_b32 s{S_T0}, s{S_WV}, 8")
    g(f"s_add_u32 s{S_T0}, s{S_T0}, {L_REDZ}")
    g(f"v_lshl_add_u32 v{V_LZW}, v{V_G}, 4, s{S_T0}")
    g(f"v_add_u32 v{V_LRR}, s{S_W1K}, v{V_L16}")
    g(f"s_lshl_b32 s{S_T0}, s{S_WV}, 6")
    g(f"s_add_u32 s{S_T0}, s{S_T0}, {L_REDZ}")
    g(f"v_lshl_add_u32 v{V_LZR}, v{V_G}, 4, s{S_T0}")
    g(f"s_add_u32 s{S_T0}, s{S_W1K}, {L_SHR}")
    g(f"v_add_u32 v{V_SHW}, s{S_T0}, v{V_L16}")
    g(f"s_lshl_b32 s{S_T0}, s{S_BR}, 3")
    g(f"s_add_u32 s{S_T0}, s{S_T0}, s{S_CG}")
    g(f"s_lshl_b32 s{S_T0}, s{S_T0}, 2")
    g(f"s_add_u32 s{S_T0}, s{S_T0}, s{S_WV}")
    g(f"s_lshl_b32 s{S_T1}, s{S_T0}, 14")
    g(f"s_add_u32 s{S_T1}, s{S_T1}, {WS_PK}")
    g(f"s_lshl_b32 s{S_T2}, s{S_T0}, 10")
    g(f"s_add_u32 s{S_T2}, s{S_T2}, {WS_PZ}")
    g(f"v_add_u32 v{VPK}, s{S_T1}, v{V_L16}")
    g(f"s_lshl_b32 s{S_T1}, s{S_RB}, 10")
    g(f"v_add_u32 v{V_PKW}, s{S_T1}, v{VPK}")
    g(f"v_lshlrev_b32 v{VPZ}, 6, v{V_I}")
    g(f"v_lshl_add_u32 v{VPZ}, v{V_G}, 4, v{VPZ}")
    g(f"v_add_u32 v{VPZ}, s{S_T2}, v{VPZ}")
    g(f"s_lshl_b32 s{S_T3}, s{S_RB}, 6")
    g(f"s_add_u32 s{S_T2}, s{S_T2}, s{S_T3}")
    g(f"v_lshl_add_u32 v{V_PZW}, v{V_G}, 4, s{S_T2}")
    g(f"v_readfirstlane_b32 s{S_T0}, v{VOPA}")
    g(f"v_readfirstlane_b32 s{S_T1}, v{VRA}")
    g(f"v_and_b32 v{T}, 1, v{V_G}")
    g(f"v_lshlrev_b32 v{V_PPF}, 14, v{T}")
    g(f"v_lshl_add_u32 v{V_PPF}, v{V_I}, 7, v{V_PPF}")
    g(f"v_add_u32 v{V_PPF}, s{S_T0}, v{V_PPF}")
    g(f"v_bfe_u32 v{T}, v{V_LANE}, 1, 1")
    g(f"v_lshlrev_b32 v{T}, 11, v{T}")
    g(f"v_and_b32 v{T+1}, 1, v{V_LANE}")
    g(f"v_lshl_add_u32 v{T}, v{T+1}, 7, v{T}")
    g(f"v_add_u32 v{T}, s{S_T1}, v{T}")
    g(f"v_cmp_gt_u32 vcc, 32, v{V_LANE}")
    g("s_nop 1")
    g(f"v_cndmask_b32 v{V_PPF}, v{T}, v{V_PPF}, vcc")
    g(f"v_mov_b32 v{T}, 0x3f803f80")
    for k in range(4):
        g(f"v_accvgpr_write_b32 a{A_ONES+k}, v{T}")
    g(f"s_lshl_b32 s{S_T3}, s{S_BR}, 21")
    g(f"s_lshl_b32 s{S_T1}, s{S_RB64}, 16")
    g(f"s_add_u32 s{S_T3}, s{S_T3}, s{S_T1}")
    g(f"s_lshl_b32 s{S_T1}, s{S_WV}, 14")
    g(f"s_add_u32 s{S_T3}, s{S_T3}, s{S_T1}")
    g(f"v_add_u32 v{A0}, s{S_T3}, v{V_L16}")
    g(f"s_lshl_b32 s{S_T0}, s{S_BR}, 7")
    g(f"s_lshl_b32 s{S_T1}, s{S_RB64}, 2")
    g(f"s_add_u32 s{S_T0}, s{S_T0}, s{S_T1}")
    g(f"s_add_u32 s{S_T0}, s{S_T0}, s{S_WV}")
    g(f"s_lshl_b32 s{S_T0}, s{S_T0}, 11")
    g(f"s_add_u32 s{S_T0}, s{S_T0}, {WS_CK}")
    g(f"v_lshl_add_u32 v{A1}, v{V_LANE}, 2, s{S_T0}")
    g(f"s_lshl_b32 s{S_T0}, s{S_RB64}, 17")
    g(f"s_lshl_b32 s{S_T1}, s{S_WV}, 15")
    g(f"s_add_u32 s{S_T0}, s{S_T0}, s{S_T1}")
    g(f"s_lshl_b32 s{S_T1}, s{S_BR}, 10")
    g(f"s_add_u32 s{S_T0}, s{S_T0}, s{S_T1}")
    g(f"s_lshl_b32 s{S_T1}, s{S_CB}, 8")
    g(f"s_add_u32 s{S_T0}, s{S_T0}, s{S_T1}")
    g(f"v_lshlrev_b32 v{VO}, 11, v{V_I}")
    g(f"v_and_b32 v{T}, 1, v{V_G}")
    g(f"v_lshl_add_u32 v{VO}, v{T}, 5, v{VO}")
    g(f"v_lshrrev_b32 v{T}, 1, v{V_G}")
    g(f"v_lshl_add_u32 v{VO}, v{T}, 4, v{VO}")
    g(f"v_add_u32 v{VO}, s{S_T0}, v{VO}")
    g(f"s_mov_b32 s{S_CNT}, 0")
    g(f"s_mov_b32 s{S_CNTA}, 0")


def V(fn):
    fn.isv = True
    return fn

def stage_fill(g, t, e):
    o = g.opt; sl = slot_of(t); F = []
    F.append((e, lambda: g(f"s_add_u32 m0, s{S_W4K}, {sl}"), True))
    for m in range(4):
        F.append((e, V(lambda m=m: g.vmem(f"buffer_load_dwordx4 v{V_XD+m}, {sr(S_X,4)}, s{S_SX+t} offen offset:{m*1024} {o.xflag if t < 4 else o.xflag2} lds", ("st", t))), False))
    F.append((e, lambda: g(f"s_add_u32 m0, s{S_W4K}, {sl+16384}"), True))
    for i in range(4):
        F.append((e, V(lambda i=i: g.vmem(f"buffer_load_dwordx4 v{V_WD+i}, {sr(S_W,4)}, s{S_SW+t} offen offset:{i*1024} {o.wflag} lds", ("st", t))), False))
    return F

def sent_fill(g, e):
    F = []
    for rt in range(2):
        for uu in range(2):
            so = "0" if rt == 0 else f"s{S_16K}"
            F.append((e, V(lambda so=so, uu=uu: g.vmem(f"buffer_store_dwordx4 {vr(VSEN,4)}, v{VOPA}, {sr(S_WS,4)}, {so} offen offset:{uu*1024} sc1", "sent")), False))
    return F

def wq_fill(g, tq, e):
    F = [(e, lambda: g(f"s_add_u32 m0, s{S_W2K}, {lds_q(tq)}"), True)]
    for i in range(2):
        F.append((e, V(lambda i=i: g.vmem(f"buffer_load_dwordx4 v{V_WQ+i}, {sr(S_W,4)}, s{S_SW+tq} offen offset:{i*1024} {g.opt.qflag} lds", ("wq", tq))), False))
    return F

def wo_fill(g, u, e):
    F = [(e, lambda: g(f"s_mov_b32 s{S_SOFF}, {u*32768}"), False),
         (e, lambda: g(f"s_add_u32 m0, s{S_W2K}, {lds_wo(u)}"), True)]
    for i in range(2):
        F.append((e, V(lambda i=i: g.vmem(f"buffer_load_dwordx4 v{V_WO+i}, {sr(S_WO,4)}, s{S_SOFF} offen offset:{i*1024} {g.opt.oflag} lds", ("wo", u))), False))
    return F

def phi2(g, src, tmp, dst):
    u, a = tmp, tmp + 2
    g(f"v_pk_mul_f32 {vr(u,2)}, {vr(src,2)}, {sr(S_LOG2E,2)}")
    g(f"v_pk_add_f32 {vr(a,2)}, {vr(src,2)}, {sr(S_C1,2)}")
    g(f"v_exp_f32 v{u}, v{u} clamp")
    g(f"v_exp_f32 v{u+1}, v{u+1} clamp")
    return [f"v_pk_add_f32 {vr(u,2)}, {vr(u,2)}, {sr(S_EPS,2)}",
            f"v_max_f32 v{a}, v{a}, v{u}",
            f"v_max_f32 v{a+1}, v{a+1}, v{u+1}",
            f"v_cvt_pk_bf16_f32 v{dst}, v{a}, v{a+1}"]

def phi_block(g, pairs, tmpbase, ntmp=3, hook=None):
    pend = None
    for n, (src, dst) in enumerate(pairs):
        tail = phi2(g, src, tmpbase + (n % ntmp) * 4, dst)
        if pend:
            for s in pend: g(s)
        pend = tail
        if hook: hook(n)
    g("s_nop 0")
    for s in pend: g(s)

SOK = ["0", f"s{S_4K}", f"s{S_8K}", f"s{S_12K}"]
def partial_fill(g, e, fl=None):
    fl = g.opt.plflag if fl is None else fl
    F = [(e, V(lambda: g.vmem(f"buffer_load_dwordx4 {vr(ZL,4)}, v{VPZ}, {sr(S_WS,4)}, 0 offen {fl}", "pl")), False)]
    F.append((e, V(lambda: g.vmem(f"buffer_load_dword v{VRD}, v{VXA}, {sr(S_WS,4)}, 0 offen {fl}", "pl")), False))
    for p in range(16):
        F.append((e, V(lambda p=p: g.vmem(f"buffer_load_dwordx4 {vr(V_ACCKV+p*4,4)}, v{VPK}, {sr(S_WS,4)}, {SOK[p//4]} offen offset:{(p%4)*1024} {fl}", "pl")), g.opt.plsolo))
    return F

def gen(opt):
    g = G(opt)
    g(f"; @launch grid=(256,1,1) block=(256,1,1) lds={LDS_BYTES}")
    g('.amdgcn_target "amdgcn-amd-amdhsa--gfx950"')
    g(".text")
    g(f".globl {NAME}\n.p2align 8\n.type {NAME},@function\n{NAME}:")
    prologue(g)
    D = opt.depth
    for t in range(1, D):
        g.flush(stage_fill(g, t, 0))
        if t == 1: prologue2(g)
    if D == 1: prologue2(g)
    prologue3(g)
    P = opt.pf
    NF = 128
    def xr_fn(t, jj, rt):
        def f():
            off = g.ldsaddr(V_XR + jj, slot_of(t) + rt * 2048, 0)
            g.lds(f"ds_read_b128 {ar(xa(2*t+jj, rt),4)}, v{V_XR+jj} offset:{off}", ("xf", t, jj, rt))
        return f
    def kv_fn(n, half):
        j, ct = divmod(n, 8)
        r = V_RING + (n % NRING) * 4 + half * 2
        def f():
            off = g.ldsaddr(V_BKV + ct, slot_of(j // 2) + 16384 + (j % 2) * 8192, 1024)
            g.lds(f"ds_read_b64_tr_b16 {vr(r,2)}, v{V_BKV+ct} offset:{off+half*1024}", ("bkv", n))
        return f
    mf = []
    for n in range(NF):
        j, ct = divmod(n, 8)
        r = V_RING + (n % NRING) * 4
        for rt in range(2):
            c = "0" if j == 0 else vr(acckv(rt, ct), 4)
            mf.append(f"v_mfma_f32_16x16x32_bf16 {vr(acckv(rt,ct),4)}, {ar(xa(j,rt),4)}, {vr(r,4)}, {c}")
    fixed = {}; fill = []
    def fx(k, fn): fixed.setdefault(k, []).append(fn)
    nxt = D; wqn = 0
    def opre_fn():
        g("s_mov_b32 exec_hi, 15")
        g.vmem(f"buffer_load_dword v{V_DUM}, v{V_PPF}, {sr(S_WS,4)}, 0 offen", "ppf")
        g("s_mov_b32 exec_hi, -1")
    for _ in range(opt.init):
        fill += stage_fill(g, nxt, 0); nxt += 1
    for n in range(NF):
        m = n + P
        if m < NF:
            if m % 16 == 0:
                t = m // 16
                fx(2 * n, lambda t=t: g.need(fill, ("st", t), 8))
                fx(2 * n, lambda: g("s_barrier"))
                fx(2 * n, lambda t=t: g.stamp(f"B{t}"))
                for q, (jj, rt) in enumerate([(0, 0), (0, 1), (1, 0), (1, 1)]):
                    fx(2 * n + 1 + 2 * q + (0 if q < 2 else 6), xr_fn(t, jj, rt))
                while nxt < 8 and (nxt < 5 or nxt - 5 <= t - 2) and nxt <= t + (D if t < opt.d2from else opt.d2) - 1:
                    fill += stage_fill(g, nxt, 2 * n + 1); nxt += 1
                if t == opt.pfq:
                    fill.append((2 * n + 1, V(lambda: g.vmem(f"buffer_load_dword v{V_DUM}, v{VPFQ}, {sr(S_W,4)}, 0 offen", "pf")), False))
                if t == opt.opre: fill.append((2 * n + 1, V(opre_fn), False))
                if t == opt.pfo:
                    fill.append((2 * n + 1, V(lambda: g.vmem(f"buffer_load_dword v{V_DUM}, v{VPFO}, {sr(S_WO,4)}, 0 offen", "pf")), False))
                if nxt == 8:
                    while wqn < 8 and (3 + wqn // 4) <= t - 2:
                        fill += wq_fill(g, wqn, max(2 * n + 1, opt.wq0 + wqn * opt.wqs)); wqn += 1
            fx(2 * n, kv_fn(m, 0)); fx(2 * n + 1, kv_fn(m, 1))
        if n % 2 == 1 and n + 1 < NF:
            def wfn(n=n):
                tags = [("bkv", min(n + 2, NF - 1))]
                j2 = (n + 2) // 8
                for jn in {(n + 1) // 8, min(n + 2, NF - 1) // 8}:
                    tags += [("xf", jn // 2, jn % 2, 0), ("xf", jn // 2, jn % 2, 1)]
                g.wait_lg(*tags)
            fx(2 * n + 1, wfn)
    tagops = [lambda: g.wait_vm("ep"), lambda: g(f"v_readfirstlane_b32 s{S_TAG}, v{VEP}"),
              lambda: g(f"s_add_u32 s{S_TAG}, s{S_TAG}, 0x9e3779b1"), lambda: g(f"v_mov_b32 v{VTAG}, s{S_TAG}"),
              lambda: g(f"s_andn2_b32 s{S_T3}, s{S_TAG}, 15"), lambda: g(f"s_or_b32 s{S_T3}, s{S_T3}, s{S_LOC}"),
              lambda: g(f"v_mov_b32 v{VXV}, s{S_T3}"), lambda: g(f"v_mov_b32 v{VPFO2}, v{VPFO}")]
    for q, fn in enumerate(tagops): fx(244 + q + (q > 1), fn)
    g.wait_vm(("st", 0))
    g("s_barrier")
    g.stamp("sync0")
    for jj, rt in [(0, 0), (0, 1)]: xr_fn(0, jj, rt)()
    for n in range(2): kv_fn(n, 0)(); kv_fn(n, 1)()
    for jj, rt in [(1, 0), (1, 1)]: xr_fn(0, jj, rt)()
    for n in range(2, P): kv_fn(n, 0)(); kv_fn(n, 1)()
    g.wait_lg(("bkv", 1))
    g.stream(mf, fixed, fill, cap=opt.cap, vsp=opt.vsp)
    g.stamp("kv_end")
    PK = V_E; VV = V_RING
    assert wqn == 8 and nxt == 8
    if not opt.wqepi: g.flush(fill)
    if opt.pfo == 8:
        fill.append((0, V(lambda: g.vmem(f"buffer_load_dword v{V_DUM}, v{VPFO2}, {sr(S_WO,4)}, 0 offen", "pf")), False))
    if opt.opre == 8: fill.append((0, V(opre_fn), False))
    KVP = V_RING + 20; ZP = V_RING + 36
    pairs = [(acckv(rt, h) + 2 * p, PK + h * 4 + rt * 2 + p) for h in range(4) for rt in range(2) for p in range(2)]
    def cv(h):
        for rt in range(2):
            for p in range(2):
                s = acckv(rt, 4 + h) + 2 * p
                g(f"v_cvt_pk_bf16_f32 v{VV + h*4 + rt*2 + p}, v{s}, v{s+1}")
    def mfk(h):
        g(f"v_mfma_f32_16x16x32_bf16 {vr(KVP+h*4,4)}, {vr(PK+h*4,4)}, {vr(VV+h*4,4)}, 0")
        g(f"v_mfma_f32_16x16x32_bf16 {vr(ZP+h*4,4)}, {vr(PK+h*4,4)}, {ar(A_ONES,4)}, 0")
    def wr(h):
        g.lds(f"ds_write_b128 v{V_LRW}, {vr(KVP+h*4,4)} offset:{h*1024}", "rw")
        g(f"s_mov_b64 exec, {sr(S_MI0,2)}")
        g.lds(f"ds_write_b128 v{V_LZW}, {vr(ZP+h*4,4)} offset:{h*64}", "rw")
        g(f"s_mov_b64 exec, -1")
    def hook(n):
        for _ in range(opt.wqepi):
            if fill:
                _e, fn, last = fill.pop(0); fn()
                if last: break
        if n % 4 == 2: cv(n // 4)
        if n >= 5 and n % 4 == 1: mfk(n // 4 - 1)
        if n >= 7 and n % 4 == 3: wr(n // 4 - 1)
    phi_block(g, pairs, TM, hook=hook)
    g.flush(fill)
    g.stamp("Ephik")
    g("s_nop 1")
    mfk(3)
    g("s_nop 7")
    wr(3)
    SQ = opt.qsync
    g.need(fill, ("wq", SQ - 1), 2)
    g("s_waitcnt lgkmcnt(0)")
    g("s_barrier")
    g.stamp("Ebar")
    R0 = V_RING
    for w2 in range(4):
        g.lds(f"ds_read_b128 {vr(R0+w2*4,4)}, v{V_LRR} offset:{w2*4096}", ("rr", w2))
    for w2 in range(4):
        g.lds(f"ds_read_b128 {vr(R0+16+w2*4,4)}, v{V_LZR} offset:{w2*256}", ("rz", w2))
    QR, NQR = V_RING + 32, 8
    PQ = 6
    NQ = 64
    def q_fn(n, half):
        j, h = divmod(n, 4)
        r = QR + (n % NQR) * 4 + half * 2
        def f():
            off = g.ldsaddr(V_BQ + h, lds_q(j // 2) + (j % 2) * 4096, 512)
            g.lds(f"ds_read_b64_tr_b16 {vr(r,2)}, v{V_BQ+h} offset:{off+half*512}", ("bq", n))
        return f
    for n in range(3): q_fn(n, 0)(); q_fn(n, 1)()
    g.wait_lg(("rr", 1))
    g(f"v_pk_add_f32 {vr(R0,2)}, {vr(R0,2)}, {vr(R0+4,2)}")
    g(f"v_pk_add_f32 {vr(R0+2,2)}, {vr(R0+2,2)}, {vr(R0+6,2)}")
    g.wait_lg(("rr", 3))
    g(f"v_pk_add_f32 {vr(R0+8,2)}, {vr(R0+8,2)}, {vr(R0+12,2)}")
    g(f"v_pk_add_f32 {vr(R0+10,2)}, {vr(R0+10,2)}, {vr(R0+14,2)}")
    g(f"v_pk_add_f32 {vr(R0,2)}, {vr(R0,2)}, {vr(R0+8,2)}")
    g(f"v_pk_add_f32 {vr(R0+2,2)}, {vr(R0+2,2)}, {vr(R0+10,2)}")
    for k in range(4): g(f"v_bfi_b32 v{R0+k}, v{VMSK}, v{VTAG}, v{R0+k}")
    g.vmem(f"buffer_store_dwordx4 {vr(R0,4)}, v{V_PKW}, {sr(S_WS,4)}, 0 offen {opt.pubflag}", "pk_st")
    Z0 = R0 + 16
    g.wait_lg(("rz", 3))
    g(f"v_pk_add_f32 {vr(Z0,2)}, {vr(Z0,2)}, {vr(Z0+4,2)}")
    g(f"v_pk_add_f32 {vr(Z0+2,2)}, {vr(Z0+2,2)}, {vr(Z0+6,2)}")
    g(f"v_pk_add_f32 {vr(Z0+8,2)}, {vr(Z0+8,2)}, {vr(Z0+12,2)}")
    g(f"v_pk_add_f32 {vr(Z0+10,2)}, {vr(Z0+10,2)}, {vr(Z0+14,2)}")
    g(f"v_pk_add_f32 {vr(Z0,2)}, {vr(Z0,2)}, {vr(Z0+8,2)}")
    g(f"v_pk_add_f32 {vr(Z0+2,2)}, {vr(Z0+2,2)}, {vr(Z0+10,2)}")
    for k in range(4): g(f"v_bfi_b32 v{Z0+k}, v{VMSK}, v{VTAG}, v{Z0+k}")
    g(f"s_mov_b64 exec, {sr(S_MI0,2)}")
    g.vmem(f"buffer_store_dwordx4 {vr(Z0,4)}, v{V_PZW}, {sr(S_WS,4)}, 0 offen {opt.pubflag}", "pz_st")
    g(f"s_mov_b64 exec, 1")
    g.vmem(f"buffer_store_dword v{VXV}, v{V_ZERO}, {sr(S_WS,4)}, s{S_XW} offen sc1", "xt_st")
    g(f"s_mov_b64 exec, -1")
    if opt.pfo == 9:
        g.vmem(f"buffer_load_dword v{V_DUM}, v{VPFO2}, {sr(S_WO,4)}, 0 offen", "pf")
    g.stamp("published")
    for n in range(3, PQ): q_fn(n, 0)(); q_fn(n, 1)()
    mf = []; fixed = {}; fill = []
    for n in range(NQ):
        j, h = divmod(n, 4)
        r = QR + (n % NQR) * 4
        for rt in range(2):
            c = "0" if j == 0 else vr(accq(rt, h), 4)
            mf.append(f"v_mfma_f32_16x16x32_bf16 {vr(accq(rt,h),4)}, {vr(r,4)}, {ar(xa(j,rt),4)}, {c}")
        m = n + PQ
        if m < NQ:
            if m % (8 * SQ) == 0:
                fx(2 * n, lambda m=m: g.need(fill, ("wq", min(m // 8 + SQ - 1, 7)), 2))
                fx(2 * n, lambda: g("s_barrier"))
            fx(2 * n, q_fn(m, 0)); fx(2 * n + 1, q_fn(m, 1))
        if n in (16, 32, 48): fx(2 * n, lambda n=n: g.stamp(f"Eq{n}"))
        if n % 2 == 1 and n + 1 < NQ:
            fx(2 * n + 1, lambda n=n: g.wait_lg(("bq", min(n + 2, NQ - 1))))
    EPSQ = 60
    if opt.ppf:
        def ppf():
            g("s_mov_b32 exec_hi, 15")
            g.vmem(f"buffer_load_dword v{V_DUM}, v{V_PPF}, {sr(S_WS,4)}, 0 offen", "ppf")
            g("s_mov_b32 exec_hi, -1")
        fx(opt.ppf, ppf)
    for k in range(4): fill.append((0, lambda k=k: g(f"v_mov_b32 v{EPSQ+k}, {EPS:#x}"), False))
    for u in range(8): fill += wo_fill(g, u, opt.wo0)
    if opt.woq_after:
        fill += partial_fill(g, opt.plstart)
        for u in range(8, opt.nwoq): fill += wo_fill(g, u, 2 * (8 * SQ - PQ) + 1)
    else:
        for u in range(8, opt.nwoq): fill += wo_fill(g, u, 2 * (8 * SQ - PQ) + 1)
        fill += partial_fill(g, opt.plstart)
    g.wait_lg(("bq", 1))
    g.stream(mf, fixed, fill, cap=opt.cap, vsp=opt.vspq)
    g.stamp("q_end")
    if opt.plphi < 0: g.flush(fill)
    g("s_nop 7")
    PQB = V_E
    pairs = [(accq(rt, h) + 2 * p, PQB + (rt * 4 + h) * 2 + p) for rt in range(2) for h in range(4) for p in range(2)]
    def hookq(n):
        if n >= opt.plphi:
            for _ in range(opt.plper):
                if fill:
                    _e, fn, last = fill.pop(0); fn()
                    if last: break
    phi_block(g, pairs, TM, hook=hookq)
    g.flush(fill)
    g.stamp("phiq_end")
    B = V_ACCKV
    g("L_chkA:")
    g("s_waitcnt vmcnt(0)")
    g.vm = []
    if opt.chk == 4:
        regs = [ZL + 2, ZL + 3] + [B + k for k in range(64)]
    else:
        regs = [B + 4 * k + 3 for k in range(16)]
    g(f"v_xor_b32 v{ACC}, v{VTAG}, v{ZL}")
    g(f"v_xor_b32 v{VF}, v{VTAG}, v{ZL+(1 if opt.chk == 4 else 3)}")
    for n, rg in enumerate(regs):
        a = ACC if n % 2 == 0 else VF
        g(f"v_bitop3_b32 v{a}, v{a}, v{rg}, v{VTAG} bitop3:0xf6")
    g(f"v_or_b32 v{ACC}, v{ACC}, v{VF}")
    g(f"v_and_b32 v{ACC}, 0xff, v{ACC}")
    g(f"v_cmp_ne_u32 vcc, 0, v{ACC}")
    g(f"s_add_u32 s{S_CNTA}, s{S_CNTA}, 1")
    g("s_cbranch_vccz L_okA")
    g(f"s_cmp_gt_u32 s{S_CNTA}, {opt.spin}")
    g("s_cbranch_scc1 L_okA")
    for _, f, _l in partial_fill(g, 0, 'sc1'): f()
    g("s_branch L_chkA")
    g("L_okA:")
    g.vm = []
    g.stamp("okA")
    mid = []
    for u in range(opt.nwoq, 14): mid += wo_fill(g, u, 0)
    va = []
    for sh in (8, 4, 2, 1):
        for k in range(4):
            va.append(f"v_add_f32_dpp v{ZL+k}, v{ZL+k}, v{ZL+k} row_ror:{sh} row_mask:0xf bank_mask:0xf")
    for st in (32, 16, 8, 4):
        for k in range(0, st, 2):
            va.append(f"v_pk_add_f32 {vr(B+k,2)}, {vr(B+k,2)}, {vr(B+k+st,2)}")
    for n_, l in enumerate(va):
        g(l)
        if mid and n_ % opt.midgap == 0: mid.pop(0)[1]()
    g(f"v_cvt_pk_bf16_f32 v{B+6}, v{ZL}, v{ZL+1}")
    g(f"v_cvt_pk_bf16_f32 v{B+7}, v{ZL+2}, v{ZL+3}")
    g(f"v_cvt_pk_bf16_f32 v{B+4}, v{B}, v{B+1}")
    g(f"v_cvt_pk_bf16_f32 v{B+5}, v{B+2}, v{B+3}")
    g.lds(f"ds_write_b128 v{V_SHW}, {vr(B+4,4)}", "sw")
    g(f"v_cmp_ne_u32 vcc, v{VRD}, v{VXV}")
    g("s_nop 1")
    g(f"s_cmp_eq_u64 vcc, 0")
    g(f"s_cselect_b32 s{S_LOC}, {opt.local}, 0")
    g("s_waitcnt lgkmcnt(0)")
    g("s_barrier")
    KZ = B + 16
    for h in range(4):
        g.lds(f"ds_read_b128 {vr(KZ+h*4,4)}, v{V_L16} offset:{L_SHR + h*1024}", ("sr", h))
    g.stamp("Pshr"); g.stamp("Eshr")
    for u in range(14, 16): mid += wo_fill(g, u, 0)
    if opt.midpre: g.flush(mid)
    NUM = V_ACCQ; DEN = V_RING
    WOV = 128
    def wo_fn(u, ct, dst, half):
        k, r = dst
        f_ = ar if k == "a" else vr
        def f():
            off = g.ldsaddr(V_BO + ct, lds_wo(u), 4096)
            g.lds(f"ds_read_b64_tr_b16 {f_(r+half*2,2)}, v{V_BO+ct} offset:{off+half*4096}", ("wo", u, ct))
        return f
    early = [(n, half) for n in range(opt.early) for half in range(2)]
    for h in range(4):
        g.wait_lg(("sr", h))
        for rt in range(2):
            pq = PQB + (rt * 4 + h) * 2
            for l in (f"v_mfma_f32_16x16x16_bf16 {vr(DEN+(rt*4+h)*4,4)}, {vr(KZ+h*4+2,2)}, {vr(pq,2)}, {vr(EPSQ,4)}",
                      f"v_mfma_f32_16x16x16_bf16 {vr(NUM+(rt*4+h)*4,4)}, {vr(KZ+h*4,2)}, {vr(pq,2)}, 0"):
                g(l)
                for _ in range(2):
                    if early:
                        n, half = early.pop(0)
                        wo_fn(n // 8, n % 8, ("a", n * 4), half)()
    assert not early
    OB = V_RING + 32
    order = [(rt, h) for h in range(4) for rt in range(2)]
    for (rt, h) in order[:4]:
        d = DEN + (rt * 4 + h) * 4
        g(f"v_rcp_f32 v{d}, v{d}")
    g("s_nop 3")
    for (rt, h) in order[4:]:
        d = DEN + (rt * 4 + h) * 4
        g(f"v_rcp_f32 v{d}, v{d}")
    sts = []
    if opt.rest:
        g(f"v_mov_b32 v{VPK}, v{VOPA}")
        g(f"v_mov_b32 v{VPZ}, v{VRA}")
    for (rt, h) in order:
        d = DEN + (rt * 4 + h) * 4; nn = NUM + (rt * 4 + h) * 4; ob = OB + (rt * 4 + h) * 2
        g(f"v_pk_mul_f32 {vr(nn,2)}, {vr(nn,2)}, {vr(d,2)} op_sel_hi:[1,0]")
        g(f"v_pk_mul_f32 {vr(nn+2,2)}, {vr(nn+2,2)}, {vr(d,2)} op_sel_hi:[1,0]")
        g(f"v_cvt_pk_bf16_f32 v{ob}, v{nn}, v{nn+1}")
        g(f"v_cvt_pk_bf16_f32 v{ob+1}, v{nn+2}, v{nn+3}")
        if h % 2 == 1:
            so = "0" if rt == 0 else f"s{S_16K}"
            sts.append(f"buffer_store_dwordx4 {vr(OB+(rt*4+h-1)*2,4)}, v{VPK if opt.rest else VOPA}, {sr(S_WS,4)}, {so} offen offset:{(h//2)*1024}")
    for rt in range(2):
        b_ = OB + rt * 8; c_ = TM + rt
        g(f"v_add3_u32 v{c_}, v{b_}, v{b_+1}, v{VTAG}")
        g(f"v_add3_u32 v{c_}, v{b_+2}, v{b_+3}, v{c_}")
        g(f"v_add3_u32 v{c_}, v{b_+4}, v{b_+5}, v{c_}")
        g(f"v_add3_u32 v{c_}, v{b_+6}, v{b_+7}, v{c_}")
        sts.append(f"buffer_store_dword v{c_}, v{VPZ if opt.rest else VRA}, {sr(S_WS,4)}, 0 offen offset:{rt*2048}")
    g(f"s_cmp_eq_u32 s{S_LOC}, 0")
    g("s_cbranch_scc1 L_st_remote")
    for l in sts: g.vmem(l + " " + opt.locflag, "o_st")
    g("L_st_done:")
    g.remote = sts
    g.stamp("o_stored")
    g.flush(mid)
    NPRE = opt.npre
    OF = 64; ACO = 224
    CKR = TM + 2
    def of_txt(u, fl=None): return f"buffer_load_dwordx4 {vr(OF+u*4,4)}, v{A0}, {sr(S_WS,4)}, {SOK[u//4]} offen offset:{(u%4)*1024} {opt.ldflag if fl is None else fl}"
    def ck_txt(c, fl=None): return f"buffer_load_dword v{CKR+c}, v{A1}, {sr(S_WS,4)}, 0 offen offset:{c*256} {opt.ldflag if fl is None else fl}"
    lds_ = []
    for c in range(8):
        lds_.append(V(lambda c=c: g.vmem(of_txt(2*c), ("of", c))))
        lds_.append(V(lambda c=c: g.vmem(of_txt(2*c+1), ("of", c))))
        lds_.append(V(lambda c=c: g.vmem(ck_txt(c), ("of", c))))
    def chk_ops(c):
        b_ = OF + c * 8
        return [f"v_add3_u32 v{ACC}, v{b_}, v{b_+1}, v{VTAG}",
                f"v_add3_u32 v{ACC}, v{b_+2}, v{b_+3}, v{ACC}",
                f"v_add3_u32 v{ACC}, v{b_+4}, v{b_+5}, v{ACC}",
                f"v_add3_u32 v{ACC}, v{b_+6}, v{b_+7}, v{ACC}",
                f"v_cmp_ne_u32 vcc, v{ACC}, v{CKR+c}"]
    g.retry = (of_txt, ck_txt, chk_ops)
    NP = opt.npre * 8
    allf = [(u, ct) for u in range(16) for ct in range(8)]
    NVR = 20 if opt.rest else 24
    def pos(n):
        if n < 64: return ("a", n * 4)
        if n < 64 + NVR:
            r = WOV + (n - 64) * 4
            if opt.rest and r >= OB: r += 16
            return ("v", r)
        return ("a", (n - 64 - NVR) * 4)
    nof = 0
    for n in range(opt.early, NP):
        u, ct = allf[n]
        if n == 64:
            g.wait_vm(("wo", 15))
            g("s_barrier")
        wo_fn(u, ct, pos(n), 0)(); wo_fn(u, ct, pos(n), 1)()
        if n + 1 >= opt.ofat and nof < opt.ofpre and (n + 1 - opt.ofat) % opt.ofgap == 0:
            if nof == 0: g.stamp("of_issue")
            lds_.pop(0)(); nof += 1
    if nof == 0: g.stamp("of_issue")
    while nof < opt.ofpre: lds_.pop(0)(); nof += 1
    if NP <= 64:
        g.wait_vm(("wo", 15))
        g("s_barrier")
    g.stamp("preread")
    mf = []; fixed = {}; fill = [(0, f, False) for f in lds_]; busy = set()
    if opt.rest:
        for q, l in enumerate(g.remote):
            fill.append((opt.rest + 3 * q, V(lambda l=l: g.vmem(l + " sc1", "rest")), False))
    for n, (u, ct) in enumerate(allf):
        k, r = pos(n)
        f_ = ar if k == "a" else vr
        c = "0" if u == 0 else vr(ACO + ct * 4, 4)
        mf.append(f"v_mfma_f32_16x16x32_bf16 {vr(ACO+ct*4,4)}, {f_(r,4)}, {vr(OF+u*4,4)}, {c}")
        if n in (1, 32, 64, 96): fx(n, lambda n=n: g.stamp(f"Pm{n}"))
        if n % 16 == 0:
            cc = n // 16
            ops = chk_ops(cc)
            nb = min(n, opt.chk0 + opt.chkd * cc) if cc else 0
            g0 = max(nb - 6, 0)
            fx(g0, lambda cc=cc: g.need(fill, ("of", cc), 3))
            for q, l in enumerate(ops):
                fx(max(nb - 6 + q, 0), lambda l=l: g(l))
            fx(max(nb - 1, 0), lambda cc=cc: (g(f"s_cbranch_vccnz L_rt{cc}"), g(f"L_back{cc}:")))
            busy.update(range(max(nb - 6, 0), nb))
        if ct == 0 and n >= NP:
            fx(n, lambda u=u: g.wait_lg(("wo", u, 7)))
    if opt.wbl2:
        def wb():
            g(f"s_cmp_lt_u32 s{S_SO2}, {opt.wbn}")
            g("s_cbranch_scc0 L_nowb")
            g("buffer_wbl2 sc1")
            g("L_nowb:")
        fx(opt.wbl2, wb)
        g(f"s_lshl_b32 s{S_SO2}, s{S_WV}, 8")
        g(f"s_add_u32 s{S_SO2}, s{S_SO2}, s2")
    reads = [(n, half) for n in range(NP, 128) for half in range(2)]
    gap = 0; cnt = 0
    def capg(gp):
        if gp in busy and gp - 1 not in busy: return 0
        if gp in busy or gp % 8 == 0: return 1
        return opt.rpg
    for idx, (n, half) in enumerate(reads):
        u, ct = allf[n]
        gmin = (n - 64 - NVR + 1) if n >= 64 + NVR else opt.rd0
        if gmin > gap: gap = gmin; cnt = 0
        while cnt >= capg(gap): gap += 1; cnt = 0
        assert gap < u * 8 - 4, (gap, n, u)
        fx(gap, wo_fn(u, ct, pos(n), half)); cnt += 1
    g.wait_lg(("wo",) + allf[NP - 1])
    g.stream(mf, fixed, fill, cap=opt.cap, vsp=opt.vsp2)
    assert not fill
    g.stamp("mfma2")
    g("s_nop 7")
    OP = 64
    for p in range(4):
        a0 = ACO + (2 * p) * 4; a1 = ACO + (2 * p + 1) * 4; o = OP + p * 4
        g(f"v_cvt_pk_bf16_f32 v{o}, v{a0}, v{a0+1}")
        g(f"v_cvt_pk_bf16_f32 v{o+1}, v{a0+2}, v{a0+3}")
        g(f"v_cvt_pk_bf16_f32 v{o+2}, v{a1}, v{a1+1}")
        g(f"v_cvt_pk_bf16_f32 v{o+3}, v{a1+2}, v{a1+3}")
        g("s_nop 1")
        g(f"v_permlane16_swap_b32 v{o}, v{o+2}")
        g(f"v_permlane16_swap_b32 v{o+1}, v{o+3}")
        g.vmem(f"buffer_store_dwordx4 {vr(o,4)}, v{VO}, {sr(S_OUT,4)}, 0 offen offset:{p*64} {opt.outflag}", "out")
    g("s_cmp_ge_u32 s2, 2")
    g("s_cbranch_scc1 L_noep")
    g(f"s_cmp_lg_u32 s{S_WV}, 0")
    g("s_cbranch_scc1 L_noep")
    g(f"s_lshl_b32 s{S_T0}, s{S_BR}, 7")
    g(f"s_add_u32 s{S_T0}, s{S_T0}, {WS_EP}")
    g(f"v_mov_b32 v{VF}, 0")
    g(f"v_cmp_eq_u32 vcc, 0, v{V_LANE}")
    g(f"s_and_saveexec_b64 {sr(S_EX,2)}, vcc")
    g(f"buffer_store_dword v{VTAG}, v{VF}, {sr(S_WS,4)}, s{S_T0} offen sc1")
    g(f"s_mov_b64 exec, {sr(S_EX,2)}")
    g("L_noep:")
    if opt.ts:
        g("s_waitcnt vmcnt(0)")
        g.stamp("out_done")
        g(f"s_lshl_b32 s{S_T0}, s2, 2")
        g(f"s_add_u32 s{S_T0}, s{S_T0}, s{S_WV}")
        g(f"s_lshl_b32 s{S_T0}, s{S_T0}, 7")
        g(f"s_add_u32 s{S_T0}, s{S_T0}, {WS_TS}")
        g(f"v_mov_b32 v{A1}, 0")
        g(f"v_cmp_eq_u32 vcc, 0, v{V_LANE}")
        g(f"s_and_saveexec_b64 {sr(S_EX,2)}, vcc")
        for i in range(16):
            if i < g.nstamp:
                g(f"v_mov_b32 v64, s{64+2*i}"); g(f"v_mov_b32 v65, s{65+2*i}")
            elif i == 15:
                g(f"s_lshl_b32 s{S_LOC}, s{S_LOC}, 8"); g(f"s_add_u32 s{S_CNTA}, s{S_CNTA}, s{S_LOC}"); g(f"v_mov_b32 v64, s{S_CNTA}"); g(f"v_mov_b32 v65, s{S_CNT}")
            else:
                g(f"v_mov_b32 v64, s64"); g(f"v_mov_b32 v65, s65")
            g(f"buffer_store_dwordx2 v[64:65], v{A1}, {sr(S_WS,4)}, s{S_T0} offen offset:{i*8}")
            g("s_nop 1")
    g("L_end:")
    g("s_endpgm")
    g("L_st_remote:")
    for l in g.remote: g(l + " sc1")
    g("s_branch L_st_done")
    of_txt, ck_txt, chk_ops = g.retry
    for c in range(8):
        g(f"L_rt{c}:")
        g(f"s_add_u32 s{S_CNT}, s{S_CNT}, 1")
        g(f"s_cmp_gt_u32 s{S_CNT}, {opt.spin}")
        g(f"s_cbranch_scc1 L_back{c}")
        g(of_txt(2 * c, 'sc1')); g(of_txt(2 * c + 1, 'sc1')); g(ck_txt(c, 'sc1'))
        g("s_waitcnt vmcnt(0)")
        for l in chk_ops(c): g(l)
        g("s_nop 1")
        g(f"s_cbranch_vccnz L_rt{c}")
        g(f"s_branch L_back{c}")
    g("L_code_end:")
    g(f""".section .rodata,"a"
.p2align 6
.amdhsa_kernel {NAME}
  .amdhsa_next_free_vgpr 512
  .amdhsa_next_free_sgpr 102
  .amdhsa_accum_offset 256
  .amdhsa_group_segment_fixed_size 0
  .amdhsa_kernarg_size 72
  .amdhsa_user_sgpr_count 2
  .amdhsa_user_sgpr_kernarg_segment_ptr 1
  .amdhsa_system_sgpr_workgroup_id_x 1
.end_amdhsa_kernel""")
    print("late-issued fillers:", getattr(g, "late", 0), file=sys.stderr)
    if opt.ts:
        g("; stamps: " + " ".join(g.names))
    return g.text()

def parser():
    ap = argparse.ArgumentParser()
    ap.add_argument("-o", default="k.s")
    ap.add_argument("--ts", action="store_true")
    ap.add_argument("--tsk", action="store_true")
    ap.add_argument("--tsp", action="store_true")
    ap.add_argument("--cyc", action="store_true")
    ap.add_argument("--tse", action="store_true")
    ap.add_argument("--plrot", type=int, default=1)
    ap.add_argument("--map", default="B")
    ap.add_argument("--rota", type=int, default=4)
    ap.add_argument("--rotb", type=int, default=4)
    ap.add_argument("--rotc", type=int, default=2)
    ap.add_argument("--depth", type=int, default=3)
    ap.add_argument("--pf", type=int, default=6)
    ap.add_argument("--cap", type=int, default=2)
    ap.add_argument("--opre", type=int, default=99)
    ap.add_argument("--chk0", type=int, default=999)
    ap.add_argument("--chkd", type=int, default=7)
    ap.add_argument("--wbl2", type=int, default=108)
    ap.add_argument("--wbn", type=int, default=8)
    ap.add_argument("--cgshift", type=int, default=0)
    ap.add_argument("--plphi", type=int, default=-1)
    ap.add_argument("--plper", type=int, default=2)
    ap.add_argument("--ppf", type=int, default=0)
    ap.add_argument("--early", type=int, default=0)
    ap.add_argument("--rest", type=int, default=0)
    ap.add_argument("--local", type=int, default=1)
    ap.add_argument("--locflag", default="")
    ap.add_argument("--ldflag", default="nt")
    ap.add_argument("--plflag", default="sc1")
    ap.add_argument("--pubflag", default="sc1")
    ap.add_argument("--ipf", type=int, default=2)
    ap.add_argument("--ofpre", type=int, default=15)
    ap.add_argument("--vsp2", type=int, default=2)
    ap.add_argument("--rd0", type=int, default=24)
    ap.add_argument("--midgap", type=int, default=2)
    ap.add_argument("--midpre", type=int, default=1)
    ap.add_argument("--rpg", type=int, default=2)
    ap.add_argument("--sent", type=int, default=3)
    ap.add_argument("--ofat", type=int, default=32)
    ap.add_argument("--ofgap", type=int, default=2)
    ap.add_argument("--init", type=int, default=0)
    ap.add_argument("--nwoq", type=int, default=11)
    ap.add_argument("--woq_after", type=int, default=0)
    ap.add_argument("--plfirst", type=int, default=0)
    ap.add_argument("--pollat", type=int, default=52)
    ap.add_argument("--bgap", type=int, default=41)
    ap.add_argument("--d2", type=int, default=4)
    ap.add_argument("--d2from", type=int, default=2)
    ap.add_argument("--wq0", type=int, default=200)
    ap.add_argument("--wqs", type=int, default=6)
    ap.add_argument("--wqepi", type=int, default=2)
    ap.add_argument("--wo0", type=int, default=0)
    ap.add_argument("--pfq", type=int, default=4)
    ap.add_argument("--pfo", type=int, default=8)
    ap.add_argument("--opf", type=int, default=1)
    ap.add_argument("--vsp", type=int, default=2)
    ap.add_argument("--vspq", type=int, default=2)
    ap.add_argument("--qsync", type=int, default=4)
    ap.add_argument("--plstart", type=int, default=80)
    ap.add_argument("--plsolo", type=int, default=1)
    ap.add_argument("--npre", type=int, default=8)
    ap.add_argument("--s0", type=int, default=2)
    ap.add_argument("--flagat", type=int, default=40)
    ap.add_argument("--polla", type=int, default=0)
    ap.add_argument("--chk", type=int, default=1)
    ap.add_argument("--spin", type=int, default=20000)
    ap.add_argument("--xflag", default="")
    ap.add_argument("--xflag2", default="")
    ap.add_argument("--wflag", default="")
    ap.add_argument("--qflag", default="")
    ap.add_argument("--oflag", default="")
    ap.add_argument("--outflag", default="sc0 sc1")
    return ap
if __name__ == "__main__":
    opt = parser().parse_args()
    open(opt.o, "w").write(gen(opt))
```

```python
import sys, argparse
NAME = "concat_heads__linear_attn_block__linear_attn_block__prompt_kernel"

WS_O    = 0
WS_PK   = 4 << 20
WS_PZ   = 5 << 20
WS_FL   = (5 << 20) + (64 << 10)
WS_EP   = WS_FL + (16 << 10)
WS_TS   = 6 << 20
WS_CK   = 7 << 20
WS_XT   = (7 << 20) + (512 << 10)
WS_SIZE = 8 << 20
LOG2E = 0x3fb8aa3b
EPS   = 0x358637bd
ONE_EPS = 0x3f800008

class G:
    def __init__(self, opt):
        self.L = []; self.opt = opt; self.vm = []; self.lg = []; self.nstamp = 0; self.names = []
        self.hi = {}
    def __call__(self, s): self.L.append(s)
    def vmem(self, s, tag=None): self.L.append(s); self.vm.append(tag)
    def lds(self, s, tag=None): self.L.append(s); self.lg.append(tag)
    def _n_after(self, lst, tags):
        idx = max(i for i, t in enumerate(lst) if t in tags)
        return len(lst) - 1 - idx
    def wait_vm(self, *tags):
        n = self._n_after(self.vm, tags); self.L.append(f"s_waitcnt vmcnt({min(n,63)})")
    def wait_lg(self, *tags):
        n = self._n_after(self.lg, tags); self.L.append(f"s_waitcnt lgkmcnt({min(n,15)})")
    def stamp(self, name):
        if not self.opt.ts: return
        if self.opt.tsk and not (name.startswith("B") or name in ("start", "sync0", "kv_end", "published", "q_end", "out_done")): return
        if not self.opt.tsk and name.startswith("B"): return
        if self.opt.tsp and name in ("kernarg", "sync0", "kv_end", "published", "q_end", "phiq_end"): return
        if not self.opt.tsp and name.startswith("P"): return
        if not self.opt.tse and name.startswith("E"): return
        if self.opt.tse and name in ("kernarg", "sync0", "of_issue", "preread", "mfma2", "Ephik"): return
        i = self.nstamp; self.nstamp += 1; self.names.append(name)
        assert i < 13
        self.L.append(f"{'s_memtime' if self.opt.cyc else 's_memrealtime'} s[{64+2*i}:{65+2*i}]")
        self.L.append("s_waitcnt lgkmcnt(0)")
    def ldsaddr(self, vreg, byte, span=4096):
        cur = self.hi.get(vreg, 0)
        if not (cur <= byte and byte + span < cur + 0x10000):
            new = byte & ~0x7fff
            self.L.append(f"v_add_u32 v{vreg}, {(new - cur) & 0xffffffff:#x}, v{vreg}")
            self.hi[vreg] = cur = new
        return byte - cur
    def stream(self, mfmas, fixed, fillers, cap=2, vsp=1):
        lastv = -100
        for k, m in enumerate(mfmas):
            n0 = len(self.L)
            for fn in fixed.get(k, []): fn()
            while fillers and fillers[0][0] <= k and len(self.L) - n0 < cap:
                _, fn, last = fillers[0]
                isv = getattr(fn, "isv", False)
                if isv and k - lastv < (vsp(k) if callable(vsp) else vsp): break
                fillers.pop(0)
                fn()
                if isv: lastv = k
                if last: break
            self.L.append(m)
    def need(self, fillers, tag, count):
        while self.vm.count(tag) < count:
            _, fn, last = fillers.pop(0)
            fn()
            if last: self.L.append("s_nop 0")
            self.late = getattr(self, "late", 0) + 1
        self.wait_vm(tag)
    def flush(self, fillers):
        for _, fn, last in fillers:
            fn()
            if last: self.L.append("s_nop 0")
        del fillers[:]
    def text(self): return "\n".join(self.L) + "\n"

def vr(b, n=1): return f"v{b}" if n == 1 else f"v[{b}:{b+n-1}]"
def ar(b, n=1): return f"a{b}" if n == 1 else f"a[{b}:{b+n-1}]"
def sr(b, n=1): return f"s{b}" if n == 1 else f"s[{b}:{b+n-1}]"

S_SX, S_SW = 4, 12
S_W2K, S_W1K = 22, 23
S_X, S_W, S_WO, S_OUT, S_WS = 24, 28, 32, 36, 40
S_BR, S_RB, S_CG, S_WV = 44, 45, 46, 47
S_T0, S_T1, S_T2, S_T3 = 48, 49, 50, 51
S_16K = 52; S_TAG = 53; S_RB64, S_CB = 54, 55
S_LOG2E, S_C1, S_EPS = 56, 58, 60
S_CNT = 62; S_SOFF = 63
S_EX = 96; S_CNTA = 98; S_ROT = 99; S_W4K = 100; S_SO2 = 101
S_4K, S_8K, S_12K = 3, 20, 21
S_32K = 93
V_LANE, V_G, V_I = 1, 2, 3
V_BKV = 4
V_BQ = 12
V_BO = 16
V_XR = 24
V_WQ = 26
V_WO = 28
VEP = 30
VO = 31
TM = 32
A0, A1 = 44, 45
VPK, VPZ, VTAG, VMSK = 46, 47, 48, 49
ACC, VF, VFA = 50, 51, 56
ZL = 52
VPFQ, VPFO, VPFD, VPFO2 = 42, 43, 41, 57
VOPA, VRA, VRD, VXA, VXV = 240, 241, 242, 243, 244
V_LRW, V_LZW, V_LRR, V_LZR, V_PZW, V_PKW, V_SHW, V_L16, V_DUM, V_ZERO = 245, 246, 247, 248, 249, 250, 251, 252, 253, 254
S_XW, S_LOC = 94, 95
S_MI0 = 90
A_ONES, A_EPS = 128, 132
V_PPF = 255; V_OPRE = 159
V_XD = 56
V_WD = 60
V_ACCKV = 64; V_ACCQ = 128; V_RING = 160; NRING = 16; V_E = 224
T = 32
def acckv(rt, ct): return V_ACCKV + (rt * 8 + ct) * 4
def accq(rt, h): return V_ACCQ + (rt * 4 + h) * 4
def xa(j, rt): return (j * 2 + rt) * 4

SLOT = 32768
def slot_of(t): return (t % 5) * SLOT
def lds_q(tq): return 3 * SLOT + tq * 8192
L_RED = 0; L_REDZ = 16 << 10; L_SHR = 20 << 10
def lds_wo(i): return SLOT + i * 4096
LDS_BYTES = 160 << 10

def prologue(g):
    o = g.opt
    g("s_cmp_ge_u32 s2, 256")
    g("s_cbranch_scc1 L_end")
    g.stamp("start")
    g("s_load_dwordx16 s[4:19], s[0:1], 0")
    g("s_load_dwordx2 s[20:21], s[0:1], 64")
    if o.ipf:
        g("s_getpc_b64 s[22:23]")
        g("L_pc:")
        g(f"s_lshr_b32 s{S_T0}, s2, 3")
        g(f"s_lshl_b32 s{S_T0}, s{S_T0}, 2")
        g(f"v_lshrrev_b32 v{T+1}, 6, v0")
        g(f"v_add_u32 v{T+1}, s{S_T0}, v{T+1}")
        g(f"v_mul_u32_u24 v{T+1}, {o.ipf*128}, v{T+1}")
        g(f"v_and_b32 v{T+2}, 63, v0")
        g(f"v_lshl_add_u32 v{T+1}, v{T+2}, 7, v{T+1}")
        g(f"v_min_u32 v{T+1}, L_code_end-L_pc-4, v{T+1}")
        g(f"s_mov_b64 exec, {(1 << o.ipf) - 1}")
        g.vmem(f"global_load_dword v{V_DUM}, v{T+1}, s[22:23]", "ipf")
        g("s_mov_b64 exec, -1")
    g(f"v_lshrrev_b32 v{T}, 6, v0")
    g(f"v_and_b32 v{V_LANE}, 63, v0")
    g(f"v_readfirstlane_b32 s{S_WV}, v{T}")
    g(f"s_and_b32 s{S_BR}, s2, 1")
    g(f"s_lshr_b32 s{S_T0}, s2, 3")
    g(f"s_and_b32 s{S_T1}, s{S_T0}, 7")
    g(f"s_lshr_b32 s{S_CB}, s{S_T0}, 3")
    if o.map == "A":
        g(f"s_bfe_u32 s{S_T2}, s2, 0x10001")
        g(f"s_bfe_u32 s{S_T3}, s2, 0x10002")
        g(f"s_lshl_b32 s{S_RB}, s{S_T2}, 3")
        g(f"s_add_u32 s{S_RB}, s{S_RB}, s{S_T1}")
        g(f"s_lshl_b32 s{S_CG}, s{S_T3}, 2")
        g(f"s_add_u32 s{S_CG}, s{S_CG}, s{S_CB}")
        g(f"s_lshl_b32 s{S_RB64}, s{S_T2}, 4")
        g(f"s_lshl_b32 s{S_T3}, s{S_T3}, 3")
        g(f"s_add_u32 s{S_RB64}, s{S_RB64}, s{S_T3}")
        g(f"s_add_u32 s{S_RB64}, s{S_RB64}, s{S_T1}")
    else:
        g(f"s_bfe_u32 s{S_T2}, s2, 0x20001")
        g(f"s_lshl_b32 s{S_RB}, s{S_T2}, 2")
        g(f"s_add_u32 s{S_RB}, s{S_RB}, s{S_CB}")
        g(f"s_add_u32 s{S_CG}, s{S_T1}, {o.cgshift}")
        g(f"s_and_b32 s{S_CG}, s{S_CG}, 7")
        g(f"s_lshl_b32 s{S_RB64}, s{S_T2}, 3")
        g(f"s_add_u32 s{S_RB64}, s{S_RB64}, s{S_T1}")
    g(f"s_mul_i32 s{S_T1}, s{S_T1}, {o.rota}")
    g(f"s_mul_i32 s{S_T2}, s{S_CB}, {o.rotb}")
    g(f"s_add_u32 s{S_ROT}, s{S_T1}, s{S_T2}")
    if o.rotc:
        g(f"s_bfe_u32 s{S_T2}, s2, 0x20001")
        g(f"s_mul_i32 s{S_T2}, s{S_T2}, {o.rotc}")
        g(f"s_add_u32 s{S_ROT}, s{S_ROT}, s{S_T2}")
    g(f"s_and_b32 s{S_ROT}, s{S_ROT}, 7")
    g(f"v_lshrrev_b32 v{V_G}, 4, v{V_LANE}")
    g(f"v_and_b32 v{V_I}, 15, v0")
    g(f"s_lshl_b32 s{S_W4K}, s{S_WV}, 12")
    g(f"v_lshrrev_b32 v{T}, 3, v{V_LANE}")
    g(f"v_lshlrev_b32 v{T}, 10, v{T}")
    g(f"v_and_b32 v{T+1}, 7, v{V_LANE}")
    g(f"v_xor_b32 v{T+1}, v{T+1}, v{V_G}")
    g(f"s_lshl_b32 s{S_T0}, s{S_RB}, 17")
    g(f"s_lshl_b32 s{S_T1}, s{S_WV}, 15")
    g(f"s_add_u32 s{S_T0}, s{S_T0}, s{S_T1}")
    g(f"v_lshl_add_u32 v{V_XD}, v{T+1}, 4, v{T}")
    g(f"v_add_u32 v{V_XD}, s{S_T0}, v{V_XD}")
    g(f"v_xor_b32 v{V_XD+1}, 64, v{V_XD}")
    g(f"v_add_u32 v{V_XD+1}, {7168}, v{V_XD+1}")
    g(f"v_add_u32 v{V_XD+2}, {2*7168}, v{V_XD}")
    g(f"v_add_u32 v{V_XD+3}, {2*7168}, v{V_XD+1}")
    g(f"v_lshrrev_b32 v{T+1}, 1, v{V_I}")
    g(f"v_xor_b32 v{T+1}, v{V_G}, v{T+1}")
    g(f"v_lshrrev_b32 v{T+2}, 2, v{T+1}")
    g(f"v_lshlrev_b32 v{T+2}, 10, v{T+2}")
    g(f"v_and_b32 v{T+3}, 3, v{T+1}")
    g(f"v_lshl_add_u32 v{T+2}, v{T+3}, 5, v{T+2}")
    g(f"v_and_b32 v{T+3}, 1, v{V_I}")
    g(f"v_lshl_add_u32 v{T+2}, v{T+3}, 4, v{T+2}")
    g(f"v_xor_b32 v{T+5}, 1024, v{T+2}")
    g(f"s_lshl_b32 s{S_T2}, s{S_WV}, 4")
    g(f"v_add_u32 v{T+4}, s{S_T2}, v{V_G}")
    g(f"v_mul_u32_u24 v{T+4}, 3072, v{T+4}")
    g(f"s_lshl_b32 s{S_T2}, s{S_CG}, 7")
    g(f"s_add_u32 s{S_T3}, s{S_T2}, 1024")
    g(f"v_add3_u32 v{V_WD}, v{T+4}, v{T+2}, s{S_T3}")
    g(f"v_add_u32 v{V_WD+1}, {12288-1024}, v{V_WD}")
    g(f"s_add_u32 s{S_T3}, s{S_T3}, {2*(12288-1024)}")
    g(f"v_add3_u32 v{V_WD+2}, v{T+4}, v{T+5}, s{S_T3}")
    g(f"v_add_u32 v{V_WD+3}, {12288-1024}, v{V_WD+2}")
    g(f"s_lshl_b32 s{S_T0}, s{S_ROT}, 7")
    g(f"s_mul_i32 s{S_T1}, s{S_ROT}, 196608")
    g(f"s_mov_b32 m0, s{S_W4K}")
    g("s_waitcnt lgkmcnt(0)")
    g.stamp("kernarg")
    g(f"s_cmp_eq_u32 s{S_BR}, 0")
    g(f"s_cselect_b32 s{S_X}, s4, s10")
    g(f"s_cselect_b32 s{S_X+1}, s5, s11")
    g(f"s_mov_b32 s{S_X+2}, {2048*512*2}")
    g(f"s_mov_b32 s{S_X+3}, 0x20000")
    g(f"s_cselect_b32 s{S_W}, s6, s12")
    g(f"s_cselect_b32 s{S_W+1}, s7, s13")
    g(f"s_mov_b32 s{S_W+2}, {512*1536*2}")
    g(f"s_mov_b32 s{S_W+3}, 0x20000")
    for m in range(4):
        g.vmem(f"buffer_load_dwordx4 v{V_XD+m}, {sr(S_X,4)}, s{S_T0} offen offset:{m*1024} {o.xflag} lds", ("st", 0))
    g(f"s_add_u32 m0, s{S_W4K}, 16384")
    g(f"s_cselect_b32 s{S_WO}, s8, s14") if False else None
    g("s_nop 0")
    for i in range(4):
        g.vmem(f"buffer_load_dwordx4 v{V_WD+i}, {sr(S_W,4)}, s{S_T1} offen offset:{i*1024} {o.wflag} lds", ("st", 0))
    g(f"s_cmp_eq_u32 s{S_BR}, 0")
    g(f"s_cselect_b32 s{S_WO}, s8, s14")
    g(f"s_cselect_b32 s{S_WO+1}, s9, s15")
    g(f"s_mov_b32 s{S_WO+2}, {512*512*2}")
    g(f"s_mov_b32 s{S_WO+3}, 0x20000")
    g(f"s_mov_b32 s{S_OUT}, s16")
    g(f"s_mov_b32 s{S_OUT+1}, s17")
    g(f"s_mov_b32 s{S_OUT+2}, {2048*1024*2}")
    g(f"s_mov_b32 s{S_OUT+3}, 0x20000")
    g(f"s_mov_b32 s{S_WS}, s20")
    g(f"s_mov_b32 s{S_WS+1}, s21")
    g(f"s_mov_b32 s{S_WS+2}, {WS_SIZE}")
    g(f"s_mov_b32 s{S_WS+3}, 0x20000")
    for t in range(8):
        g(f"s_add_u32 s{S_T0}, s{S_ROT}, {t}")
        g(f"s_and_b32 s{S_T0}, s{S_T0}, 7")
        g(f"s_lshl_b32 s{S_SX+t}, s{S_T0}, 7")
        g(f"s_mul_i32 s{S_SW+t}, s{S_T0}, 196608")

def prologue2(g):
    g(f"s_mov_b32 s{S_16K}, 16384")
    g(f"s_mov_b32 s{S_4K}, 4096")
    g(f"s_mov_b32 s{S_32K}, 32768")
    g(f"s_mov_b32 s{S_8K}, 8192")
    g(f"s_mov_b32 s{S_12K}, 12288")
    g(f"s_lshl_b32 s{S_W2K}, s{S_WV}, 11")
    g(f"s_lshl_b32 s{S_W1K}, s{S_WV}, 10")
    for r, val in ((S_LOG2E, LOG2E), (S_C1, ONE_EPS), (S_EPS, EPS)):
        g(f"s_mov_b32 s{r}, {val:#x}")
        g(f"s_mov_b32 s{r+1}, {val:#x}")
    g(f"v_lshrrev_b32 v{T}, 1, v{V_I}")
    g(f"v_xor_b32 v{T}, v{T}, v{V_G}")
    g(f"v_lshlrev_b32 v{T+1}, 7, v{V_I}")
    g(f"v_lshl_add_u32 v{T}, v{T}, 4, v{T+1}")
    g(f"v_add_u32 v{V_XR}, s{S_W4K}, v{T}")
    g(f"v_xor_b32 v{V_XR+1}, 64, v{V_XR}")
    g(f"v_lshrrev_b32 v{T}, 2, v{V_I}")
    g(f"v_and_b32 v{T+1}, 3, v{V_I}")
    g(f"v_and_b32 v{T+2}, 1, v{V_G}")
    g(f"v_lshl_add_u32 v{T+2}, v{T+2}, 2, v{T}")
    g(f"v_lshl_add_u32 v{T+3}, v{V_G}, 3, v{T}")
    g(f"v_lshlrev_b32 v{T+4}, 8, v{T+3}")
    g(f"v_lshl_add_u32 v{T+4}, v{T+1}, 3, v{T+4}")
    for ct in range(8):
        g(f"v_xor_b32 v{T+5}, {ct}, v{T+2}")
        g(f"v_lshl_add_u32 v{V_BKV+ct}, v{T+5}, 5, v{T+4}")
    g(f"v_lshlrev_b32 v{T+4}, 7, v{T+3}")
    g(f"v_lshl_add_u32 v{T+4}, v{T+1}, 3, v{T+4}")
    g(f"v_lshrrev_b32 v{T+5}, 1, v{T}")
    g(f"v_and_b32 v{T+6}, 1, v{V_G}")
    g(f"v_lshl_add_u32 v{T+5}, v{T+6}, 1, v{T+5}")
    g(f"v_add_u32 v{T+4}, {3*SLOT}, v{T+4}")
    for ct in range(4):
        g(f"v_xor_b32 v{T+6}, {ct}, v{T+5}")
        g(f"v_lshl_add_u32 v{V_BQ+ct}, v{T+6}, 5, v{T+4}")
        g.hi[V_BQ + ct] = 3 * SLOT
    g(f"v_lshl_add_u32 v{T+3}, v{V_G}, 2, v{T}")
    g(f"v_lshlrev_b32 v{T+4}, 7, v{T+3}")
    g(f"v_lshl_add_u32 v{T+4}, v{T+1}, 3, v{T+4}")
    g(f"v_add_u32 v{T+4}, {SLOT}, v{T+4}")
    for ct in range(4):
        g(f"v_xor_b32 v{T+6}, {ct}, v{T+5}")
        g(f"v_lshl_add_u32 v{V_BO+ct}, v{T+6}, 5, v{T+4}")
        g.hi[V_BO + ct] = SLOT
    g(f"v_lshrrev_b32 v{T}, 3, v{V_I}")
    g(f"v_lshl_add_u32 v{T}, v{V_G}, 1, v{T}")
    g(f"s_lshl_b32 s{S_T3}, s{S_WV}, 4")
    g(f"v_add_u32 v{T}, s{S_T3}, v{T}")
    g(f"v_mul_u32_u24 v{T}, 3072, v{T}")
    g(f"v_bfe_u32 v{T+1}, v{V_I}, 1, 2")
    g(f"v_and_b32 v{T+2}, 1, v{V_G}")
    g(f"v_xor_b32 v{T+1}, v{T+1}, v{T+2}")
    g(f"v_lshlrev_b32 v{T+1}, 5, v{T+1}")
    g(f"v_and_b32 v{T+3}, 1, v{V_I}")
    g(f"v_lshl_add_u32 v{T+1}, v{T+3}, 4, v{T+1}")
    g(f"v_xor_b32 v{T+2}, 64, v{T+1}")
    g(f"s_lshl_b32 s{S_T2}, s{S_CG}, 7")
    g(f"v_add3_u32 v{V_WQ}, v{T}, v{T+1}, s{S_T2}")
    g(f"s_add_u32 s{S_T2}, s{S_T2}, {8*3072-1024}")
    g(f"v_add3_u32 v{V_WQ+1}, v{T}, v{T+2}, s{S_T2}")
    g(f"v_lshrrev_b32 v{T}, 3, v{V_I}")
    g(f"v_lshl_add_u32 v{T}, v{V_G}, 1, v{T}")
    g(f"v_add_u32 v{T}, s{S_T3}, v{T}")
    g(f"v_lshlrev_b32 v{T}, 10, v{T}")
    g(f"v_bfe_u32 v{T+1}, v{V_I}, 1, 2")
    g(f"v_xor_b32 v{T+1}, v{T+1}, v{V_G}")
    g(f"v_lshl_add_u32 v{T}, v{T+1}, 5, v{T}")
    g(f"v_lshl_add_u32 v{T}, v{T+3}, 4, v{T}")
    g(f"s_lshl_b32 s{S_T0}, s{S_CG}, 7")
    g(f"v_add_u32 v{V_WO}, s{S_T0}, v{T}")
    g(f"v_add_u32 v{V_WO+1}, {8192-1024}, v{V_WO}")
    g(f"s_lshr_b32 s{S_T0}, s2, 3")
    g(f"s_lshl_b32 s{S_T0}, s{S_T0}, 2")
    g(f"s_add_u32 s{S_T0}, s{S_T0}, s{S_WV}")
    g(f"s_lshl_b32 s{S_T0}, s{S_T0}, 2")
    g(f"v_add_u32 v{T}, s{S_T0}, v{V_G}")
    g(f"v_lshlrev_b32 v{T+1}, 6, v{V_I}")
    g(f"v_lshl_add_u32 v{VPFO}, v{T}, 10, v{T+1}")
    g(f"v_mul_u32_u24 v{T}, 3072, v{T}")
    g(f"v_add_u32 v{VPFQ}, v{T}, v{T+1}")
    g(f"s_lshl_b32 s{S_T0}, s{S_BR}, 21")
    g(f"s_lshl_b32 s{S_T1}, s{S_RB}, 17")
    g(f"s_add_u32 s{S_T0}, s{S_T0}, s{S_T1}")
    g(f"s_lshl_b32 s{S_T1}, s{S_WV}, 15")
    g(f"s_add_u32 s{S_T0}, s{S_T0}, s{S_T1}")
    g(f"s_lshl_b32 s{S_T1}, s{S_CG}, 11")
    g(f"s_add_u32 s{S_T0}, s{S_T0}, s{S_T1}")
    g(f"v_lshl_add_u32 v{VOPA}, v{V_LANE}, 4, s{S_T0}")
    g(f"s_lshl_b32 s{S_T0}, s{S_BR}, 4")
    g(f"s_add_u32 s{S_T0}, s{S_T0}, s{S_RB}")
    g(f"s_lshl_b32 s{S_T1}, s{S_T0}, 2")
    g(f"s_add_u32 s{S_T1}, s{S_T1}, s{S_WV}")
    g(f"s_lshl_b32 s{S_T1}, s{S_T1}, 11")
    g(f"s_add_u32 s{S_T1}, s{S_T1}, {WS_CK}")
    g(f"v_lshl_add_u32 v{A1}, v{V_LANE}, 2, s{S_T1}")
    g(f"s_lshl_b32 s{S_T2}, s{S_CG}, 8")
    g(f"v_add_u32 v{VRA}, s{S_T2}, v{A1}")
    g(f"s_lshl_b32 s{S_T0}, s{S_T0}, 10")
    g(f"s_add_u32 s{S_T0}, s{S_T0}, {WS_XT}")
    g(f"v_and_b32 v{VXA}, 7, v{V_LANE}")
    g(f"v_lshl_add_u32 v{VXA}, v{VXA}, 7, s{S_T0}")
    g(f"s_lshl_b32 s{S_T1}, s{S_CG}, 7")
    g(f"s_add_u32 s{S_T0}, s{S_T0}, s{S_T1}")
    g(f"s_lshl_b32 s{S_T1}, s{S_WV}, 2")
    g(f"s_add_u32 s{S_XW}, s{S_T0}, s{S_T1}")
    g(f"s_getreg_b32 s{S_LOC}, hwreg(HW_REG_XCC_ID)")
    g(f"s_and_b32 s{S_LOC}, s{S_LOC}, 15")
    g(f"s_lshl_b32 s{S_T0}, s{S_BR}, 7")
    g(f"s_add_u32 s{S_T0}, s{S_T0}, {WS_EP}")
    g(f"v_mov_b32 v{VF}, 0")
    g.vmem(f"buffer_load_dword v{VEP}, v{VF}, {sr(S_WS,4)}, s{S_T0} offen sc1", "ep")

def prologue3(g):
    g(f"v_lshlrev_b32 v{V_L16}, 4, v{V_LANE}")
    g(f"v_mov_b32 v{V_ZERO}, 0")
    g(f"v_mov_b32 v{VMSK}, 0xff")
    g(f"v_cmp_eq_u32 {sr(S_MI0,2)}, 0, v{V_I}")
    g(f"v_add_u32 v{V_LRW}, s{S_W4K}, v{V_L16}")
    g(f"s_lshl_b32 s{S_T0}, s{S_WV}, 8")
    g(f"s_add_u32 s{S_T0}, s{S_T0}, {L_REDZ}")
    g(f"v_lshl_add_u32 v{V_LZW}, v{V_G}, 4, s{S_T0}")
    g(f"v_add_u32 v{V_LRR}, s{S_W1K}, v{V_L16}")
    g(f"s_lshl_b32 s{S_T0}, s{S_WV}, 6")
    g(f"s_add_u32 s{S_T0}, s{S_T0}, {L_REDZ}")
    g(f"v_lshl_add_u32 v{V_LZR}, v{V_G}, 4, s{S_T0}")
    g(f"s_add_u32 s{S_T0}, s{S_W1K}, {L_SHR}")
    g(f"v_add_u32 v{V_SHW}, s{S_T0}, v{V_L16}")
    g(f"s_lshl_b32 s{S_T0}, s{S_BR}, 3")
    g(f"s_add_u32 s{S_T0}, s{S_T0}, s{S_CG}")
    g(f"s_lshl_b32 s{S_T0}, s{S_T0}, 2")
    g(f"s_add_u32 s{S_T0}, s{S_T0}, s{S_WV}")
    g(f"s_lshl_b32 s{S_T1}, s{S_T0}, 14")
    g(f"s_add_u32 s{S_T1}, s{S_T1}, {WS_PK}")
    g(f"s_lshl_b32 s{S_T2}, s{S_T0}, 10")
    g(f"s_add_u32 s{S_T2}, s{S_T2}, {WS_PZ}")
    g(f"v_add_u32 v{VPK}, s{S_T1}, v{V_L16}")
    g(f"s_lshl_b32 s{S_T1}, s{S_RB}, 10")
    g(f"v_add_u32 v{V_PKW}, s{S_T1}, v{VPK}")
    g(f"v_lshlrev_b32 v{VPZ}, 6, v{V_I}")
    g(f"v_lshl_add_u32 v{VPZ}, v{V_G}, 4, v{VPZ}")
    g(f"v_add_u32 v{VPZ}, s{S_T2}, v{VPZ}")
    g(f"s_lshl_b32 s{S_T3}, s{S_RB}, 6")
    g(f"s_add_u32 s{S_T2}, s{S_T2}, s{S_T3}")
    g(f"v_lshl_add_u32 v{V_PZW}, v{V_G}, 4, s{S_T2}")
    g(f"v_readfirstlane_b32 s{S_T0}, v{VOPA}")
    g(f"v_readfirstlane_b32 s{S_T1}, v{VRA}")
    g(f"v_and_b32 v{T}, 1, v{V_G}")
    g(f"v_lshlrev_b32 v{V_OPRE}, 14, v{T}")
    g(f"v_lshl_add_u32 v{V_OPRE}, v{V_I}, 7, v{V_OPRE}")
    g(f"v_add_u32 v{V_OPRE}, s{S_T0}, v{V_OPRE}")
    g(f"v_and_b32 v{T+1}, 1, v{V_LANE}")
    g(f"v_lshl_add_u32 v{T}, v{T+1}, 7, s{S_T1}")
    g(f"v_cmp_gt_u32 vcc, 32, v{V_LANE}")
    g("s_nop 1")
    g(f"v_cndmask_b32 v{V_OPRE}, v{T}, v{V_OPRE}, vcc")
    g(f"v_mov_b32 v{T}, 0x3f803f80")
    for k in range(4):
        g(f"v_accvgpr_write_b32 a{A_ONES+k}, v{T}")
    g(f"s_lshl_b32 s{S_T1}, s{S_CG}, 11")
    g(f"v_subrev_u32 v{A0}, s{S_T1}, v{VOPA}")
    g(f"v_add_u32 v{V_PPF}, 16384, v{A0}")
    g(f"s_lshl_b32 s{S_T0}, s{S_RB}, 18")
    g(f"s_lshl_b32 s{S_T1}, s{S_WV}, 16")
    g(f"s_add_u32 s{S_T0}, s{S_T0}, s{S_T1}")
    g(f"s_lshl_b32 s{S_T1}, s{S_BR}, 10")
    g(f"s_add_u32 s{S_T0}, s{S_T0}, s{S_T1}")
    g(f"s_lshl_b32 s{S_T1}, s{S_CG}, 7")
    g(f"s_add_u32 s{S_T0}, s{S_T0}, s{S_T1}")
    g(f"v_lshlrev_b32 v{VO}, 11, v{V_I}")
    g(f"v_and_b32 v{T}, 1, v{V_G}")
    g(f"v_lshl_add_u32 v{VO}, v{T}, 5, v{VO}")
    g(f"v_lshrrev_b32 v{T}, 1, v{V_G}")
    g(f"v_lshl_add_u32 v{VO}, v{T}, 4, v{VO}")
    g(f"v_add_u32 v{VO}, s{S_T0}, v{VO}")
    g(f"s_mov_b32 s{S_CNT}, 0")
    g(f"s_mov_b32 s{S_CNTA}, 0")


def V(fn):
    fn.isv = True
    return fn

def stage_fill(g, t, e):
    o = g.opt; sl = slot_of(t); F = []
    F.append((e, lambda: g(f"s_add_u32 m0, s{S_W4K}, {sl}"), True))
    for m in range(4):
        F.append((e, V(lambda m=m: g.vmem(f"buffer_load_dwordx4 v{V_XD+m}, {sr(S_X,4)}, s{S_SX+t} offen offset:{m*1024} {o.xflag if t < 4 else o.xflag2} lds", ("st", t))), False))
    F.append((e, lambda: g(f"s_add_u32 m0, s{S_W4K}, {sl+16384}"), True))
    for i in range(4):
        F.append((e, V(lambda i=i: g.vmem(f"buffer_load_dwordx4 v{V_WD+i}, {sr(S_W,4)}, s{S_SW+t} offen offset:{i*1024} {o.wflag} lds", ("st", t))), False))
    return F

def sent_fill(g, e):
    F = []
    for rt in range(2):
        for uu in range(2):
            so = "0" if rt == 0 else f"s{S_16K}"
            F.append((e, V(lambda so=so, uu=uu: g.vmem(f"buffer_store_dwordx4 {vr(VSEN,4)}, v{VOPA}, {sr(S_WS,4)}, {so} offen offset:{uu*1024} sc1", "sent")), False))
    return F

def wq_fill(g, tq, e):
    F = [(e, lambda: g(f"s_add_u32 m0, s{S_W2K}, {lds_q(tq)}"), True)]
    for i in range(2):
        F.append((e, V(lambda i=i: g.vmem(f"buffer_load_dwordx4 v{V_WQ+i}, {sr(S_W,4)}, s{S_SW+tq} offen offset:{i*1024} {g.opt.qflag} lds", ("wq", tq))), False))
    return F

def wo_fill(g, pr, e):
    F = [(e, lambda: g(f"s_add_u32 s{S_T0}, s{S_CG}, {pr}"), False),
         (e, lambda: g(f"s_and_b32 s{S_T0}, s{S_T0}, 7"), False),
         (e, lambda: g(f"s_lshl_b32 s{S_SOFF}, s{S_T0}, 16"), False),
         (e, lambda: g(f"s_add_u32 m0, s{S_W2K}, {lds_wo(2*pr)}"), True)]
    for i in range(2):
        F.append((e, V(lambda i=i: g.vmem(f"buffer_load_dwordx4 v{V_WO+i}, {sr(S_WO,4)}, s{S_SOFF} offen offset:{i*1024} {g.opt.oflag} lds", ("wo", pr))), False))
    F.append((e, lambda: g(f"s_lshl_b32 s{S_SX+pr}, s{S_T0}, 11"), False))
    F.append((e, lambda: g(f"s_lshl_b32 s{S_SW+pr}, s{S_T0}, 8"), False))
    return F

def phi2(g, src, tmp, dst):
    u, a = tmp, tmp + 2
    g(f"v_pk_mul_f32 {vr(u,2)}, {vr(src,2)}, {sr(S_LOG2E,2)}")
    g(f"v_pk_add_f32 {vr(a,2)}, {vr(src,2)}, {sr(S_C1,2)}")
    g(f"v_exp_f32 v{u}, v{u} clamp")
    g(f"v_exp_f32 v{u+1}, v{u+1} clamp")
    return [f"v_pk_add_f32 {vr(u,2)}, {vr(u,2)}, {sr(S_EPS,2)}",
            f"v_max_f32 v{a}, v{a}, v{u}",
            f"v_max_f32 v{a+1}, v{a+1}, v{u+1}",
            f"v_cvt_pk_bf16_f32 v{dst}, v{a}, v{a+1}"]

def phi_block(g, pairs, tmpbase, ntmp=3, hook=None):
    pend = None
    for n, (src, dst) in enumerate(pairs):
        tail = phi2(g, src, tmpbase + (n % ntmp) * 4, dst)
        if pend:
            for s in pend: g(s)
        pend = tail
        if hook: hook(n)
    g("s_nop 0")
    for s in pend: g(s)

SOK = ["0", f"s{S_4K}", f"s{S_8K}", f"s{S_12K}"]
def partial_fill(g, e, fl=None):
    fl = g.opt.plflag if fl is None else fl
    F = [(e, V(lambda: g.vmem(f"buffer_load_dwordx4 {vr(ZL,4)}, v{VPZ}, {sr(S_WS,4)}, 0 offen {fl}", "pl")), False)]
    F.append((e, V(lambda: g.vmem(f"buffer_load_dword v{VRD}, v{VXA}, {sr(S_WS,4)}, 0 offen {fl}", "pl")), False))
    for p in range(16):
        F.append((e, V(lambda p=p: g.vmem(f"buffer_load_dwordx4 {vr(V_ACCKV+p*4,4)}, v{VPK}, {sr(S_WS,4)}, {SOK[p//4]} offen offset:{(p%4)*1024} {fl}", "pl")), g.opt.plsolo))
    return F

def gen(opt):
    g = G(opt)
    g(f"; @launch grid=(256,1,1) block=(256,1,1) lds={LDS_BYTES}")
    g('.amdgcn_target "amdgcn-amd-amdhsa--gfx950"')
    g(".text")
    g(f".globl {NAME}\n.p2align 8\n.type {NAME},@function\n{NAME}:")
    prologue(g)
    D = opt.depth
    if opt.pro == 0:
        for t in range(1, D):
            g.flush(stage_fill(g, t, 0))
            if t == 1: prologue2(g)
        prologue3(g)
    elif opt.pro == 1:
        g.flush(stage_fill(g, 1, 0))
        prologue2(g); prologue3(g)
        for t in range(2, D): g.flush(stage_fill(g, t, 0))
    else:
        g.flush(stage_fill(g, 1, 0))
        f2 = stage_fill(g, 2, 0)
        prologue2(g)
        g.flush(f2[:5])
        prologue3(g)
        g.flush(f2[5:])
        for t in range(3, D): g.flush(stage_fill(g, t, 0))
    P = opt.pf
    NF = 128
    def xr_fn(t, jj, rt):
        def f():
            off = g.ldsaddr(V_XR + jj, slot_of(t) + rt * 2048, 0)
            g.lds(f"ds_read_b128 {ar(xa(2*t+jj, rt),4)}, v{V_XR+jj} offset:{off}", ("xf", t, jj, rt))
        return f
    def kv_fn(n, half):
        j, ct = divmod(n, 8)
        r = V_RING + (n % NRING) * 4 + half * 2
        def f():
            off = g.ldsaddr(V_BKV + ct, slot_of(j // 2) + 16384 + (j % 2) * 8192, 1024)
            g.lds(f"ds_read_b64_tr_b16 {vr(r,2)}, v{V_BKV+ct} offset:{off+half*1024}", ("bkv", n))
        return f
    mf = []
    for n in range(NF):
        j, ct = divmod(n, 8)
        r = V_RING + (n % NRING) * 4
        for rt in range(2):
            c = "0" if j == 0 else vr(acckv(rt, ct), 4)
            mf.append(f"v_mfma_f32_16x16x32_bf16 {vr(acckv(rt,ct),4)}, {ar(xa(j,rt),4)}, {vr(r,4)}, {c}")
    fixed = {}; fill = []
    def fx(k, fn): fixed.setdefault(k, []).append(fn)
    nxt = D; wqn = 0
    def opre_fn():
        g("s_mov_b32 exec_hi, 3")
        g.vmem(f"buffer_load_dword v{V_DUM}, v{V_OPRE}, {sr(S_WS,4)}, 0 offen", "ppf")
        g("s_mov_b32 exec_hi, -1")
    for _ in range(opt.init):
        fill += stage_fill(g, nxt, 0); nxt += 1
    for n in range(NF):
        m = n + P
        if m < NF:
            if m % 16 == 0:
                t = m // 16
                fx(2 * n, lambda t=t: g.need(fill, ("st", t), 8))
                fx(2 * n, lambda: g("s_barrier"))
                fx(2 * n, lambda t=t: g.stamp(f"B{t}"))
                for q, (jj, rt) in enumerate([(0, 0), (0, 1), (1, 0), (1, 1)]):
                    fx(2 * n + 1 + 2 * q + (0 if q < 2 else 6), xr_fn(t, jj, rt))
                while nxt < 8 and (nxt < 5 or nxt - 5 <= t - 2) and nxt <= t + (D if t < opt.d2from else opt.d2) - 1:
                    fill += stage_fill(g, nxt, 2 * n + 1); nxt += 1
                if t == opt.pfq:
                    fill.append((2 * n + 1, V(lambda: g.vmem(f"buffer_load_dword v{V_DUM}, v{VPFQ}, {sr(S_W,4)}, 0 offen", "pf")), False))
                if t == opt.opre: fill.append((2 * n + 1, V(opre_fn), False))
                if t == opt.pfo:
                    fill.append((2 * n + 1, V(lambda: g.vmem(f"buffer_load_dword v{V_DUM}, v{VPFO}, {sr(S_WO,4)}, 0 offen", "pf")), False))
                if nxt == 8:
                    while wqn < 8 and (3 + wqn // 4) <= t - 2:
                        fill += wq_fill(g, wqn, max(2 * n + 1, opt.wq0 + wqn * opt.wqs)); wqn += 1
            fx(2 * n, kv_fn(m, 0)); fx(2 * n + 1, kv_fn(m, 1))
        if n % 2 == 1 and n + 1 < NF:
            def wfn(n=n):
                tags = [("bkv", min(n + 2, NF - 1))]
                j2 = (n + 2) // 8
                for jn in {(n + 1) // 8, min(n + 2, NF - 1) // 8}:
                    tags += [("xf", jn // 2, jn % 2, 0), ("xf", jn // 2, jn % 2, 1)]
                g.wait_lg(*tags)
            fx(2 * n + 1, wfn)
    tagops = [lambda: g.wait_vm("ep"), lambda: g(f"v_readfirstlane_b32 s{S_TAG}, v{VEP}"),
              lambda: g(f"s_add_u32 s{S_TAG}, s{S_TAG}, 0x9e3779b1"), lambda: g(f"v_mov_b32 v{VTAG}, s{S_TAG}"),
              lambda: g(f"s_andn2_b32 s{S_T3}, s{S_TAG}, 15"), lambda: g(f"s_or_b32 s{S_T3}, s{S_T3}, s{S_LOC}"),
              lambda: g(f"v_mov_b32 v{VXV}, s{S_T3}"), lambda: g(f"v_mov_b32 v{VPFO2}, v{VPFO}")]
    for q, fn in enumerate(tagops): fx(244 + q + (q > 1), fn)
    g.wait_vm(("st", 0))
    g("s_barrier")
    g.stamp("sync0")
    for jj, rt in [(0, 0), (0, 1)]: xr_fn(0, jj, rt)()
    for n in range(2): kv_fn(n, 0)(); kv_fn(n, 1)()
    for jj, rt in [(1, 0), (1, 1)]: xr_fn(0, jj, rt)()
    for n in range(2, P): kv_fn(n, 0)(); kv_fn(n, 1)()
    g.wait_lg(("bkv", 1))
    g.stream(mf, fixed, fill, cap=opt.cap, vsp=lambda k: opt.vsp if k < opt.vsw else opt.vspl)
    g.stamp("kv_end")
    PK = V_E; VV = V_RING
    assert wqn == 8 and nxt == 8
    if not opt.wqepi: g.flush(fill)
    if opt.pfo == 8:
        fill.append((0, V(lambda: g.vmem(f"buffer_load_dword v{V_DUM}, v{VPFO2}, {sr(S_WO,4)}, 0 offen", "pf")), False))
    if opt.opre == 8: fill.append((0, V(opre_fn), False))
    KVP = V_RING + 20; ZP = V_RING + 36
    pairs = [(acckv(rt, h) + 2 * p, PK + h * 4 + rt * 2 + p) for h in range(4) for rt in range(2) for p in range(2)]
    def cv(h):
        for rt in range(2):
            for p in range(2):
                s = acckv(rt, 4 + h) + 2 * p
                g(f"v_cvt_pk_bf16_f32 v{VV + h*4 + rt*2 + p}, v{s}, v{s+1}")
    def mfk(h):
        g(f"v_mfma_f32_16x16x32_bf16 {vr(KVP+h*4,4)}, {vr(PK+h*4,4)}, {vr(VV+h*4,4)}, 0")
        g(f"v_mfma_f32_16x16x32_bf16 {vr(ZP+h*4,4)}, {vr(PK+h*4,4)}, {ar(A_ONES,4)}, 0")
    def wr(h):
        g.lds(f"ds_write_b128 v{V_LRW}, {vr(KVP+h*4,4)} offset:{h*1024}", "rw")
        g(f"s_mov_b64 exec, {sr(S_MI0,2)}")
        g.lds(f"ds_write_b128 v{V_LZW}, {vr(ZP+h*4,4)} offset:{h*64}", "rw")
        g(f"s_mov_b64 exec, -1")
    def hook(n):
        for _ in range(opt.wqepi):
            if fill:
                _e, fn, last = fill.pop(0); fn()
                if last: break
        if n % 4 == 2: cv(n // 4)
        if n >= 5 and n % 4 == 1: mfk(n // 4 - 1)
        if n >= 7 and n % 4 == 3: wr(n // 4 - 1)
    phi_block(g, pairs, TM, hook=hook)
    g.flush(fill)
    g.stamp("Ephik")
    g("s_nop 1")
    mfk(3)
    g("s_nop 7")
    wr(3)
    SQ = opt.qsync
    g.need(fill, ("wq", SQ - 1), 2)
    g("s_waitcnt lgkmcnt(0)")
    g("s_barrier")
    g.stamp("Ebar")
    R0 = V_RING
    for w2 in range(4):
        g.lds(f"ds_read_b128 {vr(R0+w2*4,4)}, v{V_LRR} offset:{w2*4096}", ("rr", w2))
    for w2 in range(4):
        g.lds(f"ds_read_b128 {vr(R0+16+w2*4,4)}, v{V_LZR} offset:{w2*256}", ("rz", w2))
    QR, NQR = V_RING + 32, 8
    PQ = 6
    NQ = 64
    def q_fn(n, half):
        j, h = divmod(n, 4)
        r = QR + (n % NQR) * 4 + half * 2
        def f():
            off = g.ldsaddr(V_BQ + h, lds_q(j // 2) + (j % 2) * 4096, 512)
            g.lds(f"ds_read_b64_tr_b16 {vr(r,2)}, v{V_BQ+h} offset:{off+half*512}", ("bq", n))
        return f
    for n in range(3): q_fn(n, 0)(); q_fn(n, 1)()
    g.wait_lg(("rr", 1))
    g(f"v_pk_add_f32 {vr(R0,2)}, {vr(R0,2)}, {vr(R0+4,2)}")
    g(f"v_pk_add_f32 {vr(R0+2,2)}, {vr(R0+2,2)}, {vr(R0+6,2)}")
    g.wait_lg(("rr", 3))
    g(f"v_pk_add_f32 {vr(R0+8,2)}, {vr(R0+8,2)}, {vr(R0+12,2)}")
    g(f"v_pk_add_f32 {vr(R0+10,2)}, {vr(R0+10,2)}, {vr(R0+14,2)}")
    g(f"v_pk_add_f32 {vr(R0,2)}, {vr(R0,2)}, {vr(R0+8,2)}")
    g(f"v_pk_add_f32 {vr(R0+2,2)}, {vr(R0+2,2)}, {vr(R0+10,2)}")
    for k in range(4): g(f"v_bfi_b32 v{R0+k}, v{VMSK}, v{VTAG}, v{R0+k}")
    g.vmem(f"buffer_store_dwordx4 {vr(R0,4)}, v{V_PKW}, {sr(S_WS,4)}, 0 offen {opt.pubflag}", "pk_st")
    Z0 = R0 + 16
    g.wait_lg(("rz", 3))
    g(f"v_pk_add_f32 {vr(Z0,2)}, {vr(Z0,2)}, {vr(Z0+4,2)}")
    g(f"v_pk_add_f32 {vr(Z0+2,2)}, {vr(Z0+2,2)}, {vr(Z0+6,2)}")
    g(f"v_pk_add_f32 {vr(Z0+8,2)}, {vr(Z0+8,2)}, {vr(Z0+12,2)}")
    g(f"v_pk_add_f32 {vr(Z0+10,2)}, {vr(Z0+10,2)}, {vr(Z0+14,2)}")
    g(f"v_pk_add_f32 {vr(Z0,2)}, {vr(Z0,2)}, {vr(Z0+8,2)}")
    g(f"v_pk_add_f32 {vr(Z0+2,2)}, {vr(Z0+2,2)}, {vr(Z0+10,2)}")
    for k in range(4): g(f"v_bfi_b32 v{Z0+k}, v{VMSK}, v{VTAG}, v{Z0+k}")
    g(f"s_mov_b64 exec, {sr(S_MI0,2)}")
    g.vmem(f"buffer_store_dwordx4 {vr(Z0,4)}, v{V_PZW}, {sr(S_WS,4)}, 0 offen {opt.pubflag}", "pz_st")
    g(f"s_mov_b64 exec, 1")
    g.vmem(f"buffer_store_dword v{VXV}, v{V_ZERO}, {sr(S_WS,4)}, s{S_XW} offen sc1", "xt_st")
    g(f"s_mov_b64 exec, -1")
    if opt.pfo == 9:
        g.vmem(f"buffer_load_dword v{V_DUM}, v{VPFO2}, {sr(S_WO,4)}, 0 offen", "pf")
    g.stamp("published")
    for n in range(3, PQ): q_fn(n, 0)(); q_fn(n, 1)()
    mf = []; fixed = {}; fill = []
    for n in range(NQ):
        j, h = divmod(n, 4)
        r = QR + (n % NQR) * 4
        for rt in range(2):
            c = "0" if j == 0 else vr(accq(rt, h), 4)
            mf.append(f"v_mfma_f32_16x16x32_bf16 {vr(accq(rt,h),4)}, {vr(r,4)}, {ar(xa(j,rt),4)}, {c}")
        m = n + PQ
        if m < NQ:
            if m % (8 * SQ) == 0:
                fx(2 * n, lambda m=m: g.need(fill, ("wq", min(m // 8 + SQ - 1, 7)), 2))
                fx(2 * n, lambda: g("s_barrier"))
            fx(2 * n, q_fn(m, 0)); fx(2 * n + 1, q_fn(m, 1))
        if n in (16, 32, 48): fx(2 * n, lambda n=n: g.stamp(f"Eq{n}"))
        if n % 2 == 1 and n + 1 < NQ:
            fx(2 * n + 1, lambda n=n: g.wait_lg(("bq", min(n + 2, NQ - 1))))
    EPSQ = 60
    if opt.opre == 9: fx(1, opre_fn)
    for k in range(4): fill.append((0, lambda k=k: g(f"v_mov_b32 v{EPSQ+k}, {EPS:#x}"), False))
    for u in range(8): fill += wo_fill(g, u, opt.wo0)
    fill += partial_fill(g, opt.plstart)
    g.wait_lg(("bq", 1))
    g.stream(mf, fixed, fill, cap=opt.cap, vsp=opt.vspq)
    g.stamp("q_end")
    if opt.plphi < 0: g.flush(fill)
    g("s_nop 7")
    PQB = V_E
    pairs = [(accq(rt, h) + 2 * p, PQB + (rt * 4 + h) * 2 + p) for rt in range(2) for h in range(4) for p in range(2)]
    def hookq(n):
        if n >= opt.plphi:
            for _ in range(opt.plper):
                if fill:
                    _e, fn, last = fill.pop(0); fn()
                    if last: break
    phi_block(g, pairs, TM, hook=hookq)
    g.flush(fill)
    g.stamp("phiq_end")
    B = V_ACCKV
    g("L_chkA:")
    g("s_waitcnt vmcnt(0)")
    g.vm = []
    if opt.chk == 4:
        regs = [ZL + 2, ZL + 3] + [B + k for k in range(64)]
    else:
        regs = [B + 4 * k + 3 for k in range(16)]
    g(f"v_xor_b32 v{ACC}, v{VTAG}, v{ZL}")
    g(f"v_xor_b32 v{VF}, v{VTAG}, v{ZL+(1 if opt.chk == 4 else 3)}")
    for n, rg in enumerate(regs):
        a = ACC if n % 2 == 0 else VF
        g(f"v_bitop3_b32 v{a}, v{a}, v{rg}, v{VTAG} bitop3:0xf6")
    g(f"v_or_b32 v{ACC}, v{ACC}, v{VF}")
    g(f"v_and_b32 v{ACC}, 0xff, v{ACC}")
    g(f"v_cmp_ne_u32 vcc, 0, v{ACC}")
    g(f"s_add_u32 s{S_CNTA}, s{S_CNTA}, 1")
    g("s_cbranch_vccz L_okA")
    g(f"s_cmp_gt_u32 s{S_CNTA}, {opt.spin}")
    g("s_cbranch_scc1 L_okA")
    for _, f, _l in partial_fill(g, 0, 'sc1'): f()
    g("s_branch L_chkA")
    g("L_okA:")
    g.vm = []
    g.stamp("okA")
    mid = []
    va = []
    for sh in (8, 4, 2, 1):
        for k in range(4):
            va.append(f"v_add_f32_dpp v{ZL+k}, v{ZL+k}, v{ZL+k} row_ror:{sh} row_mask:0xf bank_mask:0xf")
    for st in (32, 16, 8, 4):
        for k in range(0, st, 2):
            va.append(f"v_pk_add_f32 {vr(B+k,2)}, {vr(B+k,2)}, {vr(B+k+st,2)}")
    for n_, l in enumerate(va):
        g(l)
        if mid and n_ % opt.midgap == 0: mid.pop(0)[1]()
    g(f"v_cvt_pk_bf16_f32 v{B+6}, v{ZL}, v{ZL+1}")
    g(f"v_cvt_pk_bf16_f32 v{B+7}, v{ZL+2}, v{ZL+3}")
    g(f"v_cvt_pk_bf16_f32 v{B+4}, v{B}, v{B+1}")
    g(f"v_cvt_pk_bf16_f32 v{B+5}, v{B+2}, v{B+3}")
    g.lds(f"ds_write_b128 v{V_SHW}, {vr(B+4,4)}", "sw")
    g(f"v_cmp_ne_u32 vcc, v{VRD}, v{VXV}")
    g("s_nop 1")
    g(f"s_cmp_eq_u64 vcc, 0")
    g(f"s_cselect_b32 s{S_LOC}, {opt.local}, 0")
    g("s_waitcnt lgkmcnt(0)")
    g("s_barrier")
    KZ = B + 16
    for h in range(4):
        g.lds(f"ds_read_b128 {vr(KZ+h*4,4)}, v{V_L16} offset:{L_SHR + h*1024}", ("sr", h))
    g.stamp("Pshr"); g.stamp("Eshr")
    if opt.midpre: g.flush(mid)
    NUM = V_ACCQ; DEN = V_RING
    def wo_fn(n, half):
        i, ct = divmod(n, 4)
        def f():
            off = g.ldsaddr(V_BO + ct, lds_wo(i), 2048)
            g.lds(f"ds_read_b64_tr_b16 {ar(n*4+half*2,2)}, v{V_BO+ct} offset:{off+half*2048}", ("wo", n))
        return f
    early = [(n, half) for n in range(opt.early) for half in range(2)]
    for h in range(4):
        g.wait_lg(("sr", h))
        for rt in range(2):
            pq = PQB + (rt * 4 + h) * 2
            for l in (f"v_mfma_f32_16x16x16_bf16 {vr(DEN+(rt*4+h)*4,4)}, {vr(KZ+h*4+2,2)}, {vr(pq,2)}, {vr(EPSQ,4)}",
                      f"v_mfma_f32_16x16x16_bf16 {vr(NUM+(rt*4+h)*4,4)}, {vr(KZ+h*4,2)}, {vr(pq,2)}, 0"):
                g(l)
                for _ in range(2):
                    if early:
                        n, half = early.pop(0)
                        wo_fn(n, half)()
    assert not early
    OB = V_RING + 32
    order = [(rt, h) for h in range(4) for rt in range(2)]
    for (rt, h) in order[:4]:
        d = DEN + (rt * 4 + h) * 4
        g(f"v_rcp_f32 v{d}, v{d}")
    g("s_nop 3")
    for (rt, h) in order[4:]:
        d = DEN + (rt * 4 + h) * 4
        g(f"v_rcp_f32 v{d}, v{d}")
    sts = []
    if opt.rest:
        g(f"v_mov_b32 v{VPK}, v{VOPA}")
        g(f"v_mov_b32 v{VPZ}, v{VRA}")
    for (rt, h) in order:
        d = DEN + (rt * 4 + h) * 4; nn = NUM + (rt * 4 + h) * 4; ob = OB + (rt * 4 + h) * 2
        g(f"v_pk_mul_f32 {vr(nn,2)}, {vr(nn,2)}, {vr(d,2)} op_sel_hi:[1,0]")
        g(f"v_pk_mul_f32 {vr(nn+2,2)}, {vr(nn+2,2)}, {vr(d,2)} op_sel_hi:[1,0]")
        g(f"v_cvt_pk_bf16_f32 v{ob}, v{nn}, v{nn+1}")
        g(f"v_cvt_pk_bf16_f32 v{ob+1}, v{nn+2}, v{nn+3}")
        if h % 2 == 1:
            so = "0" if rt == 0 else f"s{S_16K}"
            sts.append(f"buffer_store_dwordx4 {vr(OB+(rt*4+h-1)*2,4)}, v{VPK if opt.rest else VOPA}, {sr(S_WS,4)}, {so} offen offset:{(h//2)*1024}")
    def ck_sum(dst, regs):
        L = [f"v_add3_u32 v{dst}, v{regs[0]}, v{regs[1]}, v{VTAG}"]
        for k in range(2, 16, 2): L.append(f"v_add3_u32 v{dst}, v{regs[k]}, v{regs[k+1]}, v{dst}")
        return L
    for l in ck_sum(TM, list(range(OB, OB + 16))): g(l)
    sts.append(f"buffer_store_dword v{TM}, v{VRA}, {sr(S_WS,4)}, 0 offen")
    g(f"s_cmp_eq_u32 s{S_LOC}, 0")
    g("s_cbranch_scc1 L_st_remote")
    for l in sts: g.vmem(l + " " + opt.locflag, "o_st")
    g("L_st_done:")
    g.remote = sts
    g.stamp("o_stored")
    g.flush(mid)
    OF = 64; ACO = 224; CKR = TM + 2
    def ofr(i, rt):
        if i < 2: return OB + rt * 8 + i * 4
        return OF + ((i - 2) // 2) * 16 + rt * 8 + (i % 2) * 4
    def of_txt(c, rt, k, fl=None):
        return f"buffer_load_dwordx4 {vr(ofr(2*c+k, rt),4)}, v{A0 if rt == 0 else V_PPF2}, {sr(S_WS,4)}, s{S_SX+c} offen offset:{k*1024} {opt.ldflag if fl is None else fl}"
    def ck_txt(c, fl=None): return f"buffer_load_dword v{CKR+c}, v{A1}, {sr(S_WS,4)}, s{S_SW+c} offen {opt.ldflag if fl is None else fl}"
    V_PPF2 = VPK
    g(f"v_mov_b32 v{V_PPF2}, v{V_PPF}")
    lds_ = []
    for c in range(1, 8):
        for k in range(2):
            for rt in range(2):
                lds_.append(V(lambda c=c, rt=rt, k=k: g.vmem(of_txt(c, rt, k), ("of", c))))
        lds_.append(V(lambda c=c: g.vmem(ck_txt(c), ("of", c))))
    def chk_ops(c):
        b_ = ofr(2 * c, 0)
        return ck_sum(ACC, list(range(b_, b_ + 16))) + [f"v_cmp_ne_u32 vcc, v{ACC}, v{CKR+c}"]
    g.retry = (of_txt, ck_txt, chk_ops)
    NP = opt.npre4
    nof = 0
    for n in range(opt.early, NP):
        wo_fn(n, 0)(); wo_fn(n, 1)()
        if n + 1 >= opt.ofat and nof < opt.ofpre and (n + 1 - opt.ofat) % opt.ofgap == 0:
            if nof == 0: g.stamp("of_issue")
            lds_.pop(0)(); nof += 1
    if nof == 0: g.stamp("of_issue")
    while nof < opt.ofpre: lds_.pop(0)(); nof += 1
    g.stamp("preread")
    mf = []; fixed = {}; fill = [(0, f, False) for f in lds_]; load = {}
    def fxl(k, fn, w=1):
        fx(k, fn); load[k] = load.get(k, 0) + w
    for i in range(16):
        for ct in range(4):
            for rt in range(2):
                a = ACO + (rt * 4 + ct) * 4
                c = "0" if i == 0 else vr(a, 4)
                mf.append(f"v_mfma_f32_16x16x32_bf16 {vr(a,4)}, {ar((i*4+ct)*4,4)}, {vr(ofr(i,rt),4)}, {c}")
        if i * 4 + 3 >= NP or i == 0: fxl(i * 8, lambda i=i: g.wait_lg(("wo", i * 4 + 3)))
    for n in (32, 64, 96): fx(n, lambda n=n: g.stamp(f"Pm{n}"))
    for c in range(1, 8):
        nb = 16 * c
        ops = chk_ops(c)
        fxl(nb - len(ops) - 1, lambda c=c: g.need(fill, ("of", c), 5))
        for q, l in enumerate(ops): fxl(nb - len(ops) - 1 + q, lambda l=l: g(l))
        fxl(nb - 1, lambda c=c: (g(f"s_cbranch_vccnz L_rt{c}"), g(f"L_back{c}:")))
    if opt.wbl2:
        def wb():
            g(f"s_cmp_lt_u32 s{S_SO2}, {opt.wbn}")
            g("s_cbranch_scc0 L_nowb")
            g("buffer_wbl2 sc1")
            g("L_nowb:")
        fxl(opt.wbl2, wb, 2)
        g(f"s_lshl_b32 s{S_SO2}, s{S_WV}, 8")
        g(f"s_add_u32 s{S_SO2}, s{S_SO2}, s2")
    gap = 0
    for n in range(NP, 64):
        for half in range(2):
            while load.get(gap, 0) >= opt.rpg: gap += 1
            assert gap < (n // 4) * 8 - 4, (gap, n)
            fxl(gap, wo_fn(n, half))
    g.stream(mf, fixed, fill, cap=opt.cap2, vsp=opt.vsp2)
    assert not fill
    g.stamp("mfma2")
    g("s_nop 7")
    OP = 64
    for rt in range(2):
        for p in range(2):
            a0 = ACO + (rt * 4 + 2 * p) * 4; a1 = a0 + 4; o = OP + (rt * 2 + p) * 4
            g(f"v_cvt_pk_bf16_f32 v{o}, v{a0}, v{a0+1}")
            g(f"v_cvt_pk_bf16_f32 v{o+1}, v{a0+2}, v{a0+3}")
            g(f"v_cvt_pk_bf16_f32 v{o+2}, v{a1}, v{a1+1}")
            g(f"v_cvt_pk_bf16_f32 v{o+3}, v{a1+2}, v{a1+3}")
            g("s_nop 1")
            g(f"v_permlane16_swap_b32 v{o}, v{o+2}")
            g(f"v_permlane16_swap_b32 v{o+1}, v{o+3}")
            so = "0" if rt == 0 else f"s{S_32K}"
            g.vmem(f"buffer_store_dwordx4 {vr(o,4)}, v{VO}, {sr(S_OUT,4)}, {so} offen offset:{p*64} {opt.outflag}", "out")
    g("s_cmp_ge_u32 s2, 2")
    g("s_cbranch_scc1 L_noep")
    g(f"s_cmp_lg_u32 s{S_WV}, 0")
    g("s_cbranch_scc1 L_noep")
    g(f"s_lshl_b32 s{S_T0}, s{S_BR}, 7")
    g(f"s_add_u32 s{S_T0}, s{S_T0}, {WS_EP}")
    g(f"v_mov_b32 v{VF}, 0")
    g(f"v_cmp_eq_u32 vcc, 0, v{V_LANE}")
    g(f"s_and_saveexec_b64 {sr(S_EX,2)}, vcc")
    g(f"buffer_store_dword v{VTAG}, v{VF}, {sr(S_WS,4)}, s{S_T0} offen sc1")
    g(f"s_mov_b64 exec, {sr(S_EX,2)}")
    g("L_noep:")
    if opt.ts:
        g("s_waitcnt vmcnt(0)")
        g.stamp("out_done")
        g(f"s_lshl_b32 s{S_T0}, s2, 2")
        g(f"s_add_u32 s{S_T0}, s{S_T0}, s{S_WV}")
        g(f"s_lshl_b32 s{S_T0}, s{S_T0}, 7")
        g(f"s_add_u32 s{S_T0}, s{S_T0}, {WS_TS}")
        g(f"v_mov_b32 v{A1}, 0")
        g(f"v_cmp_eq_u32 vcc, 0, v{V_LANE}")
        g(f"s_and_saveexec_b64 {sr(S_EX,2)}, vcc")
        for i in range(16):
            if i < g.nstamp:
                g(f"v_mov_b32 v64, s{64+2*i}"); g(f"v_mov_b32 v65, s{65+2*i}")
            elif i == 15:
                g(f"s_lshl_b32 s{S_LOC}, s{S_LOC}, 8"); g(f"s_add_u32 s{S_CNTA}, s{S_CNTA}, s{S_LOC}"); g(f"v_mov_b32 v64, s{S_CNTA}"); g(f"v_mov_b32 v65, s{S_CNT}")
            else:
                g(f"v_mov_b32 v64, s64"); g(f"v_mov_b32 v65, s65")
            g(f"buffer_store_dwordx2 v[64:65], v{A1}, {sr(S_WS,4)}, s{S_T0} offen offset:{i*8}")
            g("s_nop 1")
    g("L_end:")
    g("s_endpgm")
    g("L_st_remote:")
    for l in g.remote: g(l + " sc1")
    g("s_branch L_st_done")
    of_txt, ck_txt, chk_ops = g.retry
    for c in range(1, 8):
        g(f"L_rt{c}:")
        g(f"s_add_u32 s{S_CNT}, s{S_CNT}, 1")
        g(f"s_cmp_gt_u32 s{S_CNT}, {opt.spin}")
        g(f"s_cbranch_scc1 L_back{c}")
        for k in range(2):
            for rt in range(2): g(of_txt(c, rt, k, 'sc1'))
        g(ck_txt(c, 'sc1'))
        g("s_waitcnt vmcnt(0)")
        for l in chk_ops(c): g(l)
        g("s_nop 1")
        g(f"s_cbranch_vccnz L_rt{c}")
        g(f"s_branch L_back{c}")
    g("L_code_end:")
    g(f""".section .rodata,"a"
.p2align 6
.amdhsa_kernel {NAME}
  .amdhsa_next_free_vgpr 512
  .amdhsa_next_free_sgpr 102
  .amdhsa_accum_offset 256
  .amdhsa_group_segment_fixed_size 0
  .amdhsa_kernarg_size 72
  .amdhsa_user_sgpr_count 2
  .amdhsa_user_sgpr_kernarg_segment_ptr 1
  .amdhsa_system_sgpr_workgroup_id_x 1
.end_amdhsa_kernel""")
    print("late-issued fillers:", getattr(g, "late", 0), file=sys.stderr)
    if opt.ts:
        g("; stamps: " + " ".join(g.names))
    return g.text()

def parser():
    ap = argparse.ArgumentParser()
    ap.add_argument("-o", default="k.s")
    ap.add_argument("--ts", action="store_true")
    ap.add_argument("--tsk", action="store_true")
    ap.add_argument("--tsp", action="store_true")
    ap.add_argument("--cyc", action="store_true")
    ap.add_argument("--tse", action="store_true")
    ap.add_argument("--plrot", type=int, default=1)
    ap.add_argument("--map", default="B")
    ap.add_argument("--rota", type=int, default=4)
    ap.add_argument("--rotb", type=int, default=4)
    ap.add_argument("--rotc", type=int, default=2)
    ap.add_argument("--depth", type=int, default=3)
    ap.add_argument("--pf", type=int, default=6)
    ap.add_argument("--cap", type=int, default=2)
    ap.add_argument("--npre4", type=int, default=64)
    ap.add_argument("--cap2", type=int, default=3)
    ap.add_argument("--vsw", type=int, default=999)
    ap.add_argument("--vspl", type=int, default=3)
    ap.add_argument("--pro", type=int, default=1)
    ap.add_argument("--opre", type=int, default=8)
    ap.add_argument("--chk0", type=int, default=999)
    ap.add_argument("--chkd", type=int, default=7)
    ap.add_argument("--wbl2", type=int, default=114)
    ap.add_argument("--wbn", type=int, default=8)
    ap.add_argument("--cgshift", type=int, default=0)
    ap.add_argument("--plphi", type=int, default=-1)
    ap.add_argument("--plper", type=int, default=2)
    ap.add_argument("--ppf", type=int, default=0)
    ap.add_argument("--early", type=int, default=16)
    ap.add_argument("--rest", type=int, default=0)
    ap.add_argument("--local", type=int, default=1)
    ap.add_argument("--locflag", default="")
    ap.add_argument("--ldflag", default="nt")
    ap.add_argument("--plflag", default="sc1")
    ap.add_argument("--pubflag", default="sc1")
    ap.add_argument("--ipf", type=int, default=2)
    ap.add_argument("--ofpre", type=int, default=9)
    ap.add_argument("--vsp2", type=int, default=2)
    ap.add_argument("--rd0", type=int, default=24)
    ap.add_argument("--midgap", type=int, default=2)
    ap.add_argument("--midpre", type=int, default=1)
    ap.add_argument("--rpg", type=int, default=2)
    ap.add_argument("--sent", type=int, default=3)
    ap.add_argument("--ofat", type=int, default=56)
    ap.add_argument("--ofgap", type=int, default=1)
    ap.add_argument("--init", type=int, default=0)
    ap.add_argument("--nwoq", type=int, default=11)
    ap.add_argument("--woq_after", type=int, default=0)
    ap.add_argument("--plfirst", type=int, default=0)
    ap.add_argument("--pollat", type=int, default=52)
    ap.add_argument("--bgap", type=int, default=41)
    ap.add_argument("--d2", type=int, default=4)
    ap.add_argument("--d2from", type=int, default=2)
    ap.add_argument("--wq0", type=int, default=200)
    ap.add_argument("--wqs", type=int, default=6)
    ap.add_argument("--wqepi", type=int, default=2)
    ap.add_argument("--wo0", type=int, default=0)
    ap.add_argument("--pfq", type=int, default=4)
    ap.add_argument("--pfo", type=int, default=8)
    ap.add_argument("--opf", type=int, default=1)
    ap.add_argument("--vsp", type=int, default=2)
    ap.add_argument("--vspq", type=int, default=2)
    ap.add_argument("--qsync", type=int, default=4)
    ap.add_argument("--plstart", type=int, default=88)
    ap.add_argument("--plsolo", type=int, default=1)
    ap.add_argument("--npre", type=int, default=8)
    ap.add_argument("--s0", type=int, default=2)
    ap.add_argument("--flagat", type=int, default=40)
    ap.add_argument("--polla", type=int, default=0)
    ap.add_argument("--chk", type=int, default=1)
    ap.add_argument("--spin", type=int, default=20000)
    ap.add_argument("--xflag", default="")
    ap.add_argument("--xflag2", default="")
    ap.add_argument("--wflag", default="")
    ap.add_argument("--qflag", default="")
    ap.add_argument("--oflag", default="")
    ap.add_argument("--outflag", default="sc0 sc1")
    return ap
if __name__ == "__main__":
    opt = parser().parse_args()
    open(opt.o, "w").write(gen(opt))
```

```python
import sys, argparse
NAME = "concat_heads__linear_attn_block__linear_attn_block__prompt_kernel"

WS_O    = 0
WS_PK   = 4 << 20
WS_PZ   = 5 << 20
WS_FL   = (5 << 20) + (64 << 10)
WS_EP   = WS_FL + (16 << 10)
WS_TS   = 6 << 20
WS_CK   = 7 << 20
WS_XT   = (7 << 20) + (512 << 10)
WS_SIZE = 8 << 20
LOG2E = 0x3fb8aa3b
EPS   = 0x358637bd
ONE_EPS = 0x3f800008

class G:
    def __init__(self, opt):
        self.L = []; self.opt = opt; self.vm = []; self.lg = []; self.nstamp = 0; self.names = []
        self.hi = {}
    def __call__(self, s): self.L.append(s)
    def vmem(self, s, tag=None): self.L.append(s); self.vm.append(tag)
    def lds(self, s, tag=None): self.L.append(s); self.lg.append(tag)
    def _n_after(self, lst, tags):
        idx = max(i for i, t in enumerate(lst) if t in tags)
        return len(lst) - 1 - idx
    def wait_vm(self, *tags):
        n = self._n_after(self.vm, tags); self.L.append(f"s_waitcnt vmcnt({min(n,63)})")
    def wait_lg(self, *tags):
        n = self._n_after(self.lg, tags); self.L.append(f"s_waitcnt lgkmcnt({min(n,15)})")
    def stamp(self, name):
        if not self.opt.ts: return
        if self.opt.tsk and not (name.startswith("B") or name in ("start", "sync0", "kv_end", "published", "q_end", "out_done")): return
        if not self.opt.tsk and name.startswith("B"): return
        if self.opt.tsp and name in ("kernarg", "sync0", "kv_end", "published", "q_end", "phiq_end"): return
        if not self.opt.tsp and name.startswith("P"): return
        if not self.opt.tse and name.startswith("E"): return
        if self.opt.tse and name in ("kernarg", "sync0", "of_issue", "preread", "mfma2", "Ephik"): return
        i = self.nstamp; self.nstamp += 1; self.names.append(name)
        assert i < 13
        self.L.append(f"{'s_memtime' if self.opt.cyc else 's_memrealtime'} s[{64+2*i}:{65+2*i}]")
        self.L.append("s_waitcnt lgkmcnt(0)")
    def ldsaddr(self, vreg, byte, span=4096):
        cur = self.hi.get(vreg, 0)
        if not (cur <= byte and byte + span < cur + 0x10000):
            new = byte & ~0x7fff
            self.L.append(f"v_add_u32 v{vreg}, {(new - cur) & 0xffffffff:#x}, v{vreg}")
            self.hi[vreg] = cur = new
        return byte - cur
    def stream(self, mfmas, fixed, fillers, cap=2, vsp=1):
        lastv = -100
        for k, m in enumerate(mfmas):
            n0 = len(self.L)
            for fn in fixed.get(k, []): fn()
            while fillers and fillers[0][0] <= k and len(self.L) - n0 < cap:
                _, fn, last = fillers[0]
                isv = getattr(fn, "isv", False)
                if isv and k - lastv < (vsp(k) if callable(vsp) else vsp): break
                fillers.pop(0)
                fn()
                if isv: lastv = k
                if last: break
            self.L.append(m)
    def need(self, fillers, tag, count):
        while self.vm.count(tag) < count:
            _, fn, last = fillers.pop(0)
            fn()
            if last: self.L.append("s_nop 0")
            self.late = getattr(self, "late", 0) + 1
        self.wait_vm(tag)
    def flush(self, fillers):
        for _, fn, last in fillers:
            fn()
            if last: self.L.append("s_nop 0")
        del fillers[:]
    def text(self): return "\n".join(self.L) + "\n"

def vr(b, n=1): return f"v{b}" if n == 1 else f"v[{b}:{b+n-1}]"
def ar(b, n=1): return f"a{b}" if n == 1 else f"a[{b}:{b+n-1}]"
def sr(b, n=1): return f"s{b}" if n == 1 else f"s[{b}:{b+n-1}]"

S_SX, S_SW = 4, 12
S_W2K, S_W1K = 22, 23
S_X, S_W, S_WO, S_OUT, S_WS = 24, 28, 32, 36, 40
S_BR, S_RB, S_CG, S_WV = 44, 45, 46, 47
S_T0, S_T1, S_T2, S_T3 = 48, 49, 50, 51
S_16K = 52; S_TAG = 53; S_RB64, S_CB = 54, 55
S_LOG2E, S_C1, S_EPS = 56, 58, 60
S_CNT = 62; S_SOFF = 63
S_EX = 96; S_CNTA = 98; S_ROT = 99; S_W4K = 100; S_SO2 = 101
S_4K, S_8K, S_12K = 3, 20, 21
S_32K = 93
V_LANE, V_G, V_I = 1, 2, 3
V_BKV = 4
V_BQ = 12
V_BO = 16
V_XR = 24
V_WQ = 26
V_WO = 28
VEP = 30
VO = 31
TM = 32
A0, A1 = 44, 45
VPK, VPZ, VTAG, VMSK = 46, 47, 48, 49
ACC, VF, VFA = 50, 51, 56
ZL = 52
VPFQ, VPFO, VPFD, VPFO2 = 42, 43, 41, 57
VOPA, VRA, VRD, VXA, VXV = 240, 241, 242, 243, 244
V_LRW, V_LZW, V_LRR, V_LZR, V_PZW, V_PKW, V_SHW, V_L16, V_DUM, V_ZERO = 245, 246, 247, 248, 249, 250, 251, 252, 253, 254
S_XW, S_LOC = 94, 95
S_MI0 = 90
A_ONES, A_EPS = 128, 132
V_PPF = 255; V_OPRE = 159
V_XD = 56
V_WD = 60
V_ACCKV = 64; V_ACCQ = 128; V_RING = 160; NRING = 16; V_E = 224
T = 32
def acckv(rt, ct): return V_ACCKV + (rt * 8 + ct) * 4
def accq(rt, h): return V_ACCQ + (rt * 4 + h) * 4
def xa(j, rt): return (j * 2 + rt) * 4

SLOT = 32768
def slot_of(t): return (t % 5) * SLOT
def lds_q(tq): return 3 * SLOT + tq * 8192
L_RED = 0; L_REDZ = 16 << 10; L_SHR = 20 << 10
def lds_wo(i): return SLOT + i * 4096
LDS_BYTES = 160 << 10

def prologue(g):
    o = g.opt
    g("s_cmp_ge_u32 s2, 256")
    g("s_cbranch_scc1 L_end")
    g.stamp("start")
    g("s_load_dwordx16 s[4:19], s[0:1], 0")
    g("s_load_dwordx2 s[20:21], s[0:1], 64")
    if o.ipf:
        g("s_getpc_b64 s[22:23]")
        g("L_pc:")
        g(f"s_lshr_b32 s{S_T0}, s2, 3")
        g(f"s_lshl_b32 s{S_T0}, s{S_T0}, 2")
        g(f"v_lshrrev_b32 v{T+1}, 6, v0")
        g(f"v_add_u32 v{T+1}, s{S_T0}, v{T+1}")
        g(f"v_mul_u32_u24 v{T+1}, {o.ipf*128}, v{T+1}")
        g(f"v_and_b32 v{T+2}, 63, v0")
        g(f"v_lshl_add_u32 v{T+1}, v{T+2}, 7, v{T+1}")
        g(f"v_min_u32 v{T+1}, L_code_end-L_pc-4, v{T+1}")
        g(f"s_mov_b64 exec, {(1 << o.ipf) - 1}")
        g.vmem(f"global_load_dword v{V_DUM}, v{T+1}, s[22:23]", "ipf")
        g("s_mov_b64 exec, -1")
    g(f"v_lshrrev_b32 v{T}, 6, v0")
    g(f"v_and_b32 v{V_LANE}, 63, v0")
    g(f"v_readfirstlane_b32 s{S_WV}, v{T}")
    g(f"s_and_b32 s{S_BR}, s2, 1")
    g(f"s_lshr_b32 s{S_T0}, s2, 3")
    g(f"s_and_b32 s{S_T1}, s{S_T0}, 7")
    g(f"s_lshr_b32 s{S_CB}, s{S_T0}, 3")
    if o.map == "A":
        g(f"s_bfe_u32 s{S_T2}, s2, 0x10001")
        g(f"s_bfe_u32 s{S_T3}, s2, 0x10002")
        g(f"s_lshl_b32 s{S_RB}, s{S_T2}, 3")
        g(f"s_add_u32 s{S_RB}, s{S_RB}, s{S_T1}")
        g(f"s_lshl_b32 s{S_CG}, s{S_T3}, 2")
        g(f"s_add_u32 s{S_CG}, s{S_CG}, s{S_CB}")
        g(f"s_lshl_b32 s{S_RB64}, s{S_T2}, 4")
        g(f"s_lshl_b32 s{S_T3}, s{S_T3}, 3")
        g(f"s_add_u32 s{S_RB64}, s{S_RB64}, s{S_T3}")
        g(f"s_add_u32 s{S_RB64}, s{S_RB64}, s{S_T1}")
    else:
        g(f"s_bfe_u32 s{S_T2}, s2, 0x20001")
        g(f"s_lshl_b32 s{S_RB}, s{S_T2}, 2")
        g(f"s_add_u32 s{S_RB}, s{S_RB}, s{S_CB}")
        g(f"s_add_u32 s{S_CG}, s{S_T1}, {o.cgshift}")
        g(f"s_and_b32 s{S_CG}, s{S_CG}, 7")
        g(f"s_lshl_b32 s{S_RB64}, s{S_T2}, 3")
        g(f"s_add_u32 s{S_RB64}, s{S_RB64}, s{S_T1}")
    g(f"s_mul_i32 s{S_T1}, s{S_T1}, {o.rota}")
    g(f"s_mul_i32 s{S_T2}, s{S_CB}, {o.rotb}")
    g(f"s_add_u32 s{S_ROT}, s{S_T1}, s{S_T2}")
    if o.rotc:
        g(f"s_bfe_u32 s{S_T2}, s2, 0x20001")
        g(f"s_mul_i32 s{S_T2}, s{S_T2}, {o.rotc}")
        g(f"s_add_u32 s{S_ROT}, s{S_ROT}, s{S_T2}")
    g(f"s_and_b32 s{S_ROT}, s{S_ROT}, 7")
    g(f"v_lshrrev_b32 v{V_G}, 4, v{V_LANE}")
    g(f"v_and_b32 v{V_I}, 15, v0")
    g(f"s_lshl_b32 s{S_W4K}, s{S_WV}, 12")
    g(f"v_lshrrev_b32 v{T}, 3, v{V_LANE}")
    g(f"v_lshlrev_b32 v{T}, 10, v{T}")
    g(f"v_and_b32 v{T+1}, 7, v{V_LANE}")
    g(f"v_xor_b32 v{T+1}, v{T+1}, v{V_G}")
    g(f"s_lshl_b32 s{S_T0}, s{S_RB}, 17")
    g(f"s_lshl_b32 s{S_T1}, s{S_WV}, 15")
    g(f"s_add_u32 s{S_T0}, s{S_T0}, s{S_T1}")
    g(f"v_lshl_add_u32 v{V_XD}, v{T+1}, 4, v{T}")
    g(f"v_add_u32 v{V_XD}, s{S_T0}, v{V_XD}")
    g(f"v_xor_b32 v{V_XD+1}, 64, v{V_XD}")
    g(f"v_add_u32 v{V_XD+1}, {7168}, v{V_XD+1}")
    g(f"v_add_u32 v{V_XD+2}, {2*7168}, v{V_XD}")
    g(f"v_add_u32 v{V_XD+3}, {2*7168}, v{V_XD+1}")
    g(f"v_lshrrev_b32 v{T+1}, 1, v{V_I}")
    g(f"v_xor_b32 v{T+1}, v{V_G}, v{T+1}")
    g(f"v_lshrrev_b32 v{T+2}, 2, v{T+1}")
    g(f"v_lshlrev_b32 v{T+2}, 10, v{T+2}")
    g(f"v_and_b32 v{T+3}, 3, v{T+1}")
    g(f"v_lshl_add_u32 v{T+2}, v{T+3}, 5, v{T+2}")
    g(f"v_and_b32 v{T+3}, 1, v{V_I}")
    g(f"v_lshl_add_u32 v{T+2}, v{T+3}, 4, v{T+2}")
    g(f"v_xor_b32 v{T+5}, 1024, v{T+2}")
    g(f"s_lshl_b32 s{S_T2}, s{S_WV}, 4")
    g(f"v_add_u32 v{T+4}, s{S_T2}, v{V_G}")
    g(f"v_mul_u32_u24 v{T+4}, 3072, v{T+4}")
    g(f"s_lshl_b32 s{S_T2}, s{S_CG}, 7")
    g(f"s_add_u32 s{S_T3}, s{S_T2}, 1024")
    g(f"v_add3_u32 v{V_WD}, v{T+4}, v{T+2}, s{S_T3}")
    g(f"v_add_u32 v{V_WD+1}, {12288-1024}, v{V_WD}")
    g(f"s_add_u32 s{S_T3}, s{S_T3}, {2*(12288-1024)}")
    g(f"v_add3_u32 v{V_WD+2}, v{T+4}, v{T+5}, s{S_T3}")
    g(f"v_add_u32 v{V_WD+3}, {12288-1024}, v{V_WD+2}")
    g(f"s_lshl_b32 s{S_T0}, s{S_ROT}, 7")
    g(f"s_mul_i32 s{S_T1}, s{S_ROT}, 196608")
    g(f"s_mov_b32 m0, s{S_W4K}")
    g("s_waitcnt lgkmcnt(0)")
    g.stamp("kernarg")
    g(f"s_cmp_eq_u32 s{S_BR}, 0")
    g(f"s_cselect_b32 s{S_X}, s4, s10")
    g(f"s_cselect_b32 s{S_X+1}, s5, s11")
    g(f"s_mov_b32 s{S_X+2}, {2048*512*2}")
    g(f"s_mov_b32 s{S_X+3}, 0x20000")
    g(f"s_cselect_b32 s{S_W}, s6, s12")
    g(f"s_cselect_b32 s{S_W+1}, s7, s13")
    g(f"s_mov_b32 s{S_W+2}, {512*1536*2}")
    g(f"s_mov_b32 s{S_W+3}, 0x20000")
    for m in range(4):
        g.vmem(f"buffer_load_dwordx4 v{V_XD+m}, {sr(S_X,4)}, s{S_T0} offen offset:{m*1024} {o.xflag} lds", ("st", 0))
    g(f"s_add_u32 m0, s{S_W4K}, 16384")
    g(f"s_cselect_b32 s{S_WO}, s8, s14") if False else None
    g("s_nop 0")
    for i in range(4):
        g.vmem(f"buffer_load_dwordx4 v{V_WD+i}, {sr(S_W,4)}, s{S_T1} offen offset:{i*1024} {o.wflag} lds", ("st", 0))
    g(f"s_cmp_eq_u32 s{S_BR}, 0")
    g(f"s_cselect_b32 s{S_WO}, s8, s14")
    g(f"s_cselect_b32 s{S_WO+1}, s9, s15")
    g(f"s_mov_b32 s{S_WO+2}, {512*512*2}")
    g(f"s_mov_b32 s{S_WO+3}, 0x20000")
    g(f"s_mov_b32 s{S_OUT}, s16")
    g(f"s_mov_b32 s{S_OUT+1}, s17")
    g(f"s_mov_b32 s{S_OUT+2}, {2048*1024*2}")
    g(f"s_mov_b32 s{S_OUT+3}, 0x20000")
    g(f"s_mov_b32 s{S_WS}, s20")
    g(f"s_mov_b32 s{S_WS+1}, s21")
    g(f"s_mov_b32 s{S_WS+2}, {WS_SIZE}")
    g(f"s_mov_b32 s{S_WS+3}, 0x20000")
    for t in range(8):
        g(f"s_add_u32 s{S_T0}, s{S_ROT}, {t}")
        g(f"s_and_b32 s{S_T0}, s{S_T0}, 7")
        g(f"s_lshl_b32 s{S_SX+t}, s{S_T0}, 7")
        g(f"s_mul_i32 s{S_SW+t}, s{S_T0}, 196608")

def prologue2(g):
    g(f"s_mov_b32 s{S_16K}, 16384")
    g(f"s_mov_b32 s{S_4K}, 4096")
    g(f"s_mov_b32 s{S_32K}, 32768")
    g(f"s_mov_b32 s{S_8K}, 8192")
    g(f"s_mov_b32 s{S_12K}, 12288")
    g(f"s_lshl_b32 s{S_W2K}, s{S_WV}, 11")
    g(f"s_lshl_b32 s{S_W1K}, s{S_WV}, 10")
    for r, val in ((S_LOG2E, LOG2E), (S_C1, ONE_EPS), (S_EPS, EPS)):
        g(f"s_mov_b32 s{r}, {val:#x}")
        g(f"s_mov_b32 s{r+1}, {val:#x}")
    g(f"v_lshrrev_b32 v{T}, 1, v{V_I}")
    g(f"v_xor_b32 v{T}, v{T}, v{V_G}")
    g(f"v_lshlrev_b32 v{T+1}, 7, v{V_I}")
    g(f"v_lshl_add_u32 v{T}, v{T}, 4, v{T+1}")
    g(f"v_add_u32 v{V_XR}, s{S_W4K}, v{T}")
    g(f"v_xor_b32 v{V_XR+1}, 64, v{V_XR}")
    g(f"v_lshrrev_b32 v{T}, 2, v{V_I}")
    g(f"v_and_b32 v{T+1}, 3, v{V_I}")
    g(f"v_and_b32 v{T+2}, 1, v{V_G}")
    g(f"v_lshl_add_u32 v{T+2}, v{T+2}, 2, v{T}")
    g(f"v_lshl_add_u32 v{T+3}, v{V_G}, 3, v{T}")
    g(f"v_lshlrev_b32 v{T+4}, 8, v{T+3}")
    g(f"v_lshl_add_u32 v{T+4}, v{T+1}, 3, v{T+4}")
    for ct in range(8):
        g(f"v_xor_b32 v{T+5}, {ct}, v{T+2}")
        g(f"v_lshl_add_u32 v{V_BKV+ct}, v{T+5}, 5, v{T+4}")
    g(f"v_lshlrev_b32 v{T+4}, 7, v{T+3}")
    g(f"v_lshl_add_u32 v{T+4}, v{T+1}, 3, v{T+4}")
    g(f"v_lshrrev_b32 v{T+5}, 1, v{T}")
    g(f"v_and_b32 v{T+6}, 1, v{V_G}")
    g(f"v_lshl_add_u32 v{T+5}, v{T+6}, 1, v{T+5}")
    g(f"v_add_u32 v{T+4}, {3*SLOT}, v{T+4}")
    for ct in range(4):
        g(f"v_xor_b32 v{T+6}, {ct}, v{T+5}")
        g(f"v_lshl_add_u32 v{V_BQ+ct}, v{T+6}, 5, v{T+4}")
        g.hi[V_BQ + ct] = 3 * SLOT
    g(f"v_lshl_add_u32 v{T+3}, v{V_G}, 2, v{T}")
    g(f"v_lshlrev_b32 v{T+4}, 7, v{T+3}")
    g(f"v_lshl_add_u32 v{T+4}, v{T+1}, 3, v{T+4}")
    g(f"v_add_u32 v{T+4}, {SLOT}, v{T+4}")
    for ct in range(4):
        g(f"v_xor_b32 v{T+6}, {ct}, v{T+5}")
        g(f"v_lshl_add_u32 v{V_BO+ct}, v{T+6}, 5, v{T+4}")
        g.hi[V_BO + ct] = SLOT
    g(f"v_lshrrev_b32 v{T}, 3, v{V_I}")
    g(f"v_lshl_add_u32 v{T}, v{V_G}, 1, v{T}")
    g(f"s_lshl_b32 s{S_T3}, s{S_WV}, 4")
    g(f"v_add_u32 v{T}, s{S_T3}, v{T}")
    g(f"v_mul_u32_u24 v{T}, 3072, v{T}")
    g(f"v_bfe_u32 v{T+1}, v{V_I}, 1, 2")
    g(f"v_and_b32 v{T+2}, 1, v{V_G}")
    g(f"v_xor_b32 v{T+1}, v{T+1}, v{T+2}")
    g(f"v_lshlrev_b32 v{T+1}, 5, v{T+1}")
    g(f"v_and_b32 v{T+3}, 1, v{V_I}")
    g(f"v_lshl_add_u32 v{T+1}, v{T+3}, 4, v{T+1}")
    g(f"v_xor_b32 v{T+2}, 64, v{T+1}")
    g(f"s_lshl_b32 s{S_T2}, s{S_CG}, 7")
    g(f"v_add3_u32 v{V_WQ}, v{T}, v{T+1}, s{S_T2}")
    g(f"s_add_u32 s{S_T2}, s{S_T2}, {8*3072-1024}")
    g(f"v_add3_u32 v{V_WQ+1}, v{T}, v{T+2}, s{S_T2}")
    g(f"v_lshrrev_b32 v{T}, 3, v{V_I}")
    g(f"v_lshl_add_u32 v{T}, v{V_G}, 1, v{T}")
    g(f"v_add_u32 v{T}, s{S_T3}, v{T}")
    g(f"v_lshlrev_b32 v{T}, 10, v{T}")
    g(f"v_bfe_u32 v{T+1}, v{V_I}, 1, 2")
    g(f"v_xor_b32 v{T+1}, v{T+1}, v{V_G}")
    g(f"v_lshl_add_u32 v{T}, v{T+1}, 5, v{T}")
    g(f"v_lshl_add_u32 v{T}, v{T+3}, 4, v{T}")
    g(f"s_lshl_b32 s{S_T0}, s{S_CG}, 7")
    g(f"v_add_u32 v{V_WO}, s{S_T0}, v{T}")
    g(f"v_add_u32 v{V_WO+1}, {8192-1024}, v{V_WO}")
    g(f"s_lshr_b32 s{S_T0}, s2, 3")
    g(f"s_lshl_b32 s{S_T0}, s{S_T0}, 2")
    g(f"s_add_u32 s{S_T0}, s{S_T0}, s{S_WV}")
    g(f"s_lshl_b32 s{S_T0}, s{S_T0}, 2")
    g(f"v_add_u32 v{T}, s{S_T0}, v{V_G}")
    g(f"v_lshlrev_b32 v{T+1}, 6, v{V_I}")
    g(f"v_lshl_add_u32 v{VPFO}, v{T}, 10, v{T+1}")
    g(f"v_mul_u32_u24 v{T}, 3072, v{T}")
    g(f"v_add_u32 v{VPFQ}, v{T}, v{T+1}")
    g(f"s_lshl_b32 s{S_T0}, s{S_BR}, 21")
    g(f"s_lshl_b32 s{S_T1}, s{S_RB}, 17")
    g(f"s_add_u32 s{S_T0}, s{S_T0}, s{S_T1}")
    g(f"s_lshl_b32 s{S_T1}, s{S_WV}, 15")
    g(f"s_add_u32 s{S_T0}, s{S_T0}, s{S_T1}")
    g(f"s_lshl_b32 s{S_T1}, s{S_CG}, 11")
    g(f"s_add_u32 s{S_T0}, s{S_T0}, s{S_T1}")
    g(f"v_lshl_add_u32 v{VOPA}, v{V_LANE}, 4, s{S_T0}")
    g(f"s_lshl_b32 s{S_T0}, s{S_BR}, 4")
    g(f"s_add_u32 s{S_T0}, s{S_T0}, s{S_RB}")
    g(f"s_lshl_b32 s{S_T1}, s{S_T0}, 2")
    g(f"s_add_u32 s{S_T1}, s{S_T1}, s{S_WV}")
    g(f"s_lshl_b32 s{S_T1}, s{S_T1}, 11")
    g(f"s_add_u32 s{S_T1}, s{S_T1}, {WS_CK}")
    g(f"v_lshl_add_u32 v{A1}, v{V_LANE}, 2, s{S_T1}")
    g(f"s_lshl_b32 s{S_T2}, s{S_CG}, 8")
    g(f"v_add_u32 v{VRA}, s{S_T2}, v{A1}")
    g(f"s_lshl_b32 s{S_T0}, s{S_T0}, 10")
    g(f"s_add_u32 s{S_T0}, s{S_T0}, {WS_XT}")
    g(f"v_and_b32 v{VXA}, 7, v{V_LANE}")
    g(f"v_lshl_add_u32 v{VXA}, v{VXA}, 7, s{S_T0}")
    g(f"s_lshl_b32 s{S_T1}, s{S_CG}, 7")
    g(f"s_add_u32 s{S_T0}, s{S_T0}, s{S_T1}")
    g(f"s_lshl_b32 s{S_T1}, s{S_WV}, 2")
    g(f"s_add_u32 s{S_XW}, s{S_T0}, s{S_T1}")
    g(f"s_getreg_b32 s{S_LOC}, hwreg(HW_REG_XCC_ID)")
    g(f"s_and_b32 s{S_LOC}, s{S_LOC}, 15")
    g(f"s_lshl_b32 s{S_T0}, s{S_BR}, 7")
    g(f"s_add_u32 s{S_T0}, s{S_T0}, {WS_EP}")
    g(f"v_mov_b32 v{VF}, 0")
    g.vmem(f"buffer_load_dword v{VEP}, v{VF}, {sr(S_WS,4)}, s{S_T0} offen sc1", "ep")

def prologue3(g):
    g(f"v_lshlrev_b32 v{V_L16}, 4, v{V_LANE}")
    g(f"v_mov_b32 v{V_ZERO}, 0")
    g(f"v_mov_b32 v{VMSK}, 0xff")
    g(f"v_cmp_eq_u32 {sr(S_MI0,2)}, 0, v{V_I}")
    g(f"v_add_u32 v{V_LRW}, s{S_W4K}, v{V_L16}")
    g(f"s_lshl_b32 s{S_T0}, s{S_WV}, 8")
    g(f"s_add_u32 s{S_T0}, s{S_T0}, {L_REDZ}")
    g(f"v_lshl_add_u32 v{V_LZW}, v{V_G}, 4, s{S_T0}")
    g(f"v_add_u32 v{V_LRR}, s{S_W1K}, v{V_L16}")
    g(f"s_lshl_b32 s{S_T0}, s{S_WV}, 6")
    g(f"s_add_u32 s{S_T0}, s{S_T0}, {L_REDZ}")
    g(f"v_lshl_add_u32 v{V_LZR}, v{V_G}, 4, s{S_T0}")
    g(f"s_add_u32 s{S_T0}, s{S_W1K}, {L_SHR}")
    g(f"v_add_u32 v{V_SHW}, s{S_T0}, v{V_L16}")
    g(f"s_lshl_b32 s{S_T0}, s{S_BR}, 3")
    g(f"s_add_u32 s{S_T0}, s{S_T0}, s{S_CG}")
    g(f"s_lshl_b32 s{S_T0}, s{S_T0}, 2")
    g(f"s_add_u32 s{S_T0}, s{S_T0}, s{S_WV}")
    g(f"s_lshl_b32 s{S_T1}, s{S_T0}, 14")
    g(f"s_add_u32 s{S_T1}, s{S_T1}, {WS_PK}")
    g(f"s_lshl_b32 s{S_T2}, s{S_T0}, 10")
    g(f"s_add_u32 s{S_T2}, s{S_T2}, {WS_PZ}")
    g(f"v_add_u32 v{VPK}, s{S_T1}, v{V_L16}")
    g(f"s_lshl_b32 s{S_T1}, s{S_RB}, 10")
    g(f"v_add_u32 v{V_PKW}, s{S_T1}, v{VPK}")
    g(f"v_lshlrev_b32 v{VPZ}, 6, v{V_I}")
    g(f"v_lshl_add_u32 v{VPZ}, v{V_G}, 4, v{VPZ}")
    g(f"v_add_u32 v{VPZ}, s{S_T2}, v{VPZ}")
    g(f"s_lshl_b32 s{S_T3}, s{S_RB}, 6")
    g(f"s_add_u32 s{S_T2}, s{S_T2}, s{S_T3}")
    g(f"v_lshl_add_u32 v{V_PZW}, v{V_G}, 4, s{S_T2}")
    g(f"v_readfirstlane_b32 s{S_T0}, v{VOPA}")
    g(f"v_readfirstlane_b32 s{S_T1}, v{VRA}")
    g(f"v_and_b32 v{T}, 1, v{V_G}")
    g(f"v_lshlrev_b32 v{V_OPRE}, 14, v{T}")
    g(f"v_lshl_add_u32 v{V_OPRE}, v{V_I}, 7, v{V_OPRE}")
    g(f"v_add_u32 v{V_OPRE}, s{S_T0}, v{V_OPRE}")
    g(f"v_and_b32 v{T+1}, 1, v{V_LANE}")
    g(f"v_lshl_add_u32 v{T}, v{T+1}, 7, s{S_T1}")
    g(f"v_cmp_gt_u32 vcc, 32, v{V_LANE}")
    g("s_nop 1")
    g(f"v_cndmask_b32 v{V_OPRE}, v{T}, v{V_OPRE}, vcc")
    g(f"v_mov_b32 v{T}, 0x3f803f80")
    for k in range(4):
        g(f"v_accvgpr_write_b32 a{A_ONES+k}, v{T}")
    g(f"s_lshl_b32 s{S_T1}, s{S_CG}, 11")
    g(f"v_subrev_u32 v{A0}, s{S_T1}, v{VOPA}")
    g(f"v_add_u32 v{V_PPF}, 16384, v{A0}")
    g(f"s_lshl_b32 s{S_T0}, s{S_RB}, 18")
    g(f"s_lshl_b32 s{S_T1}, s{S_WV}, 16")
    g(f"s_add_u32 s{S_T0}, s{S_T0}, s{S_T1}")
    g(f"s_lshl_b32 s{S_T1}, s{S_BR}, 10")
    g(f"s_add_u32 s{S_T0}, s{S_T0}, s{S_T1}")
    g(f"s_lshl_b32 s{S_T1}, s{S_CG}, 7")
    g(f"s_add_u32 s{S_T0}, s{S_T0}, s{S_T1}")
    g(f"v_lshlrev_b32 v{VO}, 11, v{V_I}")
    g(f"v_and_b32 v{T}, 1, v{V_G}")
    g(f"v_lshl_add_u32 v{VO}, v{T}, 5, v{VO}")
    g(f"v_lshrrev_b32 v{T}, 1, v{V_G}")
    g(f"v_lshl_add_u32 v{VO}, v{T}, 4, v{VO}")
    g(f"v_add_u32 v{VO}, s{S_T0}, v{VO}")
    g(f"s_mov_b32 s{S_CNT}, 0")
    g(f"s_mov_b32 s{S_CNTA}, 0")


def V(fn):
    fn.isv = True
    return fn

def stage_fill(g, t, e):
    o = g.opt; sl = slot_of(t); F = []
    F.append((e, lambda: g(f"s_add_u32 m0, s{S_W4K}, {sl}"), True))
    for m in range(4):
        F.append((e, V(lambda m=m: g.vmem(f"buffer_load_dwordx4 v{V_XD+m}, {sr(S_X,4)}, s{S_SX+t} offen offset:{m*1024} {o.xflag if t < 4 else o.xflag2} lds", ("st", t))), False))
    F.append((e, lambda: g(f"s_add_u32 m0, s{S_W4K}, {sl+16384}"), True))
    for i in range(4):
        F.append((e, V(lambda i=i: g.vmem(f"buffer_load_dwordx4 v{V_WD+i}, {sr(S_W,4)}, s{S_SW+t} offen offset:{i*1024} {o.wflag} lds", ("st", t))), False))
    return F

def sent_fill(g, e):
    F = []
    for rt in range(2):
        for uu in range(2):
            so = "0" if rt == 0 else f"s{S_16K}"
            F.append((e, V(lambda so=so, uu=uu: g.vmem(f"buffer_store_dwordx4 {vr(VSEN,4)}, v{VOPA}, {sr(S_WS,4)}, {so} offen offset:{uu*1024} sc1", "sent")), False))
    return F

def wq_fill(g, tq, e):
    F = [(e, lambda: g(f"s_add_u32 m0, s{S_W2K}, {lds_q(tq)}"), True)]
    for i in range(2):
        F.append((e, V(lambda i=i: g.vmem(f"buffer_load_dwordx4 v{V_WQ+i}, {sr(S_W,4)}, s{S_SW+tq} offen offset:{i*1024} {g.opt.qflag} lds", ("wq", tq))), False))
    return F

def wo_fill(g, pr, e):
    F = [(e, lambda: g(f"s_add_u32 s{S_T0}, s{S_CG}, {pr}"), False),
         (e, lambda: g(f"s_and_b32 s{S_T0}, s{S_T0}, 7"), False),
         (e, lambda: g(f"s_lshl_b32 s{S_SOFF}, s{S_T0}, 16"), False),
         (e, lambda: g(f"s_add_u32 m0, s{S_W2K}, {lds_wo(2*pr)}"), True)]
    for i in range(2):
        F.append((e, V(lambda i=i: g.vmem(f"buffer_load_dwordx4 v{V_WO+i}, {sr(S_WO,4)}, s{S_SOFF} offen offset:{i*1024} {g.opt.oflag} lds", ("wo", pr))), False))
    F.append((e, lambda: g(f"s_lshl_b32 s{S_SX+pr}, s{S_T0}, 11"), False))
    F.append((e, lambda: g(f"s_lshl_b32 s{S_SW+pr}, s{S_T0}, 8"), False))
    return F

def phi2(g, src, tmp, dst):
    u, a = tmp, tmp + 2
    g(f"v_pk_mul_f32 {vr(u,2)}, {vr(src,2)}, {sr(S_LOG2E,2)}")
    g(f"v_pk_add_f32 {vr(a,2)}, {vr(src,2)}, {sr(S_C1,2)}")
    g(f"v_exp_f32 v{u}, v{u} clamp")
    g(f"v_exp_f32 v{u+1}, v{u+1} clamp")
    return [f"v_pk_add_f32 {vr(u,2)}, {vr(u,2)}, {sr(S_EPS,2)}",
            f"v_max_f32 v{a}, v{a}, v{u}",
            f"v_max_f32 v{a+1}, v{a+1}, v{u+1}",
            f"v_cvt_pk_bf16_f32 v{dst}, v{a}, v{a+1}"]

def phi_block(g, pairs, tmpbase, ntmp=3, hook=None):
    pend = None
    for n, (src, dst) in enumerate(pairs):
        tail = phi2(g, src, tmpbase + (n % ntmp) * 4, dst)
        if pend:
            for s in pend: g(s)
        pend = tail
        if hook: hook(n)
    g("s_nop 0")
    for s in pend: g(s)

SOK = ["0", f"s{S_4K}", f"s{S_8K}", f"s{S_12K}"]
def partial_fill(g, e, fl=None):
    fl = g.opt.plflag if fl is None else fl
    F = [(e, V(lambda: g.vmem(f"buffer_load_dwordx4 {vr(ZL,4)}, v{VPZ}, {sr(S_WS,4)}, 0 offen {fl}", "pl")), False)]
    F.append((e, V(lambda: g.vmem(f"buffer_load_dword v{VRD}, v{VXA}, {sr(S_WS,4)}, 0 offen {fl}", "pl")), False))
    for p in range(16):
        F.append((e, V(lambda p=p: g.vmem(f"buffer_load_dwordx4 {vr(V_ACCKV+p*4,4)}, v{VPK}, {sr(S_WS,4)}, {SOK[p//4]} offen offset:{(p%4)*1024} {fl}", "pl")), g.opt.plsolo))
    return F

def gen(opt):
    g = G(opt)
    g(f"; @launch grid=(256,1,1) block=(256,1,1) lds={LDS_BYTES}")
    g('.amdgcn_target "amdgcn-amd-amdhsa--gfx950"')
    g(".text")
    g(f".globl {NAME}\n.p2align 8\n.type {NAME},@function\n{NAME}:")
    prologue(g)
    D = opt.depth
    if opt.pro == 0:
        for t in range(1, D):
            g.flush(stage_fill(g, t, 0))
            if t == 1: prologue2(g)
        prologue3(g)
    elif opt.pro == 1:
        g.flush(stage_fill(g, 1, 0))
        prologue2(g); prologue3(g)
        for t in range(2, D): g.flush(stage_fill(g, t, 0))
    else:
        g.flush(stage_fill(g, 1, 0))
        f2 = stage_fill(g, 2, 0)
        prologue2(g)
        g.flush(f2[:5])
        prologue3(g)
        g.flush(f2[5:])
        for t in range(3, D): g.flush(stage_fill(g, t, 0))
    P = opt.pf
    NF = 128
    def xr_fn(t, jj, rt):
        def f():
            off = g.ldsaddr(V_XR + jj, slot_of(t) + rt * 2048, 0)
            g.lds(f"ds_read_b128 {ar(xa(2*t+jj, rt),4)}, v{V_XR+jj} offset:{off}", ("xf", t, jj, rt))
        return f
    def kv_fn(n, half):
        j, ct = divmod(n, 8)
        r = V_RING + (n % NRING) * 4 + half * 2
        def f():
            off = g.ldsaddr(V_BKV + ct, slot_of(j // 2) + 16384 + (j % 2) * 8192, 1024)
            g.lds(f"ds_read_b64_tr_b16 {vr(r,2)}, v{V_BKV+ct} offset:{off+half*1024}", ("bkv", n))
        return f
    mf = []
    for n in range(NF):
        j, ct = divmod(n, 8)
        r = V_RING + (n % NRING) * 4
        for rt in range(2):
            c = "0" if j == 0 else vr(acckv(rt, ct), 4)
            mf.append(f"v_mfma_f32_16x16x32_bf16 {vr(acckv(rt,ct),4)}, {ar(xa(j,rt),4)}, {vr(r,4)}, {c}")
    fixed = {}; fill = []
    def fx(k, fn): fixed.setdefault(k, []).append(fn)
    nxt = D; wqn = 0
    def opre_fn():
        g("s_mov_b32 exec_hi, 3")
        g.vmem(f"buffer_load_dword v{V_DUM}, v{V_OPRE}, {sr(S_WS,4)}, 0 offen", "ppf")
        g("s_mov_b32 exec_hi, -1")
    for _ in range(opt.init):
        fill += stage_fill(g, nxt, 0); nxt += 1
    for n in range(NF):
        m = n + P
        if m < NF:
            if m % 16 == 0:
                t = m // 16
                fx(2 * n, lambda t=t: g.need(fill, ("st", t), 8))
                fx(2 * n, lambda: g("s_barrier"))
                fx(2 * n, lambda t=t: g.stamp(f"B{t}"))
                for q, (jj, rt) in enumerate([(0, 0), (0, 1), (1, 0), (1, 1)]):
                    fx(2 * n + 1 + 2 * q + (0 if q < 2 else 6), xr_fn(t, jj, rt))
                while nxt < 8 and (nxt < 5 or nxt - 5 <= t - 2) and nxt <= t + (D if t < opt.d2from else opt.d2) - 1:
                    fill += stage_fill(g, nxt, 2 * n + 1); nxt += 1
                if t == opt.pfq:
                    fill.append((2 * n + 1, V(lambda: g.vmem(f"buffer_load_dword v{V_DUM}, v{VPFQ}, {sr(S_W,4)}, 0 offen", "pf")), False))
                if t == opt.opre: fill.append((2 * n + 1, V(opre_fn), False))
                if t == opt.pfo:
                    fill.append((2 * n + 1, V(lambda: g.vmem(f"buffer_load_dword v{V_DUM}, v{VPFO}, {sr(S_WO,4)}, 0 offen", "pf")), False))
                if nxt == 8:
                    while wqn < 8 and (3 + wqn // 4) <= t - 2:
                        fill += wq_fill(g, wqn, max(2 * n + 1, opt.wq0 + wqn * opt.wqs)); wqn += 1
            fx(2 * n, kv_fn(m, 0)); fx(2 * n + 1, kv_fn(m, 1))
        if n % 2 == 1 and n + 1 < NF:
            def wfn(n=n):
                tags = [("bkv", min(n + 2, NF - 1))]
                j2 = (n + 2) // 8
                for jn in {(n + 1) // 8, min(n + 2, NF - 1) // 8}:
                    tags += [("xf", jn // 2, jn % 2, 0), ("xf", jn // 2, jn % 2, 1)]
                g.wait_lg(*tags)
            fx(2 * n + 1, wfn)
    tagops = [lambda: g.wait_vm("ep"), lambda: g(f"v_readfirstlane_b32 s{S_TAG}, v{VEP}"),
              lambda: g(f"s_add_u32 s{S_TAG}, s{S_TAG}, 0x9e3779b1"), lambda: g(f"v_mov_b32 v{VTAG}, s{S_TAG}"),
              lambda: g(f"s_andn2_b32 s{S_T3}, s{S_TAG}, 15"), lambda: g(f"s_or_b32 s{S_T3}, s{S_T3}, s{S_LOC}"),
              lambda: g(f"v_mov_b32 v{VXV}, s{S_T3}"), lambda: g(f"v_mov_b32 v{VPFO2}, v{VPFO}")]
    for q, fn in enumerate(tagops): fx(244 + q + (q > 1), fn)
    g.wait_vm(("st", 0))
    g("s_barrier")
    g.stamp("sync0")
    for jj, rt in [(0, 0), (0, 1)]: xr_fn(0, jj, rt)()
    for n in range(2): kv_fn(n, 0)(); kv_fn(n, 1)()
    for jj, rt in [(1, 0), (1, 1)]: xr_fn(0, jj, rt)()
    for n in range(2, P): kv_fn(n, 0)(); kv_fn(n, 1)()
    g.wait_lg(("bkv", 1))
    g.stream(mf, fixed, fill, cap=opt.cap, vsp=lambda k: opt.vsp if k < opt.vsw else opt.vspl)
    g.stamp("kv_end")
    PK = V_E; VV = V_RING
    assert wqn == 8 and nxt == 8
    if not opt.wqepi: g.flush(fill)
    if opt.pfo == 8:
        fill.append((0, V(lambda: g.vmem(f"buffer_load_dword v{V_DUM}, v{VPFO2}, {sr(S_WO,4)}, 0 offen", "pf")), False))
    if opt.opre == 8: fill.append((0, V(opre_fn), False))
    KVP = V_RING + 20; ZP = V_RING + 36
    pairs = [(acckv(rt, h) + 2 * p, PK + h * 4 + rt * 2 + p) for h in range(4) for rt in range(2) for p in range(2)]
    def cv(h):
        for rt in range(2):
            for p in range(2):
                s = acckv(rt, 4 + h) + 2 * p
                g(f"v_cvt_pk_bf16_f32 v{VV + h*4 + rt*2 + p}, v{s}, v{s+1}")
    def mfk(h):
        g(f"v_mfma_f32_16x16x32_bf16 {vr(KVP+h*4,4)}, {vr(PK+h*4,4)}, {vr(VV+h*4,4)}, 0")
        g(f"v_mfma_f32_16x16x32_bf16 {vr(ZP+h*4,4)}, {vr(PK+h*4,4)}, {ar(A_ONES,4)}, 0")
    def wr(h):
        g.lds(f"ds_write_b128 v{V_LRW}, {vr(KVP+h*4,4)} offset:{h*1024}", "rw")
        g(f"s_mov_b64 exec, {sr(S_MI0,2)}")
        g.lds(f"ds_write_b128 v{V_LZW}, {vr(ZP+h*4,4)} offset:{h*64}", "rw")
        g(f"s_mov_b64 exec, -1")
    def hook(n):
        for _ in range(opt.wqepi):
            if fill:
                _e, fn, last = fill.pop(0); fn()
                if last: break
        if n % 4 == 2: cv(n // 4)
        if n >= 5 and n % 4 == 1: mfk(n // 4 - 1)
        if n >= 7 and n % 4 == 3: wr(n // 4 - 1)
    phi_block(g, pairs, TM, hook=hook)
    g.flush(fill)
    g.stamp("Ephik")
    g("s_nop 1")
    mfk(3)
    g("s_nop 7")
    wr(3)
    SQ = opt.qsync
    g.need(fill, ("wq", SQ - 1), 2)
    g("s_waitcnt lgkmcnt(0)")
    g("s_barrier")
    g.stamp("Ebar")
    R0 = V_RING
    for w2 in range(4):
        g.lds(f"ds_read_b128 {vr(R0+w2*4,4)}, v{V_LRR} offset:{w2*4096}", ("rr", w2))
    for w2 in range(4):
        g.lds(f"ds_read_b128 {vr(R0+16+w2*4,4)}, v{V_LZR} offset:{w2*256}", ("rz", w2))
    QR, NQR = V_RING + 32, 8
    PQ = 6
    NQ = 64
    def q_fn(n, half):
        j, h = divmod(n, 4)
        r = QR + (n % NQR) * 4 + half * 2
        def f():
            off = g.ldsaddr(V_BQ + h, lds_q(j // 2) + (j % 2) * 4096, 512)
            g.lds(f"ds_read_b64_tr_b16 {vr(r,2)}, v{V_BQ+h} offset:{off+half*512}", ("bq", n))
        return f
    for n in range(3): q_fn(n, 0)(); q_fn(n, 1)()
    g.wait_lg(("rr", 1))
    g(f"v_pk_add_f32 {vr(R0,2)}, {vr(R0,2)}, {vr(R0+4,2)}")
    g(f"v_pk_add_f32 {vr(R0+2,2)}, {vr(R0+2,2)}, {vr(R0+6,2)}")
    g.wait_lg(("rr", 3))
    g(f"v_pk_add_f32 {vr(R0+8,2)}, {vr(R0+8,2)}, {vr(R0+12,2)}")
    g(f"v_pk_add_f32 {vr(R0+10,2)}, {vr(R0+10,2)}, {vr(R0+14,2)}")
    g(f"v_pk_add_f32 {vr(R0,2)}, {vr(R0,2)}, {vr(R0+8,2)}")
    g(f"v_pk_add_f32 {vr(R0+2,2)}, {vr(R0+2,2)}, {vr(R0+10,2)}")
    for k in range(4): g(f"v_bfi_b32 v{R0+k}, v{VMSK}, v{VTAG}, v{R0+k}")
    g.vmem(f"buffer_store_dwordx4 {vr(R0,4)}, v{V_PKW}, {sr(S_WS,4)}, 0 offen {opt.pubflag}", "pk_st")
    Z0 = R0 + 16
    g.wait_lg(("rz", 3))
    g(f"v_pk_add_f32 {vr(Z0,2)}, {vr(Z0,2)}, {vr(Z0+4,2)}")
    g(f"v_pk_add_f32 {vr(Z0+2,2)}, {vr(Z0+2,2)}, {vr(Z0+6,2)}")
    g(f"v_pk_add_f32 {vr(Z0+8,2)}, {vr(Z0+8,2)}, {vr(Z0+12,2)}")
    g(f"v_pk_add_f32 {vr(Z0+10,2)}, {vr(Z0+10,2)}, {vr(Z0+14,2)}")
    g(f"v_pk_add_f32 {vr(Z0,2)}, {vr(Z0,2)}, {vr(Z0+8,2)}")
    g(f"v_pk_add_f32 {vr(Z0+2,2)}, {vr(Z0+2,2)}, {vr(Z0+10,2)}")
    for k in range(4): g(f"v_bfi_b32 v{Z0+k}, v{VMSK}, v{VTAG}, v{Z0+k}")
    g(f"s_mov_b64 exec, {sr(S_MI0,2)}")
    g.vmem(f"buffer_store_dwordx4 {vr(Z0,4)}, v{V_PZW}, {sr(S_WS,4)}, 0 offen {opt.pubflag}", "pz_st")
    g(f"s_mov_b64 exec, 1")
    g.vmem(f"buffer_store_dword v{VXV}, v{V_ZERO}, {sr(S_WS,4)}, s{S_XW} offen sc1", "xt_st")
    g(f"s_mov_b64 exec, -1")
    if opt.pfo == 9:
        g.vmem(f"buffer_load_dword v{V_DUM}, v{VPFO2}, {sr(S_WO,4)}, 0 offen", "pf")
    g.stamp("published")
    for n in range(3, PQ): q_fn(n, 0)(); q_fn(n, 1)()
    mf = []; fixed = {}; fill = []
    for n in range(NQ):
        j, h = divmod(n, 4)
        r = QR + (n % NQR) * 4
        for rt in range(2):
            c = "0" if j == 0 else vr(accq(rt, h), 4)
            mf.append(f"v_mfma_f32_16x16x32_bf16 {vr(accq(rt,h),4)}, {vr(r,4)}, {ar(xa(j,rt),4)}, {c}")
        m = n + PQ
        if m < NQ:
            if m % (8 * SQ) == 0:
                fx(2 * n, lambda m=m: g.need(fill, ("wq", min(m // 8 + SQ - 1, 7)), 2))
                fx(2 * n, lambda: g("s_barrier"))
            fx(2 * n, q_fn(m, 0)); fx(2 * n + 1, q_fn(m, 1))
        if n in (16, 32, 48): fx(2 * n, lambda n=n: g.stamp(f"Eq{n}"))
        if n % 2 == 1 and n + 1 < NQ:
            fx(2 * n + 1, lambda n=n: g.wait_lg(("bq", min(n + 2, NQ - 1))))
    EPSQ = 60
    if opt.opre == 9: fx(1, opre_fn)
    for k in range(4): fill.append((0, lambda k=k: g(f"v_mov_b32 v{EPSQ+k}, {EPS:#x}"), False))
    for u in range(8): fill += wo_fill(g, u, opt.wo0)
    fill += partial_fill(g, opt.plstart)
    g.wait_lg(("bq", 1))
    g.stream(mf, fixed, fill, cap=opt.cap, vsp=opt.vspq)
    g.stamp("q_end")
    if opt.plphi < 0: g.flush(fill)
    g("s_nop 7")
    PQB = V_E
    pairs = [(accq(rt, h) + 2 * p, PQB + (rt * 4 + h) * 2 + p) for rt in range(2) for h in range(4) for p in range(2)]
    def hookq(n):
        if n >= opt.plphi:
            for _ in range(opt.plper):
                if fill:
                    _e, fn, last = fill.pop(0); fn()
                    if last: break
    phi_block(g, pairs, TM, hook=hookq)
    g.flush(fill)
    g.stamp("phiq_end")
    B = V_ACCKV
    g("L_chkA:")
    g("s_waitcnt vmcnt(0)")
    g.vm = []
    if opt.chk == 4:
        regs = [ZL + 2, ZL + 3] + [B + k for k in range(64)]
    else:
        regs = [B + 4 * k + 3 for k in range(16)]
    g(f"v_xor_b32 v{ACC}, v{VTAG}, v{ZL}")
    g(f"v_xor_b32 v{VF}, v{VTAG}, v{ZL+(1 if opt.chk == 4 else 3)}")
    for n, rg in enumerate(regs):
        a = ACC if n % 2 == 0 else VF
        g(f"v_bitop3_b32 v{a}, v{a}, v{rg}, v{VTAG} bitop3:0xf6")
    g(f"v_or_b32 v{ACC}, v{ACC}, v{VF}")
    g(f"v_and_b32 v{ACC}, 0xff, v{ACC}")
    g(f"v_cmp_ne_u32 vcc, 0, v{ACC}")
    g(f"s_add_u32 s{S_CNTA}, s{S_CNTA}, 1")
    g("s_cbranch_vccz L_okA")
    g(f"s_cmp_gt_u32 s{S_CNTA}, {opt.spin}")
    g("s_cbranch_scc1 L_okA")
    for _, f, _l in partial_fill(g, 0, 'sc1'): f()
    g("s_branch L_chkA")
    g("L_okA:")
    g.vm = []
    g.stamp("okA")
    mid = []
    va = []
    for sh in (8, 4, 2, 1):
        for k in range(4):
            va.append(f"v_add_f32_dpp v{ZL+k}, v{ZL+k}, v{ZL+k} row_ror:{sh} row_mask:0xf bank_mask:0xf")
    for st in (32, 16, 8, 4):
        for k in range(0, st, 2):
            va.append(f"v_pk_add_f32 {vr(B+k,2)}, {vr(B+k,2)}, {vr(B+k+st,2)}")
    for n_, l in enumerate(va):
        g(l)
        if mid and n_ % opt.midgap == 0: mid.pop(0)[1]()
    g(f"v_cvt_pk_bf16_f32 v{B+6}, v{ZL}, v{ZL+1}")
    g(f"v_cvt_pk_bf16_f32 v{B+7}, v{ZL+2}, v{ZL+3}")
    g(f"v_cvt_pk_bf16_f32 v{B+4}, v{B}, v{B+1}")
    g(f"v_cvt_pk_bf16_f32 v{B+5}, v{B+2}, v{B+3}")
    g.lds(f"ds_write_b128 v{V_SHW}, {vr(B+4,4)}", "sw")
    g(f"v_cmp_ne_u32 vcc, v{VRD}, v{VXV}")
    g("s_nop 1")
    g(f"s_cmp_eq_u64 vcc, 0")
    g(f"s_cselect_b32 s{S_LOC}, {opt.local}, 0")
    g("s_waitcnt lgkmcnt(0)")
    g("s_barrier")
    KZ = B + 16
    for h in range(4):
        g.lds(f"ds_read_b128 {vr(KZ+h*4,4)}, v{V_L16} offset:{L_SHR + h*1024}", ("sr", h))
    g.stamp("Pshr"); g.stamp("Eshr")
    if opt.midpre: g.flush(mid)
    NUM = V_ACCQ; DEN = V_RING
    def wo_fn(n, half):
        i, ct = divmod(n, 4)
        def f():
            off = g.ldsaddr(V_BO + ct, lds_wo(i), 2048)
            g.lds(f"ds_read_b64_tr_b16 {ar(n*4+half*2,2)}, v{V_BO+ct} offset:{off+half*2048}", ("wo", n))
        return f
    early = [(n, half) for n in range(opt.early) for half in range(2)]
    for h in range(4):
        g.wait_lg(("sr", h))
        for rt in range(2):
            pq = PQB + (rt * 4 + h) * 2
            for l in (f"v_mfma_f32_16x16x16_bf16 {vr(DEN+(rt*4+h)*4,4)}, {vr(KZ+h*4+2,2)}, {vr(pq,2)}, {vr(EPSQ,4)}",
                      f"v_mfma_f32_16x16x16_bf16 {vr(NUM+(rt*4+h)*4,4)}, {vr(KZ+h*4,2)}, {vr(pq,2)}, 0"):
                g(l)
                for _ in range(2):
                    if early:
                        n, half = early.pop(0)
                        wo_fn(n, half)()
    assert not early
    OB = V_RING + 32
    order = [(rt, h) for h in range(4) for rt in range(2)]
    for (rt, h) in order[:4]:
        d = DEN + (rt * 4 + h) * 4
        g(f"v_rcp_f32 v{d}, v{d}")
    g("s_nop 3")
    for (rt, h) in order[4:]:
        d = DEN + (rt * 4 + h) * 4
        g(f"v_rcp_f32 v{d}, v{d}")
    sts = []
    if opt.rest:
        g(f"v_mov_b32 v{VPK}, v{VOPA}")
        g(f"v_mov_b32 v{VPZ}, v{VRA}")
    for (rt, h) in order:
        d = DEN + (rt * 4 + h) * 4; nn = NUM + (rt * 4 + h) * 4; ob = OB + (rt * 4 + h) * 2
        g(f"v_pk_mul_f32 {vr(nn,2)}, {vr(nn,2)}, {vr(d,2)} op_sel_hi:[1,0]")
        g(f"v_pk_mul_f32 {vr(nn+2,2)}, {vr(nn+2,2)}, {vr(d,2)} op_sel_hi:[1,0]")
        g(f"v_cvt_pk_bf16_f32 v{ob}, v{nn}, v{nn+1}")
        g(f"v_cvt_pk_bf16_f32 v{ob+1}, v{nn+2}, v{nn+3}")
        if h % 2 == 1:
            so = "0" if rt == 0 else f"s{S_16K}"
            sts.append(f"buffer_store_dwordx4 {vr(OB+(rt*4+h-1)*2,4)}, v{VPK if opt.rest else VOPA}, {sr(S_WS,4)}, {so} offen offset:{(h//2)*1024}")
    def ck_sum(dst, regs):
        L = [f"v_add3_u32 v{dst}, v{regs[0]}, v{regs[1]}, v{VTAG}"]
        for k in range(2, 16, 2): L.append(f"v_add3_u32 v{dst}, v{regs[k]}, v{regs[k+1]}, v{dst}")
        return L
    for l in ck_sum(TM, list(range(OB, OB + 16))): g(l)
    sts.append(f"buffer_store_dword v{TM}, v{VRA}, {sr(S_WS,4)}, 0 offen")
    g(f"s_cmp_eq_u32 s{S_LOC}, 0")
    g("s_cbranch_scc1 L_st_remote")
    for l in sts: g.vmem(l + " " + opt.locflag, "o_st")
    g("L_st_done:")
    g.remote = sts
    g.stamp("o_stored")
    g.flush(mid)
    OF = 64; ACO = 224; CKR = TM + 2
    def ofr(i, rt):
        if i < 2: return OB + rt * 8 + i * 4
        return OF + ((i - 2) // 2) * 16 + rt * 8 + (i % 2) * 4
    def of_txt(c, rt, k, fl=None):
        return f"buffer_load_dwordx4 {vr(ofr(2*c+k, rt),4)}, v{A0 if rt == 0 else V_PPF2}, {sr(S_WS,4)}, s{S_SX+c} offen offset:{k*1024} {opt.ldflag if fl is None else fl}"
    def ck_txt(c, fl=None): return f"buffer_load_dword v{CKR+c}, v{A1}, {sr(S_WS,4)}, s{S_SW+c} offen {opt.ldflag if fl is None else fl}"
    V_PPF2 = VPK
    g(f"v_mov_b32 v{V_PPF2}, v{V_PPF}")
    lds_ = []
    for c in range(1, 8):
        for k in range(2):
            for rt in range(2):
                lds_.append(V(lambda c=c, rt=rt, k=k: g.vmem(of_txt(c, rt, k), ("of", c))))
        lds_.append(V(lambda c=c: g.vmem(ck_txt(c), ("of", c))))
    def chk_ops(c):
        b_ = ofr(2 * c, 0)
        return ck_sum(ACC, list(range(b_, b_ + 16))) + [f"v_cmp_ne_u32 vcc, v{ACC}, v{CKR+c}"]
    g.retry = (of_txt, ck_txt, chk_ops)
    NP = opt.npre4
    assert NP >= 12
    nof = 0
    for n in range(opt.early, NP):
        wo_fn(n, 0)(); wo_fn(n, 1)()
        if n + 1 >= opt.ofat and nof < opt.ofpre and (n + 1 - opt.ofat) % opt.ofgap == 0:
            if nof == 0: g.stamp("of_issue")
            lds_.pop(0)(); nof += 1
    if nof == 0: g.stamp("of_issue")
    while nof < opt.ofpre: lds_.pop(0)(); nof += 1
    g.stamp("preread")
    mf = []; fixed = {}; fill = [(0, f, False) for f in lds_]; load = {}
    def fxl(k, fn, w=1):
        fx(k, fn); load[k] = load.get(k, 0) + w
    for i in range(16):
        for ct in range(4):
            for rt in range(2):
                a = ACO + (rt * 4 + ct) * 4
                c = "0" if i == 0 else vr(a, 4)
                mf.append(f"v_mfma_f32_16x16x32_bf16 {vr(a,4)}, {ar((i*4+ct)*4,4)}, {vr(ofr(i,rt),4)}, {c}")
        if i == 0: fxl(0, lambda: g.wait_lg(("wo", 7)))
        elif i == 2: fxl(16, lambda: g.wait_lg(("wo", NP - 1)))
        if i > 2 and i * 4 + 3 >= NP: fxl(i * 8, lambda i=i: g.wait_lg(("wo", i * 4 + 3)))
    for n in (32, 64, 96): fx(n, lambda n=n: g.stamp(f"Pm{n}"))
    for c in range(1, 8):
        nb = 16 * c
        ops = chk_ops(c)
        fxl(nb - len(ops) - 1, lambda c=c: g.need(fill, ("of", c), 5))
        for q, l in enumerate(ops): fxl(nb - len(ops) - 1 + q, lambda l=l: g(l))
        fxl(nb - 1, lambda c=c: (g(f"s_cbranch_vccnz L_rt{c}"), g(f"L_back{c}:")))
    if opt.wbl2:
        def wb():
            g(f"s_cmp_lt_u32 s{S_SO2}, {opt.wbn}")
            g("s_cbranch_scc0 L_nowb")
            g("buffer_wbl2 sc1")
            g("L_nowb:")
        fxl(opt.wbl2, wb, 2)
        g(f"s_lshl_b32 s{S_SO2}, s{S_WV}, 8")
        g(f"s_add_u32 s{S_SO2}, s{S_SO2}, s2")
    gap = 0
    for n in range(NP, 64):
        for half in range(2):
            while load.get(gap, 0) >= opt.rpg: gap += 1
            assert gap < (n // 4) * 8 - 4, (gap, n)
            fxl(gap, wo_fn(n, half))
    g.stream(mf, fixed, fill, cap=opt.cap2, vsp=opt.vsp2)
    assert not fill
    g.stamp("mfma2")
    g("s_nop 7")
    OP = 64
    for rt in range(2):
        for p in range(2):
            a0 = ACO + (rt * 4 + 2 * p) * 4; a1 = a0 + 4; o = OP + (rt * 2 + p) * 4
            g(f"v_cvt_pk_bf16_f32 v{o}, v{a0}, v{a0+1}")
            g(f"v_cvt_pk_bf16_f32 v{o+1}, v{a0+2}, v{a0+3}")
            g(f"v_cvt_pk_bf16_f32 v{o+2}, v{a1}, v{a1+1}")
            g(f"v_cvt_pk_bf16_f32 v{o+3}, v{a1+2}, v{a1+3}")
            g("s_nop 1")
            g(f"v_permlane16_swap_b32 v{o}, v{o+2}")
            g(f"v_permlane16_swap_b32 v{o+1}, v{o+3}")
            so = "0" if rt == 0 else f"s{S_32K}"
            g.vmem(f"buffer_store_dwordx4 {vr(o,4)}, v{VO}, {sr(S_OUT,4)}, {so} offen offset:{p*64} {opt.outflag}", "out")
    g("s_cmp_ge_u32 s2, 2")
    g("s_cbranch_scc1 L_noep")
    g(f"s_cmp_lg_u32 s{S_WV}, 0")
    g("s_cbranch_scc1 L_noep")
    g(f"s_lshl_b32 s{S_T0}, s{S_BR}, 7")
    g(f"s_add_u32 s{S_T0}, s{S_T0}, {WS_EP}")
    g(f"v_mov_b32 v{VF}, 0")
    g(f"v_cmp_eq_u32 vcc, 0, v{V_LANE}")
    g(f"s_and_saveexec_b64 {sr(S_EX,2)}, vcc")
    g(f"buffer_store_dword v{VTAG}, v{VF}, {sr(S_WS,4)}, s{S_T0} offen sc1")
    g(f"s_mov_b64 exec, {sr(S_EX,2)}")
    g("L_noep:")
    if opt.ts:
        g("s_waitcnt vmcnt(0)")
        g.stamp("out_done")
        g(f"s_lshl_b32 s{S_T0}, s2, 2")
        g(f"s_add_u32 s{S_T0}, s{S_T0}, s{S_WV}")
        g(f"s_lshl_b32 s{S_T0}, s{S_T0}, 7")
        g(f"s_add_u32 s{S_T0}, s{S_T0}, {WS_TS}")
        g(f"v_mov_b32 v{A1}, 0")
        g(f"v_cmp_eq_u32 vcc, 0, v{V_LANE}")
        g(f"s_and_saveexec_b64 {sr(S_EX,2)}, vcc")
        for i in range(16):
            if i < g.nstamp:
                g(f"v_mov_b32 v64, s{64+2*i}"); g(f"v_mov_b32 v65, s{65+2*i}")
            elif i == 15:
                g(f"s_lshl_b32 s{S_LOC}, s{S_LOC}, 8"); g(f"s_add_u32 s{S_CNTA}, s{S_CNTA}, s{S_LOC}"); g(f"v_mov_b32 v64, s{S_CNTA}"); g(f"v_mov_b32 v65, s{S_CNT}")
            else:
                g(f"v_mov_b32 v64, s64"); g(f"v_mov_b32 v65, s65")
            g(f"buffer_store_dwordx2 v[64:65], v{A1}, {sr(S_WS,4)}, s{S_T0} offen offset:{i*8}")
            g("s_nop 1")
    g("L_end:")
    g("s_endpgm")
    g("L_st_remote:")
    for l in g.remote: g(l + " sc1")
    g("s_branch L_st_done")
    of_txt, ck_txt, chk_ops = g.retry
    for c in range(1, 8):
        g(f"L_rt{c}:")
        g(f"s_add_u32 s{S_CNT}, s{S_CNT}, 1")
        g(f"s_cmp_gt_u32 s{S_CNT}, {opt.spin}")
        g(f"s_cbranch_scc1 L_back{c}")
        for k in range(2):
            for rt in range(2): g(of_txt(c, rt, k, 'sc1'))
        g(ck_txt(c, 'sc1'))
        g("s_waitcnt vmcnt(0)")
        for l in chk_ops(c): g(l)
        g("s_nop 1")
        g(f"s_cbranch_vccnz L_rt{c}")
        g(f"s_branch L_back{c}")
    g("L_code_end:")
    g(f""".section .rodata,"a"
.p2align 6
.amdhsa_kernel {NAME}
  .amdhsa_next_free_vgpr 512
  .amdhsa_next_free_sgpr 102
  .amdhsa_accum_offset 256
  .amdhsa_group_segment_fixed_size 0
  .amdhsa_kernarg_size 72
  .amdhsa_user_sgpr_count 2
  .amdhsa_user_sgpr_kernarg_segment_ptr 1
  .amdhsa_system_sgpr_workgroup_id_x 1
.end_amdhsa_kernel""")
    print("late-issued fillers:", getattr(g, "late", 0), file=sys.stderr)
    if opt.ts:
        g("; stamps: " + " ".join(g.names))
    return g.text()

def parser():
    ap = argparse.ArgumentParser()
    ap.add_argument("-o", default="k.s")
    ap.add_argument("--ts", action="store_true")
    ap.add_argument("--tsk", action="store_true")
    ap.add_argument("--tsp", action="store_true")
    ap.add_argument("--cyc", action="store_true")
    ap.add_argument("--tse", action="store_true")
    ap.add_argument("--plrot", type=int, default=1)
    ap.add_argument("--map", default="B")
    ap.add_argument("--rota", type=int, default=4)
    ap.add_argument("--rotb", type=int, default=4)
    ap.add_argument("--rotc", type=int, default=2)
    ap.add_argument("--depth", type=int, default=3)
    ap.add_argument("--pf", type=int, default=6)
    ap.add_argument("--cap", type=int, default=2)
    ap.add_argument("--npre4", type=int, default=64)
    ap.add_argument("--cap2", type=int, default=3)
    ap.add_argument("--vsw", type=int, default=999)
    ap.add_argument("--vspl", type=int, default=3)
    ap.add_argument("--pro", type=int, default=1)
    ap.add_argument("--opre", type=int, default=9)
    ap.add_argument("--chk0", type=int, default=999)
    ap.add_argument("--chkd", type=int, default=7)
    ap.add_argument("--wbl2", type=int, default=108)
    ap.add_argument("--wbn", type=int, default=8)
    ap.add_argument("--cgshift", type=int, default=0)
    ap.add_argument("--plphi", type=int, default=-1)
    ap.add_argument("--plper", type=int, default=2)
    ap.add_argument("--ppf", type=int, default=0)
    ap.add_argument("--early", type=int, default=16)
    ap.add_argument("--rest", type=int, default=0)
    ap.add_argument("--local", type=int, default=1)
    ap.add_argument("--locflag", default="")
    ap.add_argument("--ldflag", default="")
    ap.add_argument("--plflag", default="sc1")
    ap.add_argument("--pubflag", default="sc1")
    ap.add_argument("--ipf", type=int, default=2)
    ap.add_argument("--ofpre", type=int, default=9)
    ap.add_argument("--vsp2", type=int, default=2)
    ap.add_argument("--rd0", type=int, default=24)
    ap.add_argument("--midgap", type=int, default=2)
    ap.add_argument("--midpre", type=int, default=1)
    ap.add_argument("--rpg", type=int, default=2)
    ap.add_argument("--sent", type=int, default=3)
    ap.add_argument("--ofat", type=int, default=56)
    ap.add_argument("--ofgap", type=int, default=1)
    ap.add_argument("--init", type=int, default=0)
    ap.add_argument("--nwoq", type=int, default=11)
    ap.add_argument("--woq_after", type=int, default=0)
    ap.add_argument("--plfirst", type=int, default=0)
    ap.add_argument("--pollat", type=int, default=52)
    ap.add_argument("--bgap", type=int, default=41)
    ap.add_argument("--d2", type=int, default=4)
    ap.add_argument("--d2from", type=int, default=2)
    ap.add_argument("--wq0", type=int, default=200)
    ap.add_argument("--wqs", type=int, default=6)
    ap.add_argument("--wqepi", type=int, default=2)
    ap.add_argument("--wo0", type=int, default=30)
    ap.add_argument("--pfq", type=int, default=4)
    ap.add_argument("--pfo", type=int, default=8)
    ap.add_argument("--opf", type=int, default=1)
    ap.add_argument("--vsp", type=int, default=2)
    ap.add_argument("--vspq", type=int, default=2)
    ap.add_argument("--qsync", type=int, default=4)
    ap.add_argument("--plstart", type=int, default=80)
    ap.add_argument("--plsolo", type=int, default=1)
    ap.add_argument("--npre", type=int, default=8)
    ap.add_argument("--s0", type=int, default=2)
    ap.add_argument("--flagat", type=int, default=40)
    ap.add_argument("--polla", type=int, default=0)
    ap.add_argument("--chk", type=int, default=1)
    ap.add_argument("--spin", type=int, default=20000)
    ap.add_argument("--xflag", default="")
    ap.add_argument("--xflag2", default="")
    ap.add_argument("--wflag", default="")
    ap.add_argument("--qflag", default="")
    ap.add_argument("--oflag", default="")
    ap.add_argument("--outflag", default="sc0 sc1")
    return ap
if __name__ == "__main__":
    opt = parser().parse_args()
    open(opt.o, "w").write(gen(opt))
```

```python
import sys, argparse
NAME = "concat_heads__linear_attn_block__linear_attn_block__prompt_kernel"

WS_O    = 0
WS_PK   = 4 << 20
WS_PZ   = 5 << 20
WS_FL   = (5 << 20) + (64 << 10)
WS_EP   = WS_FL + (16 << 10)
WS_TS   = 6 << 20
WS_CK   = 8 << 20
WS_XT   = (7 << 20) + (512 << 10)
WS_SIZE = 10 << 20
LOG2E = 0x3fb8aa3b
EPS   = 0x358637bd
ONE_EPS = 0x3f800008

class G:
    def __init__(self, opt):
        self.L = []; self.opt = opt; self.vm = []; self.lg = []; self.nstamp = 0; self.names = []
        self.hi = {}
    def __call__(self, s): self.L.append(s)
    def vmem(self, s, tag=None): self.L.append(s); self.vm.append(tag)
    def lds(self, s, tag=None): self.L.append(s); self.lg.append(tag)
    def _n_after(self, lst, tags):
        idx = max(i for i, t in enumerate(lst) if t in tags)
        return len(lst) - 1 - idx
    def wait_vm(self, *tags):
        n = self._n_after(self.vm, tags); self.L.append(f"s_waitcnt vmcnt({min(n,63)})")
    def wait_lg(self, *tags):
        n = self._n_after(self.lg, tags); self.L.append(f"s_waitcnt lgkmcnt({min(n,15)})")
    def stamp(self, name):
        if not self.opt.ts: return
        if self.opt.tsk and not (name.startswith("B") or name in ("start", "sync0", "kv_end", "published", "q_end", "out_done")): return
        if not self.opt.tsk and name.startswith("B"): return
        if self.opt.tsp and name in ("kernarg", "sync0", "kv_end", "published", "q_end", "phiq_end"): return
        if not self.opt.tsp and name.startswith("P"): return
        if not self.opt.tse and name.startswith("E"): return
        if self.opt.tse and name in ("kernarg", "sync0", "of_issue", "preread", "mfma2", "Ephik"): return
        i = self.nstamp; self.nstamp += 1; self.names.append(name)
        assert i < 13
        self.L.append(f"{'s_memtime' if self.opt.cyc else 's_memrealtime'} s[{64+2*i}:{65+2*i}]")
        self.L.append("s_waitcnt lgkmcnt(0)")
    def ldsaddr(self, vreg, byte, span=4096):
        cur = self.hi.get(vreg, 0)
        if not (cur <= byte and byte + span < cur + 0x10000):
            new = byte & ~0x7fff
            self.L.append(f"v_add_u32 v{vreg}, {(new - cur) & 0xffffffff:#x}, v{vreg}")
            self.hi[vreg] = cur = new
        return byte - cur
    def stream(self, mfmas, fixed, fillers, cap=2, vsp=1):
        lastv = -100
        for k, m in enumerate(mfmas):
            n0 = len(self.L)
            for fn in fixed.get(k, []): fn()
            while fillers and fillers[0][0] <= k and len(self.L) - n0 < cap:
                _, fn, last = fillers[0]
                isv = getattr(fn, "isv", False)
                if isv and k - lastv < (vsp(k) if callable(vsp) else vsp): break
                fillers.pop(0)
                fn()
                if isv: lastv = k
                if last: break
            self.L.append(m)
    def need(self, fillers, tag, count):
        while self.vm.count(tag) < count:
            _, fn, last = fillers.pop(0)
            fn()
            if last: self.L.append("s_nop 0")
            self.late = getattr(self, "late", 0) + 1
        self.wait_vm(tag)
    def flush(self, fillers):
        for _, fn, last in fillers:
            fn()
            if last: self.L.append("s_nop 0")
        del fillers[:]
    def text(self): return "\n".join(self.L) + "\n"

def vr(b, n=1): return f"v{b}" if n == 1 else f"v[{b}:{b+n-1}]"
def ar(b, n=1): return f"a{b}" if n == 1 else f"a[{b}:{b+n-1}]"
def sr(b, n=1): return f"s{b}" if n == 1 else f"s[{b}:{b+n-1}]"

S_SX, S_SW = 4, 12
S_W2K, S_W1K = 22, 23
S_X, S_W, S_WO, S_OUT, S_WS = 24, 28, 32, 36, 40
S_BR, S_RB, S_CG, S_WV = 44, 45, 46, 47
S_T0, S_T1, S_T2, S_T3 = 48, 49, 50, 51
S_16K = 52; S_TAG = 53; S_RB64, S_CB = 54, 55
S_LOG2E, S_C1, S_EPS = 56, 58, 60
S_CNT = 62; S_SOFF = 63
S_EX = 96; S_CNTA = 98; S_ROT = 99; S_W4K = 100; S_SO2 = 101
S_4K, S_8K, S_12K = 3, 20, 21
S_32K = 93
V_LANE, V_G, V_I = 1, 2, 3
V_BKV = 4
V_BQ = 12
V_BO = 16
V_XR = 24
V_WQ = 26
V_WO = 28
VEP = 30
VO = 31
TM = 32
A0, A1 = 44, 45
VPK, VPZ, VTAG, VMSK = 46, 47, 48, 49
ACC, VF, VFA = 50, 51, 56
ZL = 52
VPFQ, VPFO, VPFD, VPFO2 = 42, 43, 41, 57
VOPA, VRA, VRD, VXA, VXV = 240, 241, 242, 243, 244
V_LRW, V_LZW, V_LRR, V_LZR, V_PZW, V_PKW, V_SHW, V_L16, V_DUM, V_ZERO = 245, 246, 247, 248, 249, 250, 251, 252, 253, 254
S_XW, S_LOC = 94, 95
S_MI0 = 90
A_ONES, A_EPS = 128, 132
V_PPF = 255; V_OPRE = 159
V_XD = 56
V_WD = 60
V_ACCKV = 64; V_ACCQ = 128; V_RING = 160; NRING = 16; V_E = 224
T = 32
def acckv(rt, ct): return V_ACCKV + (rt * 8 + ct) * 4
def accq(rt, h): return V_ACCQ + (rt * 4 + h) * 4
def xa(j, rt): return (j * 2 + rt) * 4

SLOT = 32768
def slot_of(t): return (t % 5) * SLOT
def lds_q(tq): return 3 * SLOT + tq * 8192
L_RED = 0; L_REDZ = 16 << 10; L_SHR = 20 << 10
def lds_wo(i): return SLOT + i * 4096
LDS_BYTES = 160 << 10

def prologue(g):
    o = g.opt
    g("s_cmp_ge_u32 s2, 256")
    g("s_cbranch_scc1 L_end")
    g.stamp("start")
    g("s_load_dwordx16 s[4:19], s[0:1], 0")
    g("s_load_dwordx2 s[20:21], s[0:1], 64")
    if o.ipf:
        g("s_getpc_b64 s[22:23]")
        g("L_pc:")
        g(f"s_lshr_b32 s{S_T0}, s2, 3")
        g(f"s_lshl_b32 s{S_T0}, s{S_T0}, 2")
        g(f"v_lshrrev_b32 v{T+1}, 6, v0")
        g(f"v_add_u32 v{T+1}, s{S_T0}, v{T+1}")
        g(f"v_mul_u32_u24 v{T+1}, {o.ipf*128}, v{T+1}")
        g(f"v_and_b32 v{T+2}, 63, v0")
        g(f"v_lshl_add_u32 v{T+1}, v{T+2}, 7, v{T+1}")
        g(f"v_min_u32 v{T+1}, L_code_end-L_pc-4, v{T+1}")
        g(f"s_mov_b64 exec, {(1 << o.ipf) - 1}")
        g.vmem(f"global_load_dword v{V_DUM}, v{T+1}, s[22:23]", "ipf")
        g("s_mov_b64 exec, -1")
    g(f"v_lshrrev_b32 v{T}, 6, v0")
    g(f"v_and_b32 v{V_LANE}, 63, v0")
    g(f"v_readfirstlane_b32 s{S_WV}, v{T}")
    g(f"s_and_b32 s{S_BR}, s2, 1")
    g(f"s_lshr_b32 s{S_T0}, s2, 3")
    g(f"s_and_b32 s{S_T1}, s{S_T0}, 7")
    g(f"s_lshr_b32 s{S_CB}, s{S_T0}, 3")
    if o.map == "A":
        g(f"s_bfe_u32 s{S_T2}, s2, 0x10001")
        g(f"s_bfe_u32 s{S_T3}, s2, 0x10002")
        g(f"s_lshl_b32 s{S_RB}, s{S_T2}, 3")
        g(f"s_add_u32 s{S_RB}, s{S_RB}, s{S_T1}")
        g(f"s_lshl_b32 s{S_CG}, s{S_T3}, 2")
        g(f"s_add_u32 s{S_CG}, s{S_CG}, s{S_CB}")
        g(f"s_lshl_b32 s{S_RB64}, s{S_T2}, 4")
        g(f"s_lshl_b32 s{S_T3}, s{S_T3}, 3")
        g(f"s_add_u32 s{S_RB64}, s{S_RB64}, s{S_T3}")
        g(f"s_add_u32 s{S_RB64}, s{S_RB64}, s{S_T1}")
    else:
        g(f"s_bfe_u32 s{S_T2}, s2, 0x20001")
        g(f"s_lshl_b32 s{S_RB}, s{S_T2}, 2")
        g(f"s_add_u32 s{S_RB}, s{S_RB}, s{S_CB}")
        g(f"s_add_u32 s{S_CG}, s{S_T1}, {o.cgshift}")
        g(f"s_and_b32 s{S_CG}, s{S_CG}, 7")
        g(f"s_lshl_b32 s{S_RB64}, s{S_T2}, 3")
        g(f"s_add_u32 s{S_RB64}, s{S_RB64}, s{S_T1}")
    g(f"s_mul_i32 s{S_T1}, s{S_T1}, {o.rota}")
    g(f"s_mul_i32 s{S_T2}, s{S_CB}, {o.rotb}")
    g(f"s_add_u32 s{S_ROT}, s{S_T1}, s{S_T2}")
    if o.rotc:
        g(f"s_bfe_u32 s{S_T2}, s2, 0x20001")
        g(f"s_mul_i32 s{S_T2}, s{S_T2}, {o.rotc}")
        g(f"s_add_u32 s{S_ROT}, s{S_ROT}, s{S_T2}")
    g(f"s_and_b32 s{S_ROT}, s{S_ROT}, 7")
    g(f"v_lshrrev_b32 v{V_G}, 4, v{V_LANE}")
    g(f"v_and_b32 v{V_I}, 15, v0")
    g(f"s_lshl_b32 s{S_W4K}, s{S_WV}, 12")
    g(f"v_lshrrev_b32 v{T}, 3, v{V_LANE}")
    g(f"v_lshlrev_b32 v{T}, 10, v{T}")
    g(f"v_and_b32 v{T+1}, 7, v{V_LANE}")
    g(f"v_xor_b32 v{T+1}, v{T+1}, v{V_G}")
    g(f"s_lshl_b32 s{S_T0}, s{S_RB}, 17")
    g(f"s_lshl_b32 s{S_T1}, s{S_WV}, 15")
    g(f"s_add_u32 s{S_T0}, s{S_T0}, s{S_T1}")
    g(f"v_lshl_add_u32 v{V_XD}, v{T+1}, 4, v{T}")
    g(f"v_add_u32 v{V_XD}, s{S_T0}, v{V_XD}")
    g(f"v_xor_b32 v{V_XD+1}, 64, v{V_XD}")
    g(f"v_add_u32 v{V_XD+1}, {7168}, v{V_XD+1}")
    g(f"v_add_u32 v{V_XD+2}, {2*7168}, v{V_XD}")
    g(f"v_add_u32 v{V_XD+3}, {2*7168}, v{V_XD+1}")
    g(f"v_lshrrev_b32 v{T+1}, 1, v{V_I}")
    g(f"v_xor_b32 v{T+1}, v{V_G}, v{T+1}")
    g(f"v_lshrrev_b32 v{T+2}, 2, v{T+1}")
    g(f"v_lshlrev_b32 v{T+2}, 10, v{T+2}")
    g(f"v_and_b32 v{T+3}, 3, v{T+1}")
    g(f"v_lshl_add_u32 v{T+2}, v{T+3}, 5, v{T+2}")
    g(f"v_and_b32 v{T+3}, 1, v{V_I}")
    g(f"v_lshl_add_u32 v{T+2}, v{T+3}, 4, v{T+2}")
    g(f"v_xor_b32 v{T+5}, 1024, v{T+2}")
    g(f"s_lshl_b32 s{S_T2}, s{S_WV}, 4")
    g(f"v_add_u32 v{T+4}, s{S_T2}, v{V_G}")
    g(f"v_mul_u32_u24 v{T+4}, 3072, v{T+4}")
    g(f"s_lshl_b32 s{S_T2}, s{S_CG}, 7")
    g(f"s_add_u32 s{S_T3}, s{S_T2}, 1024")
    g(f"v_add3_u32 v{V_WD}, v{T+4}, v{T+2}, s{S_T3}")
    g(f"v_add_u32 v{V_WD+1}, {12288-1024}, v{V_WD}")
    g(f"s_add_u32 s{S_T3}, s{S_T3}, {2*(12288-1024)}")
    g(f"v_add3_u32 v{V_WD+2}, v{T+4}, v{T+5}, s{S_T3}")
    g(f"v_add_u32 v{V_WD+3}, {12288-1024}, v{V_WD+2}")
    g(f"s_lshl_b32 s{S_T0}, s{S_ROT}, 7")
    g(f"s_mul_i32 s{S_T1}, s{S_ROT}, 196608")
    g(f"s_mov_b32 m0, s{S_W4K}")
    g("s_waitcnt lgkmcnt(0)")
    g.stamp("kernarg")
    g(f"s_cmp_eq_u32 s{S_BR}, 0")
    g(f"s_cselect_b32 s{S_X}, s4, s10")
    g(f"s_cselect_b32 s{S_X+1}, s5, s11")
    g(f"s_mov_b32 s{S_X+2}, {2048*512*2}")
    g(f"s_mov_b32 s{S_X+3}, 0x20000")
    g(f"s_cselect_b32 s{S_W}, s6, s12")
    g(f"s_cselect_b32 s{S_W+1}, s7, s13")
    g(f"s_mov_b32 s{S_W+2}, {512*1536*2}")
    g(f"s_mov_b32 s{S_W+3}, 0x20000")
    for m in range(4):
        g.vmem(f"buffer_load_dwordx4 v{V_XD+m}, {sr(S_X,4)}, s{S_T0} offen offset:{m*1024} {o.xflag} lds", ("st", 0))
    g(f"s_add_u32 m0, s{S_W4K}, 16384")
    g(f"s_cselect_b32 s{S_WO}, s8, s14") if False else None
    g("s_nop 0")
    for i in range(4):
        g.vmem(f"buffer_load_dwordx4 v{V_WD+i}, {sr(S_W,4)}, s{S_T1} offen offset:{i*1024} {o.wflag} lds", ("st", 0))
    g(f"s_cmp_eq_u32 s{S_BR}, 0")
    g(f"s_cselect_b32 s{S_WO}, s8, s14")
    g(f"s_cselect_b32 s{S_WO+1}, s9, s15")
    g(f"s_mov_b32 s{S_WO+2}, {512*512*2}")
    g(f"s_mov_b32 s{S_WO+3}, 0x20000")
    g(f"s_mov_b32 s{S_OUT}, s16")
    g(f"s_mov_b32 s{S_OUT+1}, s17")
    g(f"s_mov_b32 s{S_OUT+2}, {2048*1024*2}")
    g(f"s_mov_b32 s{S_OUT+3}, 0x20000")
    g(f"s_mov_b32 s{S_WS}, s20")
    g(f"s_mov_b32 s{S_WS+1}, s21")
    g(f"s_mov_b32 s{S_WS+2}, {WS_SIZE}")
    g(f"s_mov_b32 s{S_WS+3}, 0x20000")
    for t in range(8):
        g(f"s_add_u32 s{S_T0}, s{S_ROT}, {t}")
        g(f"s_and_b32 s{S_T0}, s{S_T0}, 7")
        g(f"s_lshl_b32 s{S_SX+t}, s{S_T0}, 7")
        g(f"s_mul_i32 s{S_SW+t}, s{S_T0}, 196608")

def prologue2(g):
    g(f"s_mov_b32 s{S_16K}, 16384")
    g(f"s_mov_b32 s{S_4K}, 4096")
    g(f"s_mov_b32 s{S_32K}, 32768")
    g(f"s_mov_b32 s{S_8K}, 8192")
    g(f"s_mov_b32 s{S_12K}, 12288")
    g(f"s_lshl_b32 s{S_W2K}, s{S_WV}, 11")
    g(f"s_lshl_b32 s{S_W1K}, s{S_WV}, 10")
    for r, val in ((S_LOG2E, LOG2E), (S_C1, ONE_EPS), (S_EPS, EPS)):
        g(f"s_mov_b32 s{r}, {val:#x}")
        g(f"s_mov_b32 s{r+1}, {val:#x}")
    g(f"v_lshrrev_b32 v{T}, 1, v{V_I}")
    g(f"v_xor_b32 v{T}, v{T}, v{V_G}")
    g(f"v_lshlrev_b32 v{T+1}, 7, v{V_I}")
    g(f"v_lshl_add_u32 v{T}, v{T}, 4, v{T+1}")
    g(f"v_add_u32 v{V_XR}, s{S_W4K}, v{T}")
    g(f"v_xor_b32 v{V_XR+1}, 64, v{V_XR}")
    g(f"v_lshrrev_b32 v{T}, 2, v{V_I}")
    g(f"v_and_b32 v{T+1}, 3, v{V_I}")
    g(f"v_and_b32 v{T+2}, 1, v{V_G}")
    g(f"v_lshl_add_u32 v{T+2}, v{T+2}, 2, v{T}")
    g(f"v_lshl_add_u32 v{T+3}, v{V_G}, 3, v{T}")
    g(f"v_lshlrev_b32 v{T+4}, 8, v{T+3}")
    g(f"v_lshl_add_u32 v{T+4}, v{T+1}, 3, v{T+4}")
    for ct in range(8):
        g(f"v_xor_b32 v{T+5}, {ct}, v{T+2}")
        g(f"v_lshl_add_u32 v{V_BKV+ct}, v{T+5}, 5, v{T+4}")
    g(f"v_lshlrev_b32 v{T+4}, 7, v{T+3}")
    g(f"v_lshl_add_u32 v{T+4}, v{T+1}, 3, v{T+4}")
    g(f"v_lshrrev_b32 v{T+5}, 1, v{T}")
    g(f"v_and_b32 v{T+6}, 1, v{V_G}")
    g(f"v_lshl_add_u32 v{T+5}, v{T+6}, 1, v{T+5}")
    g(f"v_add_u32 v{T+4}, {3*SLOT}, v{T+4}")
    for ct in range(4):
        g(f"v_xor_b32 v{T+6}, {ct}, v{T+5}")
        g(f"v_lshl_add_u32 v{V_BQ+ct}, v{T+6}, 5, v{T+4}")
        g.hi[V_BQ + ct] = 3 * SLOT
    g(f"v_lshl_add_u32 v{T+3}, v{V_G}, 2, v{T}")
    g(f"v_lshlrev_b32 v{T+4}, 7, v{T+3}")
    g(f"v_lshl_add_u32 v{T+4}, v{T+1}, 3, v{T+4}")
    g(f"v_add_u32 v{T+4}, {SLOT}, v{T+4}")
    for ct in range(4):
        g(f"v_xor_b32 v{T+6}, {ct}, v{T+5}")
        g(f"v_lshl_add_u32 v{V_BO+ct}, v{T+6}, 5, v{T+4}")
        g.hi[V_BO + ct] = SLOT
    g(f"v_lshrrev_b32 v{T}, 3, v{V_I}")
    g(f"v_lshl_add_u32 v{T}, v{V_G}, 1, v{T}")
    g(f"s_lshl_b32 s{S_T3}, s{S_WV}, 4")
    g(f"v_add_u32 v{T}, s{S_T3}, v{T}")
    g(f"v_mul_u32_u24 v{T}, 3072, v{T}")
    g(f"v_bfe_u32 v{T+1}, v{V_I}, 1, 2")
    g(f"v_and_b32 v{T+2}, 1, v{V_G}")
    g(f"v_xor_b32 v{T+1}, v{T+1}, v{T+2}")
    g(f"v_lshlrev_b32 v{T+1}, 5, v{T+1}")
    g(f"v_and_b32 v{T+3}, 1, v{V_I}")
    g(f"v_lshl_add_u32 v{T+1}, v{T+3}, 4, v{T+1}")
    g(f"v_xor_b32 v{T+2}, 64, v{T+1}")
    g(f"s_lshl_b32 s{S_T2}, s{S_CG}, 7")
    g(f"v_add3_u32 v{V_WQ}, v{T}, v{T+1}, s{S_T2}")
    g(f"s_add_u32 s{S_T2}, s{S_T2}, {8*3072-1024}")
    g(f"v_add3_u32 v{V_WQ+1}, v{T}, v{T+2}, s{S_T2}")
    g(f"v_lshrrev_b32 v{T}, 3, v{V_I}")
    g(f"v_lshl_add_u32 v{T}, v{V_G}, 1, v{T}")
    g(f"v_add_u32 v{T}, s{S_T3}, v{T}")
    g(f"v_lshlrev_b32 v{T}, 10, v{T}")
    g(f"v_bfe_u32 v{T+1}, v{V_I}, 1, 2")
    g(f"v_xor_b32 v{T+1}, v{T+1}, v{V_G}")
    g(f"v_lshl_add_u32 v{T}, v{T+1}, 5, v{T}")
    g(f"v_lshl_add_u32 v{T}, v{T+3}, 4, v{T}")
    g(f"s_lshl_b32 s{S_T0}, s{S_CG}, 7")
    g(f"v_add_u32 v{V_WO}, s{S_T0}, v{T}")
    g(f"v_add_u32 v{V_WO+1}, {8192-1024}, v{V_WO}")
    g(f"s_lshr_b32 s{S_T0}, s2, 3")
    g(f"s_lshl_b32 s{S_T0}, s{S_T0}, 2")
    g(f"s_add_u32 s{S_T0}, s{S_T0}, s{S_WV}")
    g(f"s_lshl_b32 s{S_T0}, s{S_T0}, 2")
    g(f"v_add_u32 v{T}, s{S_T0}, v{V_G}")
    g(f"v_lshlrev_b32 v{T+1}, 6, v{V_I}")
    g(f"v_lshl_add_u32 v{VPFO}, v{T}, 10, v{T+1}")
    g(f"v_mul_u32_u24 v{T}, 3072, v{T}")
    g(f"v_add_u32 v{VPFQ}, v{T}, v{T+1}")
    g(f"s_lshl_b32 s{S_T0}, s{S_BR}, 21")
    g(f"s_lshl_b32 s{S_T1}, s{S_RB}, 17")
    g(f"s_add_u32 s{S_T0}, s{S_T0}, s{S_T1}")
    g(f"s_lshl_b32 s{S_T1}, s{S_WV}, 15")
    g(f"s_add_u32 s{S_T0}, s{S_T0}, s{S_T1}")
    g(f"s_lshl_b32 s{S_T1}, s{S_CG}, 11")
    g(f"s_add_u32 s{S_T0}, s{S_T0}, s{S_T1}")
    g(f"v_lshl_add_u32 v{VOPA}, v{V_LANE}, 4, s{S_T0}")
    g(f"s_lshl_b32 s{S_T0}, s{S_BR}, 4")
    g(f"s_add_u32 s{S_T0}, s{S_T0}, s{S_RB}")
    g(f"s_lshl_b32 s{S_T1}, s{S_T0}, 2")
    g(f"s_add_u32 s{S_T1}, s{S_T1}, s{S_WV}")
    g(f"s_lshl_b32 s{S_T1}, s{S_T1}, 14")
    g(f"s_add_u32 s{S_T1}, s{S_T1}, {WS_CK}")
    g(f"v_lshl_add_u32 v{A1}, v{V_LANE}, 2, s{S_T1}")
    g(f"s_lshl_b32 s{S_T2}, s{S_CG}, 11")
    g(f"v_add_u32 v{VRA}, s{S_T2}, v{A1}")
    g(f"s_lshl_b32 s{S_T0}, s{S_T0}, 10")
    g(f"s_add_u32 s{S_T0}, s{S_T0}, {WS_XT}")
    g(f"v_and_b32 v{VXA}, 7, v{V_LANE}")
    g(f"v_lshl_add_u32 v{VXA}, v{VXA}, 7, s{S_T0}")
    g(f"s_lshl_b32 s{S_T1}, s{S_CG}, 7")
    g(f"s_add_u32 s{S_T0}, s{S_T0}, s{S_T1}")
    g(f"s_lshl_b32 s{S_T1}, s{S_WV}, 2")
    g(f"s_add_u32 s{S_XW}, s{S_T0}, s{S_T1}")
    g(f"s_getreg_b32 s{S_LOC}, hwreg(HW_REG_XCC_ID)")
    g(f"s_and_b32 s{S_LOC}, s{S_LOC}, 15")
    g(f"s_lshl_b32 s{S_T0}, s{S_BR}, 7")
    g(f"s_add_u32 s{S_T0}, s{S_T0}, {WS_EP}")
    g(f"v_mov_b32 v{VF}, 0")
    g.vmem(f"buffer_load_dword v{VEP}, v{VF}, {sr(S_WS,4)}, s{S_T0} offen sc1", "ep")

def prologue3(g):
    g(f"v_lshlrev_b32 v{V_L16}, 4, v{V_LANE}")
    g(f"v_mov_b32 v{V_ZERO}, 0")
    g(f"v_mov_b32 v{VMSK}, 0xff")
    g(f"v_cmp_eq_u32 {sr(S_MI0,2)}, 0, v{V_I}")
    g(f"v_add_u32 v{V_LRW}, s{S_W4K}, v{V_L16}")
    g(f"s_lshl_b32 s{S_T0}, s{S_WV}, 8")
    g(f"s_add_u32 s{S_T0}, s{S_T0}, {L_REDZ}")
    g(f"v_lshl_add_u32 v{V_LZW}, v{V_G}, 4, s{S_T0}")
    g(f"v_add_u32 v{V_LRR}, s{S_W1K}, v{V_L16}")
    g(f"s_lshl_b32 s{S_T0}, s{S_WV}, 6")
    g(f"s_add_u32 s{S_T0}, s{S_T0}, {L_REDZ}")
    g(f"v_lshl_add_u32 v{V_LZR}, v{V_G}, 4, s{S_T0}")
    g(f"s_add_u32 s{S_T0}, s{S_W1K}, {L_SHR}")
    g(f"v_add_u32 v{V_SHW}, s{S_T0}, v{V_L16}")
    g(f"s_lshl_b32 s{S_T0}, s{S_BR}, 3")
    g(f"s_add_u32 s{S_T0}, s{S_T0}, s{S_CG}")
    g(f"s_lshl_b32 s{S_T0}, s{S_T0}, 2")
    g(f"s_add_u32 s{S_T0}, s{S_T0}, s{S_WV}")
    g(f"s_lshl_b32 s{S_T1}, s{S_T0}, 14")
    g(f"s_add_u32 s{S_T1}, s{S_T1}, {WS_PK}")
    g(f"s_lshl_b32 s{S_T2}, s{S_T0}, 10")
    g(f"s_add_u32 s{S_T2}, s{S_T2}, {WS_PZ}")
    g(f"v_add_u32 v{VPK}, s{S_T1}, v{V_L16}")
    g(f"s_lshl_b32 s{S_T1}, s{S_RB}, 10")
    g(f"v_add_u32 v{V_PKW}, s{S_T1}, v{VPK}")
    g(f"v_lshlrev_b32 v{VPZ}, 6, v{V_I}")
    g(f"v_lshl_add_u32 v{VPZ}, v{V_G}, 4, v{VPZ}")
    g(f"v_add_u32 v{VPZ}, s{S_T2}, v{VPZ}")
    g(f"s_lshl_b32 s{S_T3}, s{S_RB}, 6")
    g(f"s_add_u32 s{S_T2}, s{S_T2}, s{S_T3}")
    g(f"v_lshl_add_u32 v{V_PZW}, v{V_G}, 4, s{S_T2}")
    g(f"v_readfirstlane_b32 s{S_T0}, v{VOPA}")
    g(f"v_readfirstlane_b32 s{S_T1}, v{VRA}")
    g(f"v_and_b32 v{T}, 1, v{V_G}")
    g(f"v_lshlrev_b32 v{V_OPRE}, 14, v{T}")
    g(f"v_lshl_add_u32 v{V_OPRE}, v{V_I}, 7, v{V_OPRE}")
    g(f"v_add_u32 v{V_OPRE}, s{S_T0}, v{V_OPRE}")
    g(f"v_and_b32 v{T+1}, 1, v{V_LANE}")
    g(f"v_lshl_add_u32 v{T}, v{T+1}, 7, s{S_T1}")
    g(f"v_cmp_gt_u32 vcc, 32, v{V_LANE}")
    g("s_nop 1")
    g(f"v_cndmask_b32 v{V_OPRE}, v{T}, v{V_OPRE}, vcc")
    g(f"v_mov_b32 v{T}, 0x3f803f80")
    for k in range(4):
        g(f"v_accvgpr_write_b32 a{A_ONES+k}, v{T}")
    g(f"s_lshl_b32 s{S_T1}, s{S_CG}, 11")
    g(f"v_subrev_u32 v{A0}, s{S_T1}, v{VOPA}")
    g(f"v_add_u32 v{V_PPF}, 16384, v{A0}")
    g(f"s_lshl_b32 s{S_T0}, s{S_RB}, 18")
    g(f"s_lshl_b32 s{S_T1}, s{S_WV}, 16")
    g(f"s_add_u32 s{S_T0}, s{S_T0}, s{S_T1}")
    g(f"s_lshl_b32 s{S_T1}, s{S_BR}, 10")
    g(f"s_add_u32 s{S_T0}, s{S_T0}, s{S_T1}")
    g(f"s_lshl_b32 s{S_T1}, s{S_CG}, 7")
    g(f"s_add_u32 s{S_T0}, s{S_T0}, s{S_T1}")
    g(f"v_lshlrev_b32 v{VO}, 11, v{V_I}")
    g(f"v_and_b32 v{T}, 1, v{V_G}")
    g(f"v_lshl_add_u32 v{VO}, v{T}, 5, v{VO}")
    g(f"v_lshrrev_b32 v{T}, 1, v{V_G}")
    g(f"v_lshl_add_u32 v{VO}, v{T}, 4, v{VO}")
    g(f"v_add_u32 v{VO}, s{S_T0}, v{VO}")
    g(f"s_mov_b32 s{S_CNT}, 0")
    g(f"s_mov_b32 s{S_CNTA}, 0")


def V(fn):
    fn.isv = True
    return fn

def stage_fill(g, t, e):
    o = g.opt; sl = slot_of(t); F = []
    F.append((e, lambda: g(f"s_add_u32 m0, s{S_W4K}, {sl}"), True))
    for m in range(4):
        F.append((e, V(lambda m=m: g.vmem(f"buffer_load_dwordx4 v{V_XD+m}, {sr(S_X,4)}, s{S_SX+t} offen offset:{m*1024} {o.xflag if t < 4 else o.xflag2} lds", ("st", t))), False))
    F.append((e, lambda: g(f"s_add_u32 m0, s{S_W4K}, {sl+16384}"), True))
    for i in range(4):
        F.append((e, V(lambda i=i: g.vmem(f"buffer_load_dwordx4 v{V_WD+i}, {sr(S_W,4)}, s{S_SW+t} offen offset:{i*1024} {o.wflag} lds", ("st", t))), False))
    return F

def sent_fill(g, e):
    F = []
    for rt in range(2):
        for uu in range(2):
            so = "0" if rt == 0 else f"s{S_16K}"
            F.append((e, V(lambda so=so, uu=uu: g.vmem(f"buffer_store_dwordx4 {vr(VSEN,4)}, v{VOPA}, {sr(S_WS,4)}, {so} offen offset:{uu*1024} sc1", "sent")), False))
    return F

def wq_fill(g, tq, e):
    F = [(e, lambda: g(f"s_add_u32 m0, s{S_W2K}, {lds_q(tq)}"), True)]
    for i in range(2):
        F.append((e, V(lambda i=i: g.vmem(f"buffer_load_dwordx4 v{V_WQ+i}, {sr(S_W,4)}, s{S_SW+tq} offen offset:{i*1024} {g.opt.qflag} lds", ("wq", tq))), False))
    return F

def wo_fill(g, pr, e):
    F = [(e, lambda: g(f"s_lshl_b32 s{S_SOFF}, s{S_SX+pr}, 5"), False),
         (e, lambda: g(f"s_add_u32 m0, s{S_W2K}, {lds_wo(2*pr)}"), True)]
    for i in range(2):
        F.append((e, V(lambda i=i: g.vmem(f"buffer_load_dwordx4 v{V_WO+i}, {sr(S_WO,4)}, s{S_SOFF} offen offset:{i*1024} {g.opt.oflag} lds", ("wo", pr))), False))
    return F

def rot_fill(g, e):
    F = []
    for pr in range(8):
        F += [(e, lambda pr=pr: g(f"s_add_u32 s{S_T0}, s{S_CG}, {pr}"), False),
              (e, lambda: g(f"s_and_b32 s{S_T0}, s{S_T0}, 7"), False),
              (e, lambda pr=pr: g(f"s_lshl_b32 s{S_SX+pr}, s{S_T0}, 11"), False)]
    return F

def phi2(g, src, tmp, dst):
    u, a = tmp, tmp + 2
    g(f"v_pk_mul_f32 {vr(u,2)}, {vr(src,2)}, {sr(S_LOG2E,2)}")
    g(f"v_pk_add_f32 {vr(a,2)}, {vr(src,2)}, {sr(S_C1,2)}")
    g(f"v_exp_f32 v{u}, v{u} clamp")
    g(f"v_exp_f32 v{u+1}, v{u+1} clamp")
    return [f"v_pk_add_f32 {vr(u,2)}, {vr(u,2)}, {sr(S_EPS,2)}",
            f"v_max_f32 v{a}, v{a}, v{u}",
            f"v_max_f32 v{a+1}, v{a+1}, v{u+1}",
            f"v_cvt_pk_bf16_f32 v{dst}, v{a}, v{a+1}"]

def phi_block(g, pairs, tmpbase, ntmp=3, hook=None):
    pend = None
    for n, (src, dst) in enumerate(pairs):
        tail = phi2(g, src, tmpbase + (n % ntmp) * 4, dst)
        if pend:
            for s in pend: g(s)
        pend = tail
        if hook: hook(n)
    g("s_nop 0")
    for s in pend: g(s)

SOK = ["0", f"s{S_4K}", f"s{S_8K}", f"s{S_12K}"]
def partial_fill(g, e, fl=None):
    fl = g.opt.plflag if fl is None else fl
    F = [(e, V(lambda: g.vmem(f"buffer_load_dwordx4 {vr(ZL,4)}, v{VPZ}, {sr(S_WS,4)}, 0 offen {fl}", "pl")), False)]
    F.append((e, V(lambda: g.vmem(f"buffer_load_dword v{VRD}, v{VXA}, {sr(S_WS,4)}, 0 offen {fl}", "pl")), False))
    for p in g.opt.plist:
        F.append((e, V(lambda p=p: g.vmem(f"buffer_load_dwordx4 {vr(V_ACCKV+p*4,4)}, v{VPK}, {sr(S_WS,4)}, {SOK[p//4]} offen offset:{(p%4)*1024} {fl}", "pl")), g.opt.plsolo))
    return F

def gen(opt):
    g = G(opt)
    g(f"; @launch grid=(256,1,1) block=(256,1,1) lds={LDS_BYTES}")
    g('.amdgcn_target "amdgcn-amd-amdhsa--gfx950"')
    g(".text")
    g(f".globl {NAME}\n.p2align 8\n.type {NAME},@function\n{NAME}:")
    prologue(g)
    D = opt.depth
    if opt.pro == 0:
        for t in range(1, D):
            g.flush(stage_fill(g, t, 0))
            if t == 1: prologue2(g)
        prologue3(g)
    elif opt.pro == 1:
        g.flush(stage_fill(g, 1, 0))
        prologue2(g); prologue3(g)
        for t in range(2, D): g.flush(stage_fill(g, t, 0))
    else:
        g.flush(stage_fill(g, 1, 0))
        f2 = stage_fill(g, 2, 0)
        prologue2(g)
        g.flush(f2[:5])
        prologue3(g)
        g.flush(f2[5:])
        for t in range(3, D): g.flush(stage_fill(g, t, 0))
    P = opt.pf
    NF = 128
    def xr_fn(t, jj, rt):
        def f():
            off = g.ldsaddr(V_XR + jj, slot_of(t) + rt * 2048, 0)
            g.lds(f"ds_read_b128 {ar(xa(2*t+jj, rt),4)}, v{V_XR+jj} offset:{off}", ("xf", t, jj, rt))
        return f
    def kv_fn(n, half):
        j, ct = divmod(n, 8)
        r = V_RING + (n % NRING) * 4 + half * 2
        def f():
            off = g.ldsaddr(V_BKV + ct, slot_of(j // 2) + 16384 + (j % 2) * 8192, 1024)
            g.lds(f"ds_read_b64_tr_b16 {vr(r,2)}, v{V_BKV+ct} offset:{off+half*1024}", ("bkv", n))
        return f
    mf = []
    for n in range(NF):
        j, ct = divmod(n, 8)
        r = V_RING + (n % NRING) * 4
        for rt in range(2):
            c = "0" if j == 0 else vr(acckv(rt, ct), 4)
            mf.append(f"v_mfma_f32_16x16x32_bf16 {vr(acckv(rt,ct),4)}, {ar(xa(j,rt),4)}, {vr(r,4)}, {c}")
    fixed = {}; fill = []
    def fx(k, fn): fixed.setdefault(k, []).append(fn)
    nxt = D; wqn = 0; rotdone = False
    def opre_fn():
        g("s_mov_b32 exec_hi, 3")
        g.vmem(f"buffer_load_dword v{V_DUM}, v{V_OPRE}, {sr(S_WS,4)}, 0 offen", "ppf")
        g("s_mov_b32 exec_hi, -1")
    for _ in range(opt.init):
        fill += stage_fill(g, nxt, 0); nxt += 1
    for n in range(NF):
        m = n + P
        if m < NF:
            if m % 16 == 0:
                t = m // 16
                fx(2 * n, lambda t=t: g.need(fill, ("st", t), 8))
                fx(2 * n, lambda: g("s_barrier"))
                fx(2 * n, lambda t=t: g.stamp(f"B{t}"))
                for q, (jj, rt) in enumerate([(0, 0), (0, 1), (1, 0), (1, 1)]):
                    fx(2 * n + 1 + 2 * q + (0 if q < 2 else 6), xr_fn(t, jj, rt))
                while nxt < 8 and (nxt < 5 or nxt - 5 <= t - 2) and nxt <= t + (D if t < opt.d2from else opt.d2) - 1:
                    fill += stage_fill(g, nxt, 2 * n + 1); nxt += 1
                if t == opt.pfq:
                    fill.append((2 * n + 1, V(lambda: g.vmem(f"buffer_load_dword v{V_DUM}, v{VPFQ}, {sr(S_W,4)}, 0 offen", "pf")), False))
                if t == opt.opre: fill.append((2 * n + 1, V(opre_fn), False))
                if t == opt.pfo:
                    fill.append((2 * n + 1, V(lambda: g.vmem(f"buffer_load_dword v{V_DUM}, v{VPFO}, {sr(S_WO,4)}, 0 offen", "pf")), False))
                if nxt == 8 and not rotdone:
                    fill += rot_fill(g, 2 * n + 1); rotdone = True
                if nxt == 8:
                    while wqn < 8 and (3 + wqn // 4) <= t - 2:
                        fill += wq_fill(g, wqn, max(2 * n + 1, opt.wq0 + wqn * opt.wqs)); wqn += 1
            fx(2 * n, kv_fn(m, 0)); fx(2 * n + 1, kv_fn(m, 1))
        if n % 2 == 1 and n + 1 < NF:
            def wfn(n=n):
                tags = [("bkv", min(n + 2, NF - 1))]
                j2 = (n + 2) // 8
                for jn in {(n + 1) // 8, min(n + 2, NF - 1) // 8}:
                    tags += [("xf", jn // 2, jn % 2, 0), ("xf", jn // 2, jn % 2, 1)]
                g.wait_lg(*tags)
            fx(2 * n + 1, wfn)
    tagops = [lambda: g.wait_vm("ep"), lambda: g(f"v_readfirstlane_b32 s{S_TAG}, v{VEP}"),
              lambda: g(f"s_add_u32 s{S_TAG}, s{S_TAG}, 0x9e3779b1"), lambda: g(f"v_mov_b32 v{VTAG}, s{S_TAG}"),
              lambda: g(f"s_andn2_b32 s{S_T3}, s{S_TAG}, 15"), lambda: g(f"s_or_b32 s{S_T3}, s{S_T3}, s{S_LOC}"),
              lambda: g(f"v_mov_b32 v{VXV}, s{S_T3}"), lambda: g(f"v_mov_b32 v{VPFO2}, v{VPFO}")]
    for q, fn in enumerate(tagops): fx(244 + q + (q > 1), fn)
    g.wait_vm(("st", 0))
    g("s_barrier")
    g.stamp("sync0")
    for jj, rt in [(0, 0), (0, 1)]: xr_fn(0, jj, rt)()
    for n in range(2): kv_fn(n, 0)(); kv_fn(n, 1)()
    for jj, rt in [(1, 0), (1, 1)]: xr_fn(0, jj, rt)()
    for n in range(2, P): kv_fn(n, 0)(); kv_fn(n, 1)()
    g.wait_lg(("bkv", 1))
    g.stream(mf, fixed, fill, cap=opt.cap, vsp=lambda k: opt.vsp if k < opt.vsw else opt.vspl)
    g.stamp("kv_end")
    PK = V_E; VV = V_RING
    assert wqn == 8 and nxt == 8
    if not opt.wqepi: g.flush(fill)
    if opt.pfo == 8:
        fill.append((0, V(lambda: g.vmem(f"buffer_load_dword v{V_DUM}, v{VPFO2}, {sr(S_WO,4)}, 0 offen", "pf")), False))
    if opt.opre == 8: fill.append((0, V(opre_fn), False))
    KVP = V_RING + 20; ZP = V_RING + 36
    pairs = [(acckv(rt, h) + 2 * p, PK + h * 4 + rt * 2 + p) for h in range(4) for rt in range(2) for p in range(2)]
    def cv(h):
        for rt in range(2):
            for p in range(2):
                s = acckv(rt, 4 + h) + 2 * p
                g(f"v_cvt_pk_bf16_f32 v{VV + h*4 + rt*2 + p}, v{s}, v{s+1}")
    def mfk(h):
        g(f"v_mfma_f32_16x16x32_bf16 {vr(KVP+h*4,4)}, {vr(PK+h*4,4)}, {vr(VV+h*4,4)}, 0")
        g(f"v_mfma_f32_16x16x32_bf16 {vr(ZP+h*4,4)}, {vr(PK+h*4,4)}, {ar(A_ONES,4)}, 0")
    def wr(h):
        g.lds(f"ds_write_b128 v{V_LRW}, {vr(KVP+h*4,4)} offset:{h*1024}", "rw")
        g(f"s_mov_b64 exec, {sr(S_MI0,2)}")
        g.lds(f"ds_write_b128 v{V_LZW}, {vr(ZP+h*4,4)} offset:{h*64}", "rw")
        g(f"s_mov_b64 exec, -1")
    def hook(n):
        for _ in range(opt.wqepi):
            if fill:
                _e, fn, last = fill.pop(0); fn()
                if last: break
        if n % 4 == 2: cv(n // 4)
        if n >= 5 and n % 4 == 1: mfk(n // 4 - 1)
        if n >= 7 and n % 4 == 3: wr(n // 4 - 1)
    phi_block(g, pairs, TM, hook=hook)
    g.flush(fill)
    g.stamp("Ephik")
    g("s_nop 1")
    mfk(3)
    g("s_nop 7")
    wr(3)
    SQ = opt.qsync
    g.need(fill, ("wq", SQ - 1), 2)
    g("s_waitcnt lgkmcnt(0)")
    g("s_barrier")
    g.stamp("Ebar")
    R0 = V_RING
    for w2 in range(4):
        g.lds(f"ds_read_b128 {vr(R0+w2*4,4)}, v{V_LRR} offset:{w2*4096}", ("rr", w2))
    for w2 in range(4):
        g.lds(f"ds_read_b128 {vr(R0+16+w2*4,4)}, v{V_LZR} offset:{w2*256}", ("rz", w2))
    QR, NQR = V_RING + 32, 8
    PQ = 6
    NQ = 64
    def q_fn(n, half):
        j, h = divmod(n, 4)
        r = QR + (n % NQR) * 4 + half * 2
        def f():
            off = g.ldsaddr(V_BQ + h, lds_q(j // 2) + (j % 2) * 4096, 512)
            g.lds(f"ds_read_b64_tr_b16 {vr(r,2)}, v{V_BQ+h} offset:{off+half*512}", ("bq", n))
        return f
    for n in range(3): q_fn(n, 0)(); q_fn(n, 1)()
    g.wait_lg(("rr", 1))
    g(f"v_pk_add_f32 {vr(R0,2)}, {vr(R0,2)}, {vr(R0+4,2)}")
    g(f"v_pk_add_f32 {vr(R0+2,2)}, {vr(R0+2,2)}, {vr(R0+6,2)}")
    g.wait_lg(("rr", 3))
    g(f"v_pk_add_f32 {vr(R0+8,2)}, {vr(R0+8,2)}, {vr(R0+12,2)}")
    g(f"v_pk_add_f32 {vr(R0+10,2)}, {vr(R0+10,2)}, {vr(R0+14,2)}")
    g(f"v_pk_add_f32 {vr(R0,2)}, {vr(R0,2)}, {vr(R0+8,2)}")
    g(f"v_pk_add_f32 {vr(R0+2,2)}, {vr(R0+2,2)}, {vr(R0+10,2)}")
    for k in range(4): g(f"v_bfi_b32 v{R0+k}, v{VMSK}, v{VTAG}, v{R0+k}")
    g.vmem(f"buffer_store_dwordx4 {vr(R0,4)}, v{V_PKW}, {sr(S_WS,4)}, 0 offen {opt.pubflag}", "pk_st")
    Z0 = R0 + 16
    g.wait_lg(("rz", 3))
    g(f"v_pk_add_f32 {vr(Z0,2)}, {vr(Z0,2)}, {vr(Z0+4,2)}")
    g(f"v_pk_add_f32 {vr(Z0+2,2)}, {vr(Z0+2,2)}, {vr(Z0+6,2)}")
    g(f"v_pk_add_f32 {vr(Z0+8,2)}, {vr(Z0+8,2)}, {vr(Z0+12,2)}")
    g(f"v_pk_add_f32 {vr(Z0+10,2)}, {vr(Z0+10,2)}, {vr(Z0+14,2)}")
    g(f"v_pk_add_f32 {vr(Z0,2)}, {vr(Z0,2)}, {vr(Z0+8,2)}")
    g(f"v_pk_add_f32 {vr(Z0+2,2)}, {vr(Z0+2,2)}, {vr(Z0+10,2)}")
    for k in range(4): g(f"v_bfi_b32 v{Z0+k}, v{VMSK}, v{VTAG}, v{Z0+k}")
    g(f"s_mov_b64 exec, {sr(S_MI0,2)}")
    g.vmem(f"buffer_store_dwordx4 {vr(Z0,4)}, v{V_PZW}, {sr(S_WS,4)}, 0 offen {opt.pubflag}", "pz_st")
    g(f"s_mov_b64 exec, 1")
    g.vmem(f"buffer_store_dword v{VXV}, v{V_ZERO}, {sr(S_WS,4)}, s{S_XW} offen sc1", "xt_st")
    g(f"s_mov_b64 exec, -1")
    if opt.pfo == 9:
        g.vmem(f"buffer_load_dword v{V_DUM}, v{VPFO2}, {sr(S_WO,4)}, 0 offen", "pf")
    g.stamp("published")
    for n in range(3, PQ): q_fn(n, 0)(); q_fn(n, 1)()
    mf = []; fixed = {}; fill = []
    for n in range(NQ):
        j, h = divmod(n, 4)
        r = QR + (n % NQR) * 4
        for rt in range(2):
            c = "0" if j == 0 else vr(accq(rt, h), 4)
            mf.append(f"v_mfma_f32_16x16x32_bf16 {vr(accq(rt,h),4)}, {vr(r,4)}, {ar(xa(j,rt),4)}, {c}")
        m = n + PQ
        if m < NQ:
            if m % (8 * SQ) == 0:
                fx(2 * n, lambda m=m: g.need(fill, ("wq", min(m // 8 + SQ - 1, 7)), 2))
                fx(2 * n, lambda: g("s_barrier"))
            fx(2 * n, q_fn(m, 0)); fx(2 * n + 1, q_fn(m, 1))
        if n in (16, 32, 48): fx(2 * n, lambda n=n: g.stamp(f"Eq{n}"))
        if n % 2 == 1 and n + 1 < NQ:
            fx(2 * n + 1, lambda n=n: g.wait_lg(("bq", min(n + 2, NQ - 1))))
    EPSQ = 60
    if opt.opre == 9: fx(1, opre_fn)
    for k in range(4): fill.append((0, lambda k=k: g(f"v_mov_b32 v{EPSQ+k}, {EPS:#x}"), False))
    wof = []
    for u in range(8): wof += wo_fill(g, u, opt.wo0)
    k_ = 4 * opt.wosplit
    fill += wof[:k_] + partial_fill(g, opt.plstart) + wof[k_:]
    if opt.opre == 10:
        g(f"v_mov_b32 v56, v{V_OPRE}")
        def opre2():
            g("s_mov_b32 exec_hi, 3")
            g.vmem(f"buffer_load_dword v{V_DUM}, v56, {sr(S_WS,4)}, 0 offen", "ppf")
            g("s_mov_b32 exec_hi, -1")
        fill.append((0, V(opre2), False))
    g.wait_lg(("bq", 1))
    g.stream(mf, fixed, fill, cap=opt.cap, vsp=opt.vspq)
    g.stamp("q_end")
    print("q leftover", len(fill), file=sys.stderr)
    if opt.plphi < 0: g.flush(fill)
    g("s_nop 7")
    PQB = V_E
    pairs = [(accq(rt, h) + 2 * p, PQB + (rt * 4 + h) * 2 + p) for rt in range(2) for h in range(4) for p in range(2)]
    def hookq(n):
        if n >= opt.plphi:
            for _ in range(opt.plper):
                if fill:
                    _e, fn, last = fill.pop(0); fn()
                    if last: break
    phi_block(g, pairs, TM, hook=hookq)
    g.flush(fill)
    g.stamp("phiq_end")
    B = V_ACCKV
    g.wait_vm("pl", ("wo", 7))
    g("L_chkA:")
    if opt.chk == 4:
        regs = [ZL + 2, ZL + 3] + [B + k for k in range(64)]
    else:
        regs = [B + 4 * k + 3 for k in opt.plist]
    g(f"v_xor_b32 v{ACC}, v{VTAG}, v{ZL}")
    g(f"v_xor_b32 v{VF}, v{VTAG}, v{ZL+(1 if opt.chk == 4 else 3)}")
    for n, rg in enumerate(regs):
        a = ACC if n % 2 == 0 else VF
        g(f"v_bitop3_b32 v{a}, v{a}, v{rg}, v{VTAG} bitop3:0xf6")
    g(f"v_or_b32 v{ACC}, v{ACC}, v{VF}")
    g(f"v_and_b32 v{ACC}, 0xff, v{ACC}")
    g(f"v_cmp_ne_u32 vcc, 0, v{ACC}")
    g(f"s_add_u32 s{S_CNTA}, s{S_CNTA}, 1")
    g("s_cbranch_vccz L_okA")
    g(f"s_cmp_gt_u32 s{S_CNTA}, {opt.spin}")
    g("s_cbranch_scc1 L_okA")
    nvm = len(g.vm)
    for _, f, _l in partial_fill(g, 0, 'sc1'): f()
    del g.vm[nvm:]
    g("s_waitcnt vmcnt(0)")
    g("s_branch L_chkA")
    g("L_okA:")
    g.stamp("okA")
    mid = []
    va = []
    for sh in (8, 4, 2, 1):
        for k in range(4):
            va.append(f"v_add_f32_dpp v{ZL+k}, v{ZL+k}, v{ZL+k} row_ror:{sh} row_mask:0xf bank_mask:0xf")
    for st in (32, 16, 8, 4):
        for k in range(0, st, 2):
            va.append(f"v_pk_add_f32 {vr(B+k,2)}, {vr(B+k,2)}, {vr(B+k+st,2)}")
    for n_, l in enumerate(va):
        g(l)
        if mid and n_ % opt.midgap == 0: mid.pop(0)[1]()
    g(f"v_cvt_pk_bf16_f32 v{B+6}, v{ZL}, v{ZL+1}")
    g(f"v_cvt_pk_bf16_f32 v{B+7}, v{ZL+2}, v{ZL+3}")
    g(f"v_cvt_pk_bf16_f32 v{B+4}, v{B}, v{B+1}")
    g(f"v_cvt_pk_bf16_f32 v{B+5}, v{B+2}, v{B+3}")
    g.lds(f"ds_write_b128 v{V_SHW}, {vr(B+4,4)}", "sw")
    g(f"v_cmp_ne_u32 vcc, v{VRD}, v{VXV}")
    g("s_nop 1")
    g(f"s_cmp_eq_u64 vcc, 0")
    g(f"s_cselect_b32 s{S_LOC}, {opt.local}, 0")
    g("s_waitcnt lgkmcnt(0)")
    g("s_barrier")
    KZ = B + 16
    for h in range(4):
        g.lds(f"ds_read_b128 {vr(KZ+h*4,4)}, v{V_L16} offset:{L_SHR + h*1024}", ("sr", h))
    g.stamp("Pshr"); g.stamp("Eshr")
    if opt.midpre: g.flush(mid)
    NUM = V_ACCQ; DEN = V_RING
    def wo_fn(n, half):
        i, ct = divmod(n, 4)
        def f():
            off = g.ldsaddr(V_BO + ct, lds_wo(i), 2048)
            g.lds(f"ds_read_b64_tr_b16 {ar(n*4+half*2,2)}, v{V_BO+ct} offset:{off+half*2048}", ("wo", n))
        return f
    early = [(n, half) for n in range(opt.early) for half in range(2)]
    for h in range(4):
        g.wait_lg(("sr", h))
        for rt in range(2):
            pq = PQB + (rt * 4 + h) * 2
            for l in (f"v_mfma_f32_16x16x16_bf16 {vr(DEN+(rt*4+h)*4,4)}, {vr(KZ+h*4+2,2)}, {vr(pq,2)}, {vr(EPSQ,4)}",
                      f"v_mfma_f32_16x16x16_bf16 {vr(NUM+(rt*4+h)*4,4)}, {vr(KZ+h*4,2)}, {vr(pq,2)}, 0"):
                g(l)
                for _ in range(2):
                    if early:
                        n, half = early.pop(0)
                        wo_fn(n, half)()
    assert not early
    OB = V_RING + 32
    order = [(rt, h) for h in range(4) for rt in range(2)]
    for (rt, h) in order[:4]:
        d = DEN + (rt * 4 + h) * 4
        g(f"v_rcp_f32 v{d}, v{d}")
    g("s_nop 3")
    for (rt, h) in order[4:]:
        d = DEN + (rt * 4 + h) * 4
        g(f"v_rcp_f32 v{d}, v{d}")
    sts = []
    if opt.rest:
        g(f"v_mov_b32 v{VPK}, v{VOPA}")
        g(f"v_mov_b32 v{VPZ}, v{VRA}")
    for (rt, h) in order:
        d = DEN + (rt * 4 + h) * 4; nn = NUM + (rt * 4 + h) * 4; ob = OB + (rt * 4 + h) * 2
        g(f"v_pk_mul_f32 {vr(nn,2)}, {vr(nn,2)}, {vr(d,2)} op_sel_hi:[1,0]")
        g(f"v_pk_mul_f32 {vr(nn+2,2)}, {vr(nn+2,2)}, {vr(d,2)} op_sel_hi:[1,0]")
        g(f"v_cvt_pk_bf16_f32 v{ob}, v{nn}, v{nn+1}")
        g(f"v_cvt_pk_bf16_f32 v{ob+1}, v{nn+2}, v{nn+3}")
        if h % 2 == 1:
            so = "0" if rt == 0 else f"s{S_16K}"
            sts.append(f"buffer_store_dwordx4 {vr(OB+(rt*4+h-1)*2,4)}, v{VPK if opt.rest else VOPA}, {sr(S_WS,4)}, {so} offen offset:{(h//2)*1024}")
    def ck_sum(dst, regs):
        L = [f"v_add3_u32 v{dst}, v{regs[0]}, v{regs[1]}, v{VTAG}"]
        for k in range(2, 16, 2): L.append(f"v_add3_u32 v{dst}, v{regs[k]}, v{regs[k+1]}, v{dst}")
        return L
    for l in ck_sum(TM, list(range(OB, OB + 16))): g(l)
    sts.append(f"buffer_store_dword v{TM}, v{VRA}, {sr(S_WS,4)}, 0 offen")
    g(f"s_cmp_eq_u32 s{S_LOC}, 0")
    g("s_cbranch_scc1 L_st_remote")
    for l in sts: g.vmem(l + " " + opt.locflag, "o_st")
    g("L_st_done:")
    g.remote = sts
    g.stamp("o_stored")
    g.flush(mid)
    OF = 64; ACO = 224; CKR = TM + 2
    def ofr(i, rt):
        if i < 2: return OB + rt * 8 + i * 4
        return OF + ((i - 2) // 2) * 16 + rt * 8 + (i % 2) * 4
    def of_txt(c, rt, k, fl=None):
        return f"buffer_load_dwordx4 {vr(ofr(2*c+k, rt),4)}, v{A0 if rt == 0 else V_PPF2}, {sr(S_WS,4)}, s{S_SX+c} offen offset:{k*1024} {opt.ldflag if fl is None else fl}"
    def ck_txt(c, fl=None): return f"buffer_load_dword v{CKR+c}, v{A1}, {sr(S_WS,4)}, s{S_SX+c} offen {opt.ldflag if fl is None else fl}"
    V_PPF2 = VPK
    g(f"v_mov_b32 v{V_PPF2}, v{V_PPF}")
    lds_ = []
    for c in range(1, 8):
        for k in range(2):
            for rt in range(2):
                lds_.append(V(lambda c=c, rt=rt, k=k: g.vmem(of_txt(c, rt, k), ("of", c))))
        lds_.append(V(lambda c=c: g.vmem(ck_txt(c), ("of", c))))
    def chk_ops(c):
        b_ = ofr(2 * c, 0)
        return ck_sum(ACC, list(range(b_, b_ + 16))) + [f"v_cmp_ne_u32 vcc, v{ACC}, v{CKR+c}"]
    g.retry = (of_txt, ck_txt, chk_ops)
    NP = opt.npre4
    assert NP >= 12
    nof = 0
    for n in range(opt.early, NP):
        wo_fn(n, 0)(); wo_fn(n, 1)()
        if n + 1 >= opt.ofat and nof < opt.ofpre and (n + 1 - opt.ofat) % opt.ofgap == 0:
            if nof == 0: g.stamp("of_issue")
            lds_.pop(0)(); nof += 1
    if nof == 0: g.stamp("of_issue")
    while nof < opt.ofpre: lds_.pop(0)(); nof += 1
    g.stamp("preread")
    mf = []; fixed = {}; fill = [(0, f, False) for f in lds_]; load = {}
    def fxl(k, fn, w=1):
        fx(k, fn); load[k] = load.get(k, 0) + w
    for i in range(16):
        for ct in range(4):
            for rt in range(2):
                a = ACO + (rt * 4 + ct) * 4
                c = "0" if i == 0 else vr(a, 4)
                mf.append(f"v_mfma_f32_16x16x32_bf16 {vr(a,4)}, {ar((i*4+ct)*4,4)}, {vr(ofr(i,rt),4)}, {c}")
        if i == 0: fxl(0, lambda: g.wait_lg(("wo", 7)))
        elif i == 2: fxl(16, lambda: g.wait_lg(("wo", NP - 1)))
        if i > 2 and i * 4 + 3 >= NP: fxl(i * 8, lambda i=i: g.wait_lg(("wo", i * 4 + 3)))
    for n in (32, 64, 96): fx(n, lambda n=n: g.stamp(f"Pm{n}"))
    for c in range(1, 8):
        nb = 16 * c
        ops = chk_ops(c)
        fxl(nb - len(ops) - 1, lambda c=c: g.need(fill, ("of", c), 5))
        for q, l in enumerate(ops): fxl(nb - len(ops) - 1 + q, lambda l=l: g(l))
        fxl(nb - 1, lambda c=c: (g(f"s_cbranch_vccnz L_rt{c}"), g(f"L_back{c}:")))
    if opt.wbl2:
        def wb():
            g(f"s_cmp_lt_u32 s{S_SO2}, {opt.wbn}")
            g("s_cbranch_scc0 L_nowb")
            g("buffer_wbl2 sc1")
            g("L_nowb:")
        fxl(opt.wbl2, wb, 2)
        g(f"s_lshl_b32 s{S_SO2}, s{S_WV}, 8")
        g(f"s_add_u32 s{S_SO2}, s{S_SO2}, s2")
    gap = 0
    for n in range(NP, 64):
        for half in range(2):
            while load.get(gap, 0) >= opt.rpg: gap += 1
            assert gap < (n // 4) * 8 - 4, (gap, n)
            fxl(gap, wo_fn(n, half))
    g.stream(mf, fixed, fill, cap=opt.cap2, vsp=opt.vsp2)
    assert not fill
    g.stamp("mfma2")
    g("s_nop 7")
    OP = 64
    for rt in range(2):
        for p in range(2):
            a0 = ACO + (rt * 4 + 2 * p) * 4; a1 = a0 + 4; o = OP + (rt * 2 + p) * 4
            g(f"v_cvt_pk_bf16_f32 v{o}, v{a0}, v{a0+1}")
            g(f"v_cvt_pk_bf16_f32 v{o+1}, v{a0+2}, v{a0+3}")
            g(f"v_cvt_pk_bf16_f32 v{o+2}, v{a1}, v{a1+1}")
            g(f"v_cvt_pk_bf16_f32 v{o+3}, v{a1+2}, v{a1+3}")
            g("s_nop 1")
            g(f"v_permlane16_swap_b32 v{o}, v{o+2}")
            g(f"v_permlane16_swap_b32 v{o+1}, v{o+3}")
            so = "0" if rt == 0 else f"s{S_32K}"
            g.vmem(f"buffer_store_dwordx4 {vr(o,4)}, v{VO}, {sr(S_OUT,4)}, {so} offen offset:{p*64} {opt.outflag}", "out")
    g("s_cmp_ge_u32 s2, 2")
    g("s_cbranch_scc1 L_noep")
    g(f"s_cmp_lg_u32 s{S_WV}, 0")
    g("s_cbranch_scc1 L_noep")
    g(f"s_lshl_b32 s{S_T0}, s{S_BR}, 7")
    g(f"s_add_u32 s{S_T0}, s{S_T0}, {WS_EP}")
    g(f"v_mov_b32 v{VF}, 0")
    g(f"v_cmp_eq_u32 vcc, 0, v{V_LANE}")
    g(f"s_and_saveexec_b64 {sr(S_EX,2)}, vcc")
    g(f"buffer_store_dword v{VTAG}, v{VF}, {sr(S_WS,4)}, s{S_T0} offen sc1")
    g(f"s_mov_b64 exec, {sr(S_EX,2)}")
    g("L_noep:")
    if opt.ts:
        g("s_waitcnt vmcnt(0)")
        g.stamp("out_done")
        g(f"s_lshl_b32 s{S_T0}, s2, 2")
        g(f"s_add_u32 s{S_T0}, s{S_T0}, s{S_WV}")
        g(f"s_lshl_b32 s{S_T0}, s{S_T0}, 7")
        g(f"s_add_u32 s{S_T0}, s{S_T0}, {WS_TS}")
        g(f"v_mov_b32 v{A1}, 0")
        g(f"v_cmp_eq_u32 vcc, 0, v{V_LANE}")
        g(f"s_and_saveexec_b64 {sr(S_EX,2)}, vcc")
        for i in range(16):
            if i < g.nstamp:
                g(f"v_mov_b32 v64, s{64+2*i}"); g(f"v_mov_b32 v65, s{65+2*i}")
            elif i == 15:
                g(f"s_lshl_b32 s{S_LOC}, s{S_LOC}, 8"); g(f"s_add_u32 s{S_CNTA}, s{S_CNTA}, s{S_LOC}"); g(f"v_mov_b32 v64, s{S_CNTA}"); g(f"v_mov_b32 v65, s{S_CNT}")
            else:
                g(f"v_mov_b32 v64, s64"); g(f"v_mov_b32 v65, s65")
            g(f"buffer_store_dwordx2 v[64:65], v{A1}, {sr(S_WS,4)}, s{S_T0} offen offset:{i*8}")
            g("s_nop 1")
    g("L_end:")
    g("s_endpgm")
    g("L_st_remote:")
    for l in g.remote: g(l + " sc1")
    g("s_branch L_st_done")
    of_txt, ck_txt, chk_ops = g.retry
    for c in range(1, 8):
        g(f"L_rt{c}:")
        g(f"s_add_u32 s{S_CNT}, s{S_CNT}, 1")
        g(f"s_cmp_gt_u32 s{S_CNT}, {opt.spin}")
        g(f"s_cbranch_scc1 L_back{c}")
        for k in range(2):
            for rt in range(2): g(of_txt(c, rt, k, 'sc1'))
        g(ck_txt(c, 'sc1'))
        g("s_waitcnt vmcnt(0)")
        for l in chk_ops(c): g(l)
        g("s_nop 1")
        g(f"s_cbranch_vccnz L_rt{c}")
        g(f"s_branch L_back{c}")
    g("L_code_end:")
    g(f""".section .rodata,"a"
.p2align 6
.amdhsa_kernel {NAME}
  .amdhsa_next_free_vgpr 512
  .amdhsa_next_free_sgpr 102
  .amdhsa_accum_offset 256
  .amdhsa_group_segment_fixed_size 0
  .amdhsa_kernarg_size 72
  .amdhsa_user_sgpr_count 2
  .amdhsa_user_sgpr_kernarg_segment_ptr 1
  .amdhsa_system_sgpr_workgroup_id_x 1
.end_amdhsa_kernel""")
    print("late-issued fillers:", getattr(g, "late", 0), file=sys.stderr)
    if opt.ts:
        g("; stamps: " + " ".join(g.names))
    return g.text()

def parser():
    ap = argparse.ArgumentParser()
    ap.add_argument("-o", default="k.s")
    ap.add_argument("--ts", action="store_true")
    ap.add_argument("--tsk", action="store_true")
    ap.add_argument("--tsp", action="store_true")
    ap.add_argument("--cyc", action="store_true")
    ap.add_argument("--tse", action="store_true")
    ap.add_argument("--plrot", type=int, default=1)
    ap.add_argument("--map", default="B")
    ap.add_argument("--rota", type=int, default=4)
    ap.add_argument("--rotb", type=int, default=4)
    ap.add_argument("--rotc", type=int, default=2)
    ap.add_argument("--depth", type=int, default=3)
    ap.add_argument("--pf", type=int, default=6)
    ap.add_argument("--cap", type=int, default=2)
    ap.add_argument("--wosplit", type=int, default=8)
    ap.add_argument("--plstep", type=int, default=1)
    ap.add_argument("--npre4", type=int, default=64)
    ap.add_argument("--cap2", type=int, default=3)
    ap.add_argument("--vsw", type=int, default=999)
    ap.add_argument("--vspl", type=int, default=3)
    ap.add_argument("--pro", type=int, default=1)
    ap.add_argument("--opre", type=int, default=9)
    ap.add_argument("--chk0", type=int, default=999)
    ap.add_argument("--chkd", type=int, default=7)
    ap.add_argument("--wbl2", type=int, default=108)
    ap.add_argument("--wbn", type=int, default=8)
    ap.add_argument("--cgshift", type=int, default=0)
    ap.add_argument("--plphi", type=int, default=-1)
    ap.add_argument("--plper", type=int, default=2)
    ap.add_argument("--ppf", type=int, default=0)
    ap.add_argument("--early", type=int, default=16)
    ap.add_argument("--rest", type=int, default=0)
    ap.add_argument("--local", type=int, default=1)
    ap.add_argument("--locflag", default="")
    ap.add_argument("--ldflag", default="")
    ap.add_argument("--plflag", default="sc1")
    ap.add_argument("--pubflag", default="sc1")
    ap.add_argument("--ipf", type=int, default=2)
    ap.add_argument("--ofpre", type=int, default=9)
    ap.add_argument("--vsp2", type=int, default=2)
    ap.add_argument("--rd0", type=int, default=24)
    ap.add_argument("--midgap", type=int, default=2)
    ap.add_argument("--midpre", type=int, default=1)
    ap.add_argument("--rpg", type=int, default=2)
    ap.add_argument("--sent", type=int, default=3)
    ap.add_argument("--ofat", type=int, default=56)
    ap.add_argument("--ofgap", type=int, default=1)
    ap.add_argument("--init", type=int, default=0)
    ap.add_argument("--nwoq", type=int, default=11)
    ap.add_argument("--woq_after", type=int, default=0)
    ap.add_argument("--plfirst", type=int, default=0)
    ap.add_argument("--pollat", type=int, default=52)
    ap.add_argument("--bgap", type=int, default=41)
    ap.add_argument("--d2", type=int, default=4)
    ap.add_argument("--d2from", type=int, default=2)
    ap.add_argument("--wq0", type=int, default=200)
    ap.add_argument("--wqs", type=int, default=6)
    ap.add_argument("--wqepi", type=int, default=2)
    ap.add_argument("--wo0", type=int, default=30)
    ap.add_argument("--pfq", type=int, default=4)
    ap.add_argument("--pfo", type=int, default=8)
    ap.add_argument("--opf", type=int, default=1)
    ap.add_argument("--vsp", type=int, default=2)
    ap.add_argument("--vspq", type=int, default=2)
    ap.add_argument("--qsync", type=int, default=4)
    ap.add_argument("--plstart", type=int, default=80)
    ap.add_argument("--plsolo", type=int, default=1)
    ap.add_argument("--npre", type=int, default=8)
    ap.add_argument("--s0", type=int, default=2)
    ap.add_argument("--flagat", type=int, default=40)
    ap.add_argument("--polla", type=int, default=0)
    ap.add_argument("--chk", type=int, default=1)
    ap.add_argument("--spin", type=int, default=20000)
    ap.add_argument("--xflag", default="")
    ap.add_argument("--xflag2", default="")
    ap.add_argument("--wflag", default="")
    ap.add_argument("--qflag", default="")
    ap.add_argument("--oflag", default="")
    ap.add_argument("--outflag", default="sc0 sc1")
    return ap
if __name__ == "__main__":
    opt = parser().parse_args()
    opt.plist = list(range(0, 16, opt.plstep))
    open(opt.o, "w").write(gen(opt))
```
